```python
import torch

def _softmax(x, axis=-1):
    return torch.softmax(x, dim=axis)

def _gelu(x):
    return torch.nn.functional.gelu(x, approximate='tanh')

def _silu(x):
    return torch.nn.functional.silu(x)

def _sigmoid(x):
    return torch.sigmoid(x)

def _layernorm(x, axis=-1, eps=1e-05):
    m = x.mean(dim=axis, keepdim=True)
    v = x.var(dim=axis, keepdim=True, unbiased=False)
    return (x - m) / torch.sqrt(v + eps)

def _scatter_add(tgt, idx, src, axis=0):
    return tgt.clone().index_add_(axis, idx, src)

def _segment_sum(src, seg, n):
    out = torch.zeros((n,) + src.shape[1:], dtype=src.dtype)
    return out.index_add_(0, seg, src)

def _pad(x, pw):
    flat = tuple((v for pair in reversed(pw) for v in pair))
    return torch.nn.functional.pad(x, flat)
kernel_name = 'interleave_layers__ssm_conv_s4d__memory_aug_recurrent_mem_tr__prompt'

def setup_inputs():

    _w = lambda a: (lambda t: t.to(torch.bfloat16) if t.is_floating_point() else t)(torch.as_tensor(a))

    def _A_setup():
        Bsz, L, D, N = (1, 2048, 512, 128)
        return {'u': _w((lambda *s: torch.randn(*s, dtype=torch.bfloat16) * 0.05)(Bsz, L, D)), 'log_A_real': _w((lambda *s: torch.randn(*s, dtype=torch.bfloat16) * 3.2)(D, N) * 0.5), 'A_imag': _w((lambda *s: torch.randn(*s, dtype=torch.bfloat16) * 0.05)(D, N) * 3.14), 'C_real': _w((lambda *s: torch.randn(*s, dtype=torch.bfloat16) * 0.05)(D, N) / N ** 0.5), 'C_imag': _w((lambda *s: torch.randn(*s, dtype=torch.bfloat16) * 0.05)(D, N) / N ** 0.5), 'log_dt': _w((lambda *s: torch.randn(*s, dtype=torch.bfloat16) * 0.05)(D) * 0.5 - 4.0), 'D_skip': _w((lambda *s: torch.randn(*s, dtype=torch.bfloat16) * 0.05)(D))}
    _A_in = _A_setup()

    def _B_setup():
        B, S, Dm = (1, 2048, 512)
        H, Dh = (32, 128)
        M, seg = (8, 32)
        seg = min(seg, S)
        S = S // seg * seg
        return {'x': _w((lambda *s: torch.randn(*s, dtype=torch.bfloat16) * 0.05)(B, S, Dm)), 'mem0': _w((lambda *s: torch.randn(*s, dtype=torch.bfloat16) * 0.8)(B, M, Dm)), 'Wq': _w((lambda *s: torch.randn(*s, dtype=torch.bfloat16) * 1.6)(Dm, H, Dh) * Dm ** (-0.5)), 'Wk': _w((lambda *s: torch.randn(*s, dtype=torch.bfloat16) * 1.6)(Dm, H, Dh) * Dm ** (-0.5)), 'Wv': _w((lambda *s: torch.randn(*s, dtype=torch.bfloat16) * 0.8)(Dm, H, Dh) * Dm ** (-0.5)), 'Wo': _w((lambda *s: torch.randn(*s, dtype=torch.bfloat16) * 0.8)(H, Dh, Dm) * (H * Dh) ** (-0.5)), 'seg_len': seg}
    _B_in = _B_setup()
    return {'A_u': _A_in['u'], 'A_log_A_real': _A_in['log_A_real'], 'A_A_imag': _A_in['A_imag'], 'A_C_real': _A_in['C_real'], 'A_C_imag': _A_in['C_imag'], 'A_log_dt': _A_in['log_dt'], 'A_D_skip': _A_in['D_skip'], 'B_x': _B_in['x'], 'B_mem0': _B_in['mem0'], 'B_Wq': _B_in['Wq'], 'B_Wk': _B_in['Wk'], 'B_Wv': _B_in['Wv'], 'B_Wo': _B_in['Wo'], 'B_seg_len': _B_in['seg_len']}

def reference(A_u, A_log_A_real, A_A_imag, A_C_real, A_C_imag, A_log_dt, A_D_skip, B_x, B_mem0, B_Wq, B_Wk, B_Wv, B_Wo, B_seg_len):

    def _A_ref(u, log_A_real, A_imag, C_real, C_imag, log_dt, D_skip):
        L = u.shape[1]
        dt = torch.exp(log_dt)
        A = -torch.exp(log_A_real) + 1j * A_imag
        C = (C_real + 1j * C_imag) * dt[:, None]
        pos = (lambda x, dt: x.to(dt))(torch.arange(L), log_dt.dtype)
        P = torch.exp((A * dt[:, None])[:, :, None] * pos[None, None, :])
        K = 2.0 * torch.einsum('dn,dnl->dl', C, P).real
        L2 = 2 * L
        u_t = (lambda x, *d: x.permute(*d))(u, 0, 2, 1)
        Kf = (lambda x, *a, **k: torch.fft.rfft(x.float(), *a, **k))(K, L2)
        Uf = (lambda x, *a, **k: torch.fft.rfft(x.float(), *a, **k))(u_t, L2)
        y = (lambda x, *a, **k: torch.fft.irfft(x, *a, **k).to(torch.bfloat16))(Uf * Kf[None, :, :], L2)[:, :, :L]
        y = (lambda x, *d: x.permute(*d))(y, 0, 2, 1)
        return y + u * D_skip[None, None, :]

    def _B_ref(x, mem0, Wq, Wk, Wv, Wo, seg_len):
        B, S, Dm = x.shape
        H, Dh = (Wq.shape[1], Wq.shape[2])
        M = mem0.shape[1]
        scale = Dh ** (-0.5)
        n_seg = S // seg_len
        L = M + seg_len
        idx = torch.arange(L)
        mask = (idx[:, None] < M) | (idx[:, None] >= idx[None, :])
        mem = mem0
        outs = []
        for s in range(n_seg):
            xs = x[:, s * seg_len:(s + 1) * seg_len, :].clone()
            h = torch.concatenate([mem, xs], axis=1)
            q = torch.einsum('btd,dhe->bhte', h, Wq)
            k = torch.einsum('btd,dhe->bhte', h, Wk)
            v = torch.einsum('btd,dhe->bhte', h, Wv)
            scores = torch.einsum('bhqe,bhke->bhqk', q, k) * scale
            scores = torch.where(mask[None, None], scores, -1000000000.0)
            p = _softmax(scores, axis=-1)
            o = torch.einsum('bhqk,bhke->bhqe', p, v)
            o = torch.einsum('bhte,hed->btd', o, Wo)
            mem = o[:, :M, :].clone()
            outs.append(o[:, M:, :])
        return torch.concatenate(outs, axis=1)
    x = A_u
    x = x + _A_ref(_layernorm(x, axis=-1), A_log_A_real, A_A_imag, A_C_real, A_C_imag, A_log_dt, A_D_skip)
    x = x + _B_ref(_layernorm(x, axis=-1), B_mem0, B_Wq, B_Wk, B_Wv, B_Wo, B_seg_len)
    x = x + _A_ref(_layernorm(x, axis=-1), A_log_A_real, A_A_imag, A_C_real, A_C_imag, A_log_dt, A_D_skip)
    x = x + _B_ref(_layernorm(x, axis=-1), B_mem0, B_Wq, B_Wk, B_Wv, B_Wo, B_seg_len)
    return x
```

```python
import re

class Ins:
    __slots__ = ('text', 'op', 'ops', 'kind', 'vw', 'vr', 'sw', 'sr', 'flags', 'label', 'passes', 'cr', 'ar', 'states', 'target')
    def __init__(self, text):
        self.text = text

_REG = re.compile(r'^(-|\|)?(abs\()?([vas])(\d+|\[(\d+):(\d+)\])\)?\|?$')

def regs_of(tok):
    tok = tok.strip()
    if tok == 'vcc': return ('s', {106, 107})
    if tok == 'vcc_lo': return ('s', {106})
    if tok == 'vcc_hi': return ('s', {107})
    if tok == 'exec': return ('s', {126, 127})
    if tok == 'exec_lo': return ('s', {126})
    if tok == 'exec_hi': return ('s', {127})
    if tok == 'm0': return ('s', {124})
    m = _REG.match(tok)
    if not m: return (None, set())
    f = m.group(3)
    if m.group(5) is not None:
        r = set(range(int(m.group(5)), int(m.group(6)) + 1))
    else:
        r = {int(m.group(4))}
    if f == 'a': return ('v', {512 + x for x in r})
    return (f, r)

TRANS = ('v_exp_', 'v_log_', 'v_rcp_', 'v_rsq_', 'v_sqrt_', 'v_sin_', 'v_cos_')

def split_ops(s):
    out, depth, cur = [], 0, ''
    for ch in s:
        if ch in '[(': depth += 1
        if ch in '])': depth -= 1
        if ch == ',' and depth == 0:
            out.append(cur.strip()); cur = ''
        else:
            cur += ch
    if cur.strip(): out.append(cur.strip())
    return out

def mfma_passes(op):
    if op.startswith('v_smfmac'):
        return 8 if '32x32' in op else 4
    if '_f32_32x32x2_f32' in op or '32x32x1_2b' in op: return 16
    if '_f32_16x16x4_f32' in op or '16x16x1_4b' in op: return 8
    if '4x4x' in op: return 2
    if '32x32' in op: return 8
    if '16x16' in op: return 4
    raise ValueError(op)

def parse(text):
    i = Ins(text)
    t = text.split(';')[0].strip()
    i.label = None; i.kind = 'other'; i.vw = set(); i.vr = set(); i.sw = set(); i.sr = set()
    i.flags = set(); i.passes = 0; i.cr = set(); i.ar = set(); i.states = 1; i.target = None; i.op = ''; i.ops = []
    if not t or t.startswith('.'):
        i.kind = 'none'; i.states = 0
        return i
    if t.endswith(':'):
        i.kind = 'label'; i.label = t[:-1]; i.states = 0
        return i
    parts = t.split(None, 1)
    op = parts[0]; i.op = op
    rest = parts[1] if len(parts) > 1 else ''
    ops = split_ops(rest)
    mods = []
    if ops:
        last = ops[-1].split()
        if len(last) > 1 and not ops[-1].startswith('hwreg'):
            ops[-1] = last[0]; mods = last[1:]
    i.ops = ops; i.flags = set(mods)
    def rd(tok):
        f, r = regs_of(tok)
        if f == 'v': i.vr |= r
        elif f == 's': i.sr |= r
    def wr(tok):
        f, r = regs_of(tok)
        if f == 'v': i.vw |= r
        elif f == 's': i.sw |= r
    if op == 's_nop':
        i.kind = 'salu'; i.states = int(ops[0], 0) + 1
    elif op.startswith('v_mfma') or op.startswith('v_smfmac'):
        i.kind = 'mfma'; i.passes = mfma_passes(op)
        wr(ops[0]); rd(ops[1]); rd(ops[2]); rd(ops[3])
        i.ar = regs_of(ops[1])[1] | regs_of(ops[2])[1]
        if op.startswith('v_smfmac'):
            i.cr = regs_of(ops[0])[1]; i.ar |= regs_of(ops[3])[1]; rd(ops[0])
        else:
            f, r = regs_of(ops[3]); i.cr = r if f == 'v' else set()
        if op.endswith('_f32') and ('x2_f32' in op or 'x4_f32' in op or 'x1_' in op): i.flags.add('SGEMM')
    elif op.startswith('v_'):
        i.kind = 'valu'
        if op.startswith('v_cmpx'):
            wr(ops[0]); i.sw |= {126, 127}
            for o in ops[1:]: rd(o)
        elif op.startswith('v_cmp'):
            wr(ops[0])
            for o in ops[1:]: rd(o)
        elif op.startswith(('v_add_co', 'v_sub_co', 'v_subrev_co', 'v_addc_co', 'v_subb_co', 'v_div_scale', 'v_mad_u64', 'v_mad_i64')):
            wr(ops[0]); wr(ops[1])
            for o in ops[2:]: rd(o)
        elif op.startswith('v_permlane') and 'swap' in op:
            wr(ops[0]); wr(ops[1]); rd(ops[0]); rd(ops[1])
        elif op.startswith('v_swap'):
            wr(ops[0]); wr(ops[1]); rd(ops[0]); rd(ops[1])
        elif op == 'v_nop':
            pass
        else:
            wr(ops[0])
            for o in ops[1:]: rd(o)
            if op.startswith(('v_fmac', 'v_pk_fmac', 'v_dot2c', 'v_dot4c', 'v_writelane', 'v_mac')):
                rd(ops[0])
            if op.startswith('v_div_fmas'): i.sr |= {106, 107}
            if op.startswith('v_cndmask') and len(ops) == 3: i.sr |= {106, 107}
        if op.startswith(TRANS): i.flags.add('TRANS')
        if any(m.startswith(('row_', 'quad_perm', 'wave_', 'row_bcast', 'row_newbcast')) for m in mods) or op.endswith('_dpp'):
            i.flags.add('DPP')
            if not any(m.startswith('bound_ctrl') for m in mods): rd(ops[0])
        if (op.endswith('_sdwa') or any(m.startswith(('dst_sel', 'op_sel')) for m in mods)) and not op.startswith('v_pk_'):
            i.flags.add('OPSEL')
            if any(m.startswith('dst_unused:UNUSED_PRESERVE') for m in mods): rd(ops[0])
    elif op.startswith('buffer_'):
        i.kind = 'vmem'
        if op.startswith(('buffer_wbl2', 'buffer_inv')):
            pass
        elif 'lds' in mods:
            for o in ops: rd(o)
            i.sr.add(124); i.flags.add('LDSDMA')
        elif 'load' in op:
            wr(ops[0])
            for o in ops[1:]: rd(o)
        else:
            for o in ops: rd(o)
            if 'atomic' in op and 'sc0' in mods: wr(ops[0])
            if op.endswith(('x3', 'x4')): i.flags.add('WIDEST'); i.cr = regs_of(ops[0])[1]
    elif op.startswith('global_'):
        i.kind = 'vmem'
        if 'load_lds' in op:
            for o in ops: rd(o)
            i.sr.add(124); i.flags.add('LDSDMA')
        elif 'load' in op:
            wr(ops[0])
            for o in ops[1:]: rd(o)
        elif 'atomic' in op and 'sc0' in mods:
            wr(ops[0])
            for o in ops[1:]: rd(o)
        else:
            for o in ops: rd(o)
            if op.endswith(('x3', 'x4')): i.flags.add('WIDEST'); i.cr = regs_of(ops[1])[1]
    elif op.startswith('ds_'):
        i.kind = 'ds'
        if op.startswith(('ds_read', 'ds_bpermute', 'ds_permute', 'ds_swizzle')) or '_rtn' in op:
            wr(ops[0])
            for o in ops[1:]: rd(o)
        else:
            for o in ops: rd(o)
        if 'addtid' in op: i.sr.add(124); i.flags.add('LDSDMA')
    elif op.startswith('s_'):
        i.kind = 'salu'
        if op.startswith(('s_branch', 's_cbranch')):
            i.kind = 'branch'; i.target = ops[0]
        elif op in ('s_endpgm',):
            i.kind = 'end'
        elif op.startswith(('s_setpc', 's_swappc')):
            i.kind = 'ijump'
            for o in ops: rd(o)
        elif op.startswith(('s_cmp', 's_waitcnt', 's_barrier', 's_sleep', 's_setprio', 's_bitcmp', 's_sendmsg', 's_setreg')):
            for o in ops: rd(o)
        else:
            if ops: wr(ops[0])
            for o in ops[1:]: rd(o)
            if 'saveexec' in op: i.sw |= {126, 127}
    else:
        raise ValueError('unknown instruction: ' + text)
    return i

def need(p, c):
    n = 0
    pv = p.kind == 'valu'
    if pv:
        sw = p.sw
        if sw:
            if c.kind == 'vmem' and (sw & c.sr): n = max(n, 5)
            if c.kind == 'valu' and (sw & c.sr):
                n = max(n, 4 if c.op.startswith(('v_readlane', 'v_writelane', 'v_div_fmas')) else 2)
            if sw & {126, 127}:
                if c.kind == 'valu' and 'DPP' in c.flags: n = max(n, 5)
                if c.kind == 'valu' and c.op.startswith(('v_readlane', 'v_readfirstlane', 'v_writelane', 'v_permlane')): n = max(n, 4)
                if c.kind == 'mfma': n = max(n, 4)
        if p.vw:
            if c.kind == 'valu' and (p.vw & c.vr):
                if 'DPP' in c.flags: n = max(n, 2)
                if c.op.startswith('v_permlane'): n = max(n, 2)
                if c.op.startswith(('v_readlane', 'v_readfirstlane')): n = max(n, 1)
                if 'TRANS' in p.flags: n = max(n, 1)
                if 'OPSEL' in p.flags: n = max(n, 1)
            if c.kind == 'valu' and 'OPSEL' in p.flags and (p.vw & c.vw): n = max(n, 1)
            if c.kind == 'mfma' and (p.vw & c.vr): n = max(n, 2)
            if p.op.startswith('v_dot') and (p.vw & (c.vr | c.vw)):
                same = c.op == p.op and not (p.vw & (regs_of(c.ops[1])[1] | regs_of(c.ops[2])[1]))
                if not same: n = max(n, 3)
    if p.kind == 'vmem' and 'WIDEST' in p.flags:
        if p.cr & c.vw: n = max(n, 2 if c.kind in ('valu', 'mfma') else 1)
    if p.kind == 'salu' and 124 in p.sw:
        if 'LDSDMA' in c.flags or c.op.startswith(('s_sendmsg', 's_movrel')): n = max(n, 1)
    if p.kind == 'mfma':
        P = p.passes
        sg = 'SGEMM' in p.flags
        if c.kind == 'mfma':
            if p.vw & c.ar: n = max(n, (P + 2) if sg else (5 if P == 2 else P + 4))
            if p.vw & c.cr:
                same = (p.vw == c.cr and c.passes == P and (('SGEMM' in c.flags) == sg))
                if same: n = max(n, 2 if P == 2 else 0)
                else: n = max(n, P + 2)
            elif p.vw & c.vw:
                n = max(n, P + 2)
        elif c.kind in ('valu', 'vmem', 'ds'):
            if p.vw & (c.vr | c.vw): n = max(n, (P + 2) if sg else (5 if P == 2 else P + 4))
            if c.kind == 'valu' and not sg and (p.cr & c.vw): n = max(n, P - 1)
    return n

MAXD = 21

def pad_hazards(lines, verbose=False):
    ins = [parse(l) for l in lines]
    total = 0
    while True:
        labels = {x.label: k for k, x in enumerate(ins) if x.kind == 'label'}
        preds = {}
        for k, x in enumerate(ins):
            if x.kind == 'branch' and x.target in labels:
                preds.setdefault(labels[x.target], []).append(k)
        inserts = {}
        for k, c in enumerate(ins):
            if c.kind in ('none', 'label', 'end'): continue
            if c.kind == 'salu' and not (c.op.startswith(('s_sendmsg', 's_movrel'))): continue
            if c.kind == 'branch': continue
            worst = 0
            stack = [(k - 1, 0)]
            seen = {}
            while stack:
                j, d = stack.pop()
                while j >= 0 and d < MAXD:
                    if seen.get(j, 99) <= d: break
                    seen[j] = d
                    p = ins[j]
                    if p.kind == 'label':
                        for b in preds.get(j, []): stack.append((b, d))
                        q = j - 1
                        while q >= 0 and ins[q].kind == 'none': q -= 1
                        if q >= 0 and (ins[q].kind in ('end', 'ijump') or ins[q].op == 's_branch'): break
                        j -= 1; continue
                    if p.kind == 'none': j -= 1; continue
                    if p.kind in ('end',): break
                    r = need(p, c)
                    if r > d: worst = max(worst, r - d)
                    d += p.states
                    j -= 1
            if worst: inserts[k] = worst
        if not inserts: break
        out = []
        last = -100
        for k, c in enumerate(ins):
            if k in inserts and k - last > MAXD + 2:
                w = inserts[k]
                while w > 0:
                    t = min(w, 16); out.append(parse(f's_nop {t-1}')); w -= t
                total += 1
                last = k
                if verbose: print('pad', inserts[k], 'before', c.text)
            out.append(c)
        ins = out
    return [x.text for x in ins], total

class Asm:
    def __init__(self):
        self.lines = []
        self.uid = 0
    def __call__(self, s):
        for l in s.split('\n'):
            l = l.strip()
            if l: self.lines.append(l)
    def lab(self, base):
        self.uid += 1
        return f'L_{base}_{self.uid}'
    def text(self, pad=True, verbose=False):
        lines = self.lines
        if pad: lines, n = pad_hazards(lines, verbose)
        out = []
        for l in lines:
            out.append(l if (l.endswith(':') or l.startswith(('.', ';'))) else '  ' + l)
        return '\n'.join(out) + '\n'

def vr(a, n=1): return f'v{a}' if n == 1 else f'v[{a}:{a+n-1}]'
def ar(a, n=1): return f'a{a}' if n == 1 else f'a[{a}:{a+n-1}]'
def sr(a, n=1): return f's{a}' if n == 1 else f's[{a}:{a+n-1}]'

def kernel_desc(name, vgpr=256, accum=256, sgpr=102):
    return f'''.section .rodata,"a"
.p2align 6
.amdhsa_kernel {name}
  .amdhsa_next_free_vgpr {vgpr}
  .amdhsa_next_free_sgpr {sgpr}
  .amdhsa_accum_offset {accum}
  .amdhsa_group_segment_fixed_size 0
  .amdhsa_kernarg_size 136
  .amdhsa_user_sgpr_count 2
  .amdhsa_user_sgpr_kernarg_segment_ptr 1
  .amdhsa_system_sgpr_workgroup_id_x 1
.end_amdhsa_kernel
'''

def kernel_head(name):
    return f'''.text
.globl {name}
.p2align 8
.type {name},@function
{name}:
'''
```

```python
from common import *
from rec import timeout_fix
UROW = 4128
L_K, L_U, L_X2, L_TB, L_F = 0, 73728, 139776, 147968, 150016
vL16, vZ, vF = 0, 1, 2
sS, sNeed, sA, sB, sTag, sRes0, sOP0, sFOP, sST, sO = range(32, 42)

def unpack(a, dlo, dhi, src): a(f'v_lshlrev_b32 v{dlo}, 16, v{src}\nv_and_b32 v{dhi}, 0xffff0000, v{src}')

def lds_wait(a, off, n, need, t, code):
    L = a.lab('lw'); Lo = a.lab('lwo')
    a(f's_mov_b32 s7, 0\n{L}:\nds_read_b{32*n} {vr(t,n)}, v{vF} offset:{off}\ns_waitcnt lgkmcnt(0)')
    if n == 2: a(f'v_min_i32 v{t}, v{t}, v{t+1}')
    a(f'v_cmp_gt_i32 vcc, s{need}, v{t}\ns_cbranch_vccz {Lo}')
    spin_check(a, 7, code, L)
    a(f'{Lo}:')

def tdump(a, n, v):
    a(f'''s_waitcnt lgkmcnt(0)
    s_lshl_b32 s6, s{sX}, 5
    s_add_u32 s6, s6, s{sR}
    s_lshl_b32 s6, s6, 2
    s_add_u32 s6, s6, s{sW}
    s_lshl_b32 s6, s6, 6
    s_add_u32 s6, s6, s{sS}
    s_lshl_b32 s6, s6, 6
    s_add_u32 s6, s6, {160*MB_}''')
    for k in range(n): a(f'v_mov_b32 v{v+k}, s{70+2*k}')
    a('s_mov_b64 exec, 1')
    for k in range(0, n, 4): a(f'buffer_store_dwordx4 {vr(v+k,4)}, v{vZ}, {WS}, s6 offen offset:{4*k}')
    a('s_mov_b64 exec, -1')

def c(a, cfg):
    tm = cfg.get('c_time', 0)
    def T(slot):
        if tm: a(f's_memtime s[{70+2*slot}:{71+2*slot}]')
    a('L_c:')
    a(f'''v_lshlrev_b32 v4, 2, v0
    v_lshlrev_b32 v{vL16}, 4, v0
    v_mov_b32 v{vZ}, 0
    v_mov_b32 v{vF}, {L_F}
    s_lshl_b32 s6, s{sR}, 8
    s_add_u32 s6, s6, {ST2:#x}
    s_add_u32 s7, s6, 0x2000
    buffer_store_dword v{vZ}, v4, {WS}, s6 offen sc1
    buffer_store_dword v{vZ}, v4, {WS}, s7 offen sc1
    s_lshl_b32 s6, s{sR}, 3
    s_add_u32 s6, s6, {FX3:#x}
    s_mov_b64 exec, 3
    buffer_store_dword v{vZ}, v4, {WS}, s6 offen sc1
    s_mov_b64 exec, -1''')
    signal_done(a, 'vmcnt(0)', 6)
    a(f'''v_bfe_u32 v5, v{vL16}, 5, 4
    v_mul_u32_u24 v5, {UROW}, v5
    v_and_b32 v6, 16, v{vL16}
    v_add3_u32 v5, v5, v6, v{vZ}''')
    for r in range(8, 12): a(f'v_mov_b32 v{r}, 0')
    a(f'ds_write_b128 v5, v[8:11] offset:{L_U - 65536}' .replace('v5, v[', 'v7, v[') if False else f'v_add_u32 v5, {L_U}, v5\nds_write_b128 v5, v[8:11]\nds_write_b128 v{vF}, v[8:11]')
    for r in range(256): a(f'v_accvgpr_write_b32 a{r}, 0')
    wait_done(a, 8, 9, 40)
    a(f'''v_and_b32 v4, 60, v4
    s_lshl_b32 s6, s{sR}, 6
    s_add_u32 s{sA}, s6, {FX1:#x}
    s_mov_b32 s{sNeed}, 1''')
    poll_ge(a, 4, sA, sNeed, 8, 41, 1)
    a(f's_mul_i32 s{sA}, s{sR}, {16*KT_ROW}\ns_mul_i32 s{sB}, s{sW}, {18*1024}\ns_add_u32 s{sA}, s{sA}, s{sB}\ns_add_u32 s{sA}, s{sA}, {KT:#x}')
    for i in range(18):
        if i % 4 == 0: a(f's_add_u32 m0, s{sB}, {L_K + i*1024}\ns_add_u32 s6, s{sA}, {i*1024}')
        a(f'buffer_load_dwordx4 v{vL16}, {WS}, s6 offen offset:{(i%4)*1024} lds')
    a(f'''s_mov_b32 s{sS}, 0
    s_waitcnt vmcnt(0) lgkmcnt(0)
    s_barrier
    s_cmp_ge_u32 s{sW}, 2
    s_cbranch_scc1 L_c_res''')
    vKa, vUa, vTw, vTr, vUr, vXr, vSt, vK0, vD, vV = 4, 5, 6, 7, 8, 9, 10, 11, 12, 13
    AF, BF, Y, UU, X2, t = 16, 48, 80, 84, 86, 88
    sM = 42
    srd(a, 16, P_DS, 1024)
    a(f'''v_bfe_u32 v16, v{vL16}, 4, 4
    v_lshrrev_b32 v17, 8, v{vL16}
    v_lshrrev_b32 v18, 7, v{vL16}
    s_lshl_b32 s6, s{sR}, 5
    s_lshl_b32 s7, s{sW}, 4
    s_add_u32 s6, s6, s7
    v_lshlrev_b32 v19, 1, v18
    buffer_load_ushort v{vD}, v19, s[16:19], s6 offen
    s_mul_i32 s6, s{sW}, {8*KT_ROW}
    v_mul_u32_u24 v19, {KT_ROW}, v18
    v_add_u32 v19, s6, v19
    ds_read_b32 v{vK0}, v19 offset:{L_K + 4576}
    s_add_u32 s6, s6, {L_K + 480}
    v_lshlrev_b32 v19, 5, v16
    v_sub_u32 v19, s6, v19
    v_lshl_add_u32 v{vKa}, v17, 4, v19
    s_mul_i32 s6, s{sW}, {8*UROW}
    s_add_u32 s6, s6, {L_U}
    v_lshlrev_b32 v19, 1, v16
    v_lshl_add_u32 v19, v17, 4, v19
    v_add_u32 v{vUa}, s6, v19
    v_mul_u32_u24 v19, {UROW}, v18
    v_bfe_u32 v20, v{vL16}, 1, 6
    v_add3_u32 v19, v19, v20, s6
    v_add_u32 v{vUr}, 32, v19
    s_lshl_b32 s6, s{sW}, 10
    s_add_u32 s6, s6, {L_TB}
    v_add_u32 v{vTr}, s6, v{vL16}
    v_and_b32 v19, 1, v16
    v_lshlrev_b32 v19, 6, v19
    v_lshl_add_u32 v19, v17, 4, v19
    v_add_u32 v{vTw}, s6, v19
    v_lshrrev_b32 v{vSt}, 1, v{vL16}
    s_lshl_b32 s6, s{sW}, 9
    s_add_u32 s{sB}, s6, {L_X2}
    s_lshl_b32 s7, s{sR}, 10
    s_add_u32 s6, s6, s7
    s_add_u32 s{sST}, s6, {XT[1]:#x}
    s_lshl_b32 s6, s{sR}, 3
    s_lshl_b32 s7, s{sW}, 2
    s_add_u32 s6, s6, s7
    s_add_u32 s{sFOP}, s6, {FX3:#x}
    v_add_u32 v14, s7, v{vF}
    s_waitcnt vmcnt(0) lgkmcnt(0)
    v_lshlrev_b32 v{vD}, 16, v{vD}''')
    UA, RW, vSh = 104, 112, 15
    a(f'v_and_b32 v{vSh}, 2, v{vUa}\nv_and_b32 v{vUa}, -4, v{vUa}')
    for cl in range(8): a(f'v_add_u32 v{UA+cl}, {cl*UROW}, v{vUa}')
    def kb(i, cl, T_): return f'ds_read_b128 {vr(BF+4*(i%8),4)}, v{vKa} offset:{cl*KT_ROW + 512*(7-T_)}'
    def mf(i, cl, T_):
        acc = ar(32*cl + 4*T_, 4)
        return f'v_mfma_f32_16x16x32_bf16 {acc}, {vr(AF+4*cl,4)}, {vr(BF+4*(i%8),4)}, {acc}'
    for T0 in range(8):
        Lp = f'L_c_conv{T0}'
        a(f'''{Lp}:
        s_add_u32 s{sNeed}, s{sS}, 1
        s_and_b32 s6, s{sS}, 7
        s_lshl_b32 s7, s6, 10
        s_add_u32 s7, s7, s{sB}
        v_add_u32 v{vXr}, s7, v{vSt}
        s_lshl_b32 s6, s6, 1
        s_lshl_b32 s{sM}, 0x30003, s6
        v_mov_b32 v{vV}, s{sNeed}''')
        for cl in range(8): a(kb(cl, cl, T0))
        lds_wait(a, 0, 1, sNeed, t, 42)
        T(0)
        rest = [(cl, T_) for T_ in range(T0+1, 8) for cl in range(8)]
        qd = []
        def ds(x, tag): a(x); qd.append(tag)
        def need(tag):
            last = max([k for k, x in enumerate(qd) if x == tag], default=-1)
            if last >= 0:
                a(f's_waitcnt lgkmcnt({len(qd)-1-last})'); del qd[:last+1]
        def ur(cl):
            r = RW + 6*(cl % 4)
            ds(f'ds_read2_b32 {vr(r,2)}, v{UA+cl} offset0:0 offset1:1', f'u{cl}')
            ds(f'ds_read2_b32 {vr(r+2,2)}, v{UA+cl} offset0:2 offset1:3', f'u{cl}')
            ds(f'ds_read_b32 v{r+4}, v{UA+cl} offset:16', f'u{cl}')
        for cl in range(4): ur(cl)
        for cl in range(8):
            need(f'u{cl}')
            r = RW + 6*(cl % 4)
            for d in range(4): a(f'v_alignbyte_b32 v{AF+4*cl+d}, v{r+d+1}, v{r+d}, v{vSh}')
            if cl < 4: ur(cl + 4)
            if cl == 4: ds(f'ds_read_b64 {vr(UU,2)}, v{vUr}', 'x'); ds(f'ds_read_b64 {vr(X2,2)}, v{vXr}', 'x')
            if cl > 0:
                a(mf(cl-1, cl-1, T0))
        a(mf(7, 7, T0))
        need('x')
        for cl in range(min(8, len(rest))): a(kb(cl, *rest[cl]))
        a(f's_mov_b32 exec_lo, s{sM}\ns_mov_b32 exec_hi, s{sM}')
        for cl in range(8): a(f'ds_write_b128 v{vTw}, {ar(32*cl+4*T0,4)} offset:{cl*128}')
        a(f's_mov_b64 exec, -1\nds_read_b128 {vr(Y,4)}, v{vTr}\nds_write_b32 v14, v{vV} offset:8')
        U4, D4, X4 = t, t+4, t+8
        for h in range(2): unpack(a, U4+2*h, U4+2*h+1, UU+h)
        for h in range(2): unpack(a, X4+2*h, X4+2*h+1, X2+h)
        for r in range(4): a(f'v_mul_f32 v{D4+r}, v{U4+r}, v{vD}')
        for h in range(2): a(f'v_cvt_pk_bf16_f32 v{UU+h}, v{D4+2*h}, v{D4+2*h+1}')
        for h in range(2): unpack(a, D4+2*h, D4+2*h+1, UU+h)
        a('s_waitcnt lgkmcnt(1)')
        for r in range(4): a(f'v_fmac_f32 v{Y+r}, v{U4+r}, v{vK0}')
        def rnd(R):
            for h in range(2): a(f'v_cvt_pk_bf16_f32 v{UU+h}, v{R+2*h}, v{R+2*h+1}')
        rnd(Y)
        for add in (D4, X4):
            for h in range(2): unpack(a, Y+2*h, Y+2*h+1, UU+h)
            for r in range(4): a(f'v_add_f32 v{Y+r}, v{Y+r}, v{add+r}')
            rnd(Y)
        a(f'buffer_store_dwordx2 {vr(UU,2)}, v{vSt}, {WS}, s{sST} offen sc1')
        T(1)
        for i, (cl, T_) in enumerate(rest):
            if i >= 8: a(f's_waitcnt lgkmcnt({min(7, len(rest)-1-i)})')
            a(mf(i, cl, T_))
            if i + 8 < len(rest): a(kb(i, *rest[i+8]))
        T(2)
        for cl in range(8): a(f'v_add_u32 v{UA+cl}, 64, v{UA+cl}')
        a(f'''v_add_u32 v{vKa}, 64, v{vKa}
        v_add_u32 v{vUr}, 64, v{vUr}
        s_add_u32 s{sST}, s{sST}, 0x8000
        s_waitcnt vmcnt(0)
        s_mov_b64 exec, 1
        buffer_store_dword v{vV}, v{vZ}, {WS}, s{sFOP} offen sc1
        s_mov_b64 exec, -1''')
        T(3)
        if tm: tdump(a, 4, 100)
        a(f's_add_u32 s{sS}, s{sS}, 1\ns_and_b32 s6, s{sS}, 7\ns_cbranch_scc1 {Lp}')
    a('s_waitcnt vmcnt(0)\ns_endpgm')
    vRa, vFa, vSa, vUw, vXw, vO = 4, 5, 6, 7, 8, 9
    PT, RS_, X_, XP, S1, G = 16, 32, 40, 48, 52, 64
    a('L_c_res:')
    srd(a, 16, P_OUT, 2048*1024)
    a(f'''s_and_b32 s6, s{sW}, 1
    s_mul_i32 s{sRes0}, s6, {XT[1]-XT[0]:#x}
    s_mul_i32 s{sOP0}, s6, {OP[1]-OP[0]:#x}
    s_lshl_b32 s{sFOP}, s6, 11
    s_lshl_b32 s7, s{sR}, 10
    s_add_u32 s{sRes0}, s{sRes0}, s7
    s_add_u32 s{sRes0}, s{sRes0}, {XT[0]:#x}
    s_add_u32 s{sOP0}, s{sOP0}, s7
    s_add_u32 s{sOP0}, s{sOP0}, {OP[0]:#x}
    s_lshr_b32 s6, s{sR}, 3
    s_lshl_b32 s6, s6, 7
    s_add_u32 s{sFOP}, s{sFOP}, s6
    s_and_b32 s6, s{sR}, 6
    s_lshl_b32 s6, s6, 1
    s_add_u32 s{sFOP}, s{sFOP}, s6
    s_add_u32 s{sFOP}, s{sFOP}, {FOP:#x}
    s_lshl_b32 s{sO}, s{sR}, 5
    v_bfe_u32 v16, v{vL16}, 4, 5
    v_lshrrev_b32 v17, 9, v{vL16}
    v_lshlrev_b32 v18, 1, v16
    v_lshl_or_b32 v{vRa}, v17, 8, v18
    v_add_u32 v{vXw}, {L_X2}, v{vRa}
    v_mul_u32_u24 v19, {4*UROW}, v17
    v_add_u32 v19, v19, v18
    v_add_u32 v{vUw}, {L_U + 32}, v19
    v_bfe_u32 v19, v{vL16}, 4, 2
    v_lshlrev_b32 v{vFa}, 9, v19
    v_lshrrev_b32 v{vSa}, 1, v{vL16}
    v_lshlrev_b32 v19, 10, v16
    v_lshl_or_b32 v{vO}, v17, 3, v19
    L_c_rloop:
    s_add_u32 s{sNeed}, s{sS}, 1''')
    poll_ge(a, vFa, sFOP, sNeed, PT, 43, 1)
    T(0)
    for q in range(4): a(f's_add_u32 s6, s{sOP0}, {q*32768}\nbuffer_load_dwordx4 {vr(PT+4*q,4)}, v{vL16}, {WS}, s6 offen')
    for v in range(8): a(f'buffer_load_ushort v{RS_+v}, v{vRa}, {WS}, s{sRes0} offen offset:{(8*(v//4) + v % 4)*64}')
    a(f's_add_u32 s{sOP0}, s{sOP0}, 0x20000\ns_add_u32 s{sRes0}, s{sRes0}, 0x8000')
    for q in range(4):
        a(f's_waitcnt vmcnt({11-q})')
        for h in range(4):
            if q == 0: unpack(a, X_+2*h, X_+2*h+1, PT+h)
            else:
                unpack(a, S1, S1+1, PT+4*q+h)
                a(f'v_add_f32 v{X_+2*h}, v{X_+2*h}, v{S1}\nv_add_f32 v{X_+2*h+1}, v{X_+2*h+1}, v{S1+1}')
    for h in range(4): a(f'v_cvt_pk_bf16_f32 v{XP+h}, v{X_+2*h}, v{X_+2*h+1}')
    for h in range(4): unpack(a, X_+2*h, X_+2*h+1, XP+h)
    a('s_waitcnt vmcnt(0)')
    for v in range(8): a(f'v_lshlrev_b32 v{RS_+v}, 16, v{RS_+v}')
    for v in range(8): a(f'v_add_f32 v{X_+v}, v{X_+v}, v{RS_+v}')
    for h in range(4): a(f'v_cvt_pk_bf16_f32 v{XP+h}, v{X_+2*h}, v{X_+2*h+1}')
    T(1)
    a(f'''s_cmp_eq_u32 s{sW}, 2
    s_cbranch_scc1 L_c_ln
    buffer_store_dwordx2 {vr(XP,2)}, v{vO}, s[16:19], s{sO} offen
    buffer_store_dwordx2 {vr(XP+2,2)}, v{vO}, s[16:19], s{sO} offen offset:16
    s_add_u32 s{sO}, s{sO}, 0x8000
    s_branch L_c_rnext
    L_c_ln:''')
    for h in range(4): unpack(a, X_+2*h, X_+2*h+1, XP+h)
    a(f'v_add_f32 v{S1}, v{X_}, v{X_+1}\nv_mul_f32 v{S1+1}, v{X_}, v{X_}\nv_fmac_f32 v{S1+1}, v{X_+1}, v{X_+1}')
    for v in range(2, 8): a(f'v_add_f32 v{S1}, v{S1}, v{X_+v}\nv_fmac_f32 v{S1+1}, v{X_+v}, v{X_+v}')
    def halves(): a(f'''v_mov_b32 v{S1+2}, v{S1}
    v_mov_b32 v{S1+3}, v{S1+1}
    v_permlane32_swap_b32 v{S1}, v{S1+2}
    v_permlane32_swap_b32 v{S1+1}, v{S1+3}
    v_add_f32 v{S1}, v{S1}, v{S1+2}
    v_add_f32 v{S1+1}, v{S1+1}, v{S1+3}''')
    a(f'''s_lshr_b32 s6, s{sS}, 1
    s_andn2_b32 s{sTag}, 1, s6
    s_and_b32 s6, s{sS}, 1
    s_lshl_b32 s6, s6, 13
    s_add_u32 s{sA}, s6, {ST2:#x}
    s_add_u32 s{sB}, s{sA}, 4096
    s_lshl_b32 s6, s{sR}, 8
    s_add_u32 s6, s6, s{sA}''')
    halves()
    a(f'''v_bfi_b32 v{S1+1}, 1, s{sTag}, v{S1+1}
    s_mov_b32 exec_hi, 0
    buffer_store_dwordx2 {vr(S1,2)}, v{vSa}, {WS}, s6 offen
    s_mov_b32 exec_hi, -1''')
    def gl():
        for i in range(16): a(f'buffer_load_dwordx2 {vr(G+2*i,2)}, v{vSa}, {WS}, s{sA if i < 8 else sB} offen offset:{(i%8)*512} sc1')
    gl()
    a(f's_sub_u32 s{sNeed}, s{sS}, 7')
    lds_wait(a, 8, 2, sNeed, S1, 44)
    a(f's_and_b32 s6, s{sS}, 7\ns_lshl_b32 s6, s6, 10\nv_add_u32 v{S1}, s6, v{vXw}')
    def wr16(addr, pitch):
        for v in range(8):
            a(f'ds_write_b16{"_d16_hi" if v % 2 else ""} v{addr}, v{XP+v//2} offset:{(8*(v//4) + v % 4)*pitch}')
    wr16(S1, 64)
    a('s_mov_b32 s7, 0\nL_c_g:\ns_waitcnt vmcnt(0)')
    for i in range(8): a(f'v_bitop3_b32 v{PT+i}, v{G+4*i+1}, v{G+4*i+3}, s{sTag} bitop3:0x7e')
    a(f'''v_or3_b32 v{PT}, v{PT}, v{PT+1}, v{PT+2}
    v_or3_b32 v{PT+3}, v{PT+3}, v{PT+4}, v{PT+5}
    v_or3_b32 v{PT}, v{PT}, v{PT+6}, v{PT+7}
    v_bitop3_b32 v{PT}, v{PT}, v{PT+3}, 1 bitop3:0xa8
    v_cmp_ne_u32 vcc, 0, v{PT}
    s_cbranch_vccz L_c_gok''')
    gl()
    timeout_fix(a, 7, 45, 'L_c_g')
    a('L_c_gok:')
    T(2)
    n = 16
    while n > 1:
        n //= 2
        for i in range(n):
            d = S1 if n == 1 else G + 2*i
            a(f'v_add_f32 v{d}, v{G+2*i}, v{G+2*(i+n)}\nv_add_f32 v{d+1}, v{G+2*i+1}, v{G+2*(i+n)+1}')
    halves()
    ln_final(a, S1, S1+1, S1+2)
    for v in range(8): a(f'v_sub_f32 v{X_+v}, v{X_+v}, v{S1}')
    for h in range(4): a(f'v_cvt_pk_bf16_f32 v{XP+h}, v{X_+2*h}, v{X_+2*h+1}')
    for h in range(4): unpack(a, X_+2*h, X_+2*h+1, XP+h)
    for v in range(8): a(f'v_mul_f32 v{X_+v}, v{X_+v}, v{S1+1}')
    for h in range(4): a(f'v_cvt_pk_bf16_f32 v{XP+h}, v{X_+2*h}, v{X_+2*h+1}')
    a(f's_add_u32 s6, s{sS}, 1\nv_mov_b32 v{S1}, s6')
    wr16(vUw, UROW)
    a(f'ds_write_b32 v{vF}, v{S1}\nv_add_u32 v{vUw}, 64, v{vUw}')
    T(3)
    a('L_c_rnext:')
    if tm: tdump(a, 4, 100)
    a(f'''s_add_u32 s{sS}, s{sS}, 1
    s_cmp_lt_u32 s{sS}, 64
    s_cbranch_scc1 L_c_rloop
    buffer_wbl2 sc1
    s_waitcnt vmcnt(0)
    s_endpgm''')
```

```python
from asm import *
from layout import *
NAME = 'interleave_layers__ssm_conv_s4d__memory_aug_recurrent_mem_tr__prompt_kernel'
sW, sX, sR = 3, 4, 5
WS, DBG = 's[8:11]', 's[12:15]'
KA = 64
P_U, P_LA, P_AI, P_CR, P_CI, P_LDT, P_DS, P_BX, P_M0, P_WQ, P_WK, P_WV, P_WO, P_SL, P_OUT, P_DBG, P_WS = [KA + 2*i for i in range(17)]
SPIN = 1 << 17

def srd(a, s, ptr, nbytes):
    a(f's_mov_b32 s{s}, s{ptr}\ns_mov_b32 s{s+1}, s{ptr+1}\ns_mov_b32 s{s+2}, {nbytes:#x}\ns_mov_b32 s{s+3}, 0x20000')

def spin_check(a, cnt, code, retry):
    a(f'''s_add_u32 s{cnt}, s{cnt}, 1
    s_cmp_lt_u32 s{cnt}, {SPIN}
    s_cbranch_scc1 {retry}
    s_mov_b32 s6, {code}
    s_branch L_err''')

def bf16r(a, dst, src):
    a(f'v_cvt_pk_bf16_f32 v{dst}, v{src}, v{src}\nv_and_b32 v{dst}, 0xffff0000, v{dst}')

def ln_final(a, s1, s2, t):
    a(f'''v_mul_f32 v{s1}, 0x3b000000, v{s1}
    v_mul_f32 v{t}, v{s1}, v{s1}
    v_mul_f32 v{s2}, 0x3b000000, v{s2}
    v_sub_f32 v{s2}, v{s2}, v{t}
    v_max_f32 v{s2}, 0, v{s2}''')
    bf16r(a, s2, s2)
    a(f'v_add_f32 v{s2}, 0x3727c5ac, v{s2}')
    bf16r(a, s2, s2)
    a(f'v_sqrt_f32 v{s2}, v{s2}')
    bf16r(a, s1, s1)
    bf16r(a, s2, s2)
    a(f'v_rcp_f32 v{s2}, v{s2}')

def signal_done(a, wait='vmcnt(0)', t=2):
    L = a.lab('sd')
    a(f'''s_waitcnt {wait}
    s_barrier
    s_cmp_lg_u32 s{sW}, 0
    s_cbranch_scc1 {L}
    s_mov_b64 exec, 1
    v_mov_b32 v{t}, {D_DONE*4}
    v_mov_b32 v{t+1}, 1
    buffer_atomic_add v{t+1}, v{t}, {DBG}, 0 offen sc1
    s_mov_b64 exec, -1
    {L}:''')

def role_done(a, cfg, n):
    L = a.lab('rdn')
    if cfg.get('integ'): a(f's_lshr_b32 s6, 0x72, s{sX}\ns_bitcmp1_b32 s6, 0\ns_cbranch_scc1 {L}')
    signal_done(a, f'vmcnt({n})', 18)
    a(f'{L}:')

def wait_done(a, t0, t1, code, nv=0):
    L = a.lab('wd'); Lo = a.lab('wdo')
    a(f'''s_mov_b32 s7, 0
    v_mov_b32 v{t0}, {D_DONE*4}
    {L}:
    buffer_load_dword v{t1}, v{t0}, {DBG}, 0 offen sc1
    s_waitcnt vmcnt(0)
    v_cmp_ne_u32 vcc, 0x100, v{t1}
    s_cbranch_vccz {Lo}''')
    spin_check(a, 7, code, L)
    a(f'{Lo}:')

def poll_ge(a, vaddr, soff, need, t, code, n=1, imm=0):
    L = a.lab('pl'); Lo = a.lab('plo')
    op = {1: 'dword', 2: 'dwordx2', 4: 'dwordx4'}[n]
    a(f'''s_mov_b32 s7, 0
    {L}:
    buffer_load_{op} {vr(t, n)}, v{vaddr}, {WS}, s{soff} offen offset:{imm} sc1
    s_waitcnt vmcnt(0)''')
    if n == 2: a(f'v_min_u32 v{t}, v{t}, v{t+1}')
    if n == 4: a(f'v_min_u32 v{t}, v{t}, v{t+1}\nv_min3_u32 v{t}, v{t}, v{t+2}, v{t+3}')
    a(f'v_cmp_gt_u32 vcc, s{need}, v{t}\ns_cbranch_vccz {Lo}')
    spin_check(a, 7, code, L)
    a(f'{Lo}:')

def stamp(a, cfg, slot, tv=None):
    pass

def prologue(a, cfg):
    a(f'''s_cmp_ge_u32 s2, 256
    s_cbranch_scc1 L_end
    s_load_dwordx16 s[64:79], s[0:1], 0
    s_load_dwordx16 s[80:95], s[0:1], 64
    s_load_dwordx2 s[96:97], s[0:1], 128
    s_getreg_b32 s{sX}, hwreg(HW_REG_XCC_ID,0,4)
    v_lshrrev_b32 v1, 6, v0
    v_and_b32 v0, 63, v0
    s_and_b32 s{sX}, s{sX}, 7
    v_readfirstlane_b32 s{sW}, v1
    s_waitcnt lgkmcnt(0)''')
    srd(a, 12, P_DBG, 256); srd(a, 8, P_WS, 0x10000000); srd(a, 16, P_U, 2048*1024)
    if cfg.get('memtime'): a('s_memrealtime s[98:99]')
    Lt = a.lab('tk')
    a(f'''s_cmp_lg_u32 s{sW}, 0
    s_cbranch_scc1 {Lt}
    s_lshl_b32 s6, s{sX}, 2
    s_mov_b64 exec, 1
    v_mov_b32 v2, s6
    v_mov_b32 v3, 1
    buffer_atomic_add v3, v2, {DBG}, 0 offen sc0 sc1
    s_mov_b64 exec, -1
    {Lt}:''')
    a(f'''s_lshl_b32 s6, s2, 3
    s_lshl_b32 s7, s{sW}, 1
    s_add_u32 s32, s6, s7
    s_lshl_b32 s6, s32, 10
    v_lshlrev_b32 v4, 5, v0
    buffer_load_dwordx4 v[40:43], v4, s[16:19], s6 offen
    buffer_load_dwordx4 v[44:47], v4, s[16:19], s6 offen offset:16''')
    Lr = a.lab('rl'); Lok = a.lab('rok'); Lw = a.lab('row'); Lw2 = a.lab('row2')
    a(f'''s_cmp_lg_u32 s{sW}, 0
    s_cbranch_scc1 {Lr}
    s_waitcnt vmcnt(2)
    v_readfirstlane_b32 s{sR}, v3
    s_cmp_lt_u32 s{sR}, 32
    s_cbranch_scc1 {Lok}''')
    a(f'''s_mov_b64 exec, 1
    v_mov_b32 v2, {D_OVF*4}
    v_mov_b32 v3, 1
    buffer_atomic_add v3, v2, {DBG}, 0 offen sc0 sc1
    s_waitcnt vmcnt(0)
    v_readfirstlane_b32 s33, v3
    s_mov_b64 exec, -1
    s_mov_b32 s7, 0
    v_lshlrev_b32 v2, 2, v0
    {Lw}:
    buffer_load_dword v3, v2, {DBG}, 0 offen sc1
    s_waitcnt vmcnt(0)
    s_mov_b32 s34, 0''')
    for i in range(8): a(f'v_readlane_b32 s{40+i}, v3, {i}')
    for i in range(8): a(f's_add_u32 s34, s34, s{40+i}')
    a(f's_cmp_eq_u32 s34, 256\ns_cbranch_scc1 {Lw2}')
    spin_check(a, 7, 1, Lw)
    a(f'{Lw2}:')
    for i in range(8):
        Ln = a.lab('ovn')
        a(f'''s_min_u32 s{sR}, s{40+i}, 32
        s_sub_u32 s35, 32, s{sR}
        s_cmp_ge_u32 s33, s35
        s_cbranch_scc1 {Ln}
        s_add_u32 s{sR}, s{sR}, s33
        s_mov_b32 s{sX}, {i}
        s_branch {Lok}
        {Ln}:
        s_sub_u32 s33, s33, s35''')
    a(f'''s_mov_b32 s6, 2
    s_branch L_err
    {Lok}:
    s_lshl_b32 s6, s{sX}, 5
    s_add_u32 s6, s6, s{sR}
    v_mov_b32 v2, 0
    v_mov_b32 v3, s6
    ds_write_b32 v2, v3
    {Lr}:
    s_waitcnt vmcnt(0)
    v_mov_b32 v5, 0
    v_mov_b32 v6, 0
    v_mov_b32 v7, 0x3f803f80''')
    for r in range(40, 48): a(f'v_dot2c_f32_bf16 v5, v{r}, v7\nv_dot2c_f32_bf16 v6, v{r}, v{r}')
    for m in ('quad_perm:[1,0,3,2]', 'quad_perm:[2,3,0,1]', 'row_half_mirror', 'row_mirror'):
        a(f'v_add_f32_dpp v5, v5, v5 {m} row_mask:0xf bank_mask:0xf\nv_add_f32_dpp v6, v6, v6 {m} row_mask:0xf bank_mask:0xf')
    a('''v_mov_b32 v8, v5
    v_mov_b32 v9, v6
    v_permlane16_swap_b32 v5, v8
    v_permlane16_swap_b32 v6, v9
    v_add_f32 v8, v5, v8
    v_add_f32 v9, v6, v9''')
    ln_final(a, 8, 9, 10)
    X, U = 16, 32
    for k in range(8):
        a(f'v_lshlrev_b32 v{X+2*k}, 16, v{24+16+k}\nv_and_b32 v{X+2*k+1}, 0xffff0000, v{24+16+k}')
    for k in range(16): a(f'v_sub_f32 v{X+k}, v{X+k}, v8')
    for k in range(8): a(f'v_cvt_pk_bf16_f32 v{U+k}, v{X+2*k}, v{X+2*k+1}')
    for k in range(8): a(f'v_lshlrev_b32 v{X+2*k}, 16, v{U+k}\nv_and_b32 v{X+2*k+1}, 0xffff0000, v{U+k}')
    for k in range(16): a(f'v_mul_f32 v{X+k}, v{X+k}, v9')
    for k in range(8): a(f'v_cvt_pk_bf16_f32 v{U+k}, v{X+2*k}, v{X+2*k+1}')
    a(f"""s_mov_b32 s6, 0x05040100
    s_mov_b32 s7, 0x07060302
    v_and_b32 v4, 31, v0
    v_mul_u32_u24 v4, 528, v4
    v_lshrrev_b32 v5, 5, v0
    v_lshl_add_u32 v4, v5, 8, v4
    s_lshl_b32 s34, s{sW}, 2
    s_add_u32 s34, s34, 64
    v_add_u32 v4, s34, v4""")
    for part in range(2):
        b = U + 8*part
        for k in range(4): a(f'v_permlane32_swap_b32 v{b+k}, v{b+k+4}')
        for k in range(4):
            for h in range(2):
                e = 2*k + h
                a(f'v_perm_b32 v{X+8*part+e}, v{b+k+4}, v{b+k}, s{6+h}')
                a(f'ds_write_b32 v4, v{X+8*part+e} offset:{(e//4)*128 + (e % 4)*16 + 64*part}')
    a(f"""v_lshrrev_b32 v4, 5, v0
    s_lshl_b32 s6, s{sW}, 1
    v_add_u32 v4, s6, v4
    v_mul_u32_u24 v4, 528, v4
    v_and_b32 v5, 31, v0
    v_lshl_add_u32 v4, v5, 4, v4
    v_lshrrev_b32 v5, 3, v0
    v_lshlrev_b32 v5, 15, v5
    v_and_b32 v6, 7, v0
    v_lshl_or_b32 v5, v6, 4, v5
    s_lshl_b32 s6, s{sW}, 18
    s_lshl_b32 s7, s2, 7
    s_add_u32 s6, s6, s7
    s_add_u32 s6, s6, {UX:#x}
    s_waitcnt lgkmcnt(0)
    s_barrier""")
    for k in range(4): a(f'ds_read_b128 {vr(X+4*k,4)}, v4 offset:{64 + k*8*528}')
    for k in range(4): a(f's_waitcnt lgkmcnt({3-k})\nbuffer_store_dwordx4 {vr(X+4*k,4)}, v5, {WS}, s6 offen sc1\ns_add_u32 s6, s6, {1 << 20}')
    a(f'''
    v_mov_b32 v2, 0
    ds_read_b32 v3, v2
    s_waitcnt lgkmcnt(0)
    v_readfirstlane_b32 s6, v3
    s_barrier
    s_lshr_b32 s{sX}, s6, 5
    s_and_b32 s{sX}, s{sX}, 7
    s_and_b32 s{sR}, s6, 31''')

def epilogue(a):
    a(f'''L_err:
    s_mov_b64 exec, 1
    s_lshl_b32 s7, s{sX}, 2
    s_add_u32 s7, s7, {D_ERR*4}
    v_mov_b32 v2, s7
    v_mov_b32 v3, s6
    buffer_store_dword v3, v2, {DBG}, 0 offen sc1
    s_waitcnt vmcnt(0)
    L_end:
    s_endpgm''')
```

```python
MB_ = 1 << 20
XT   = [0, 2*MB_]
KT   = 4*MB_
KT_ROW = 4608
ST1  = 7*MB_
ST2  = ST1 + 0x38000
MBUF = [ST1 + 0x8000, ST1 + 0xA000]
FLG  = ST1 + 0x10000
FX1  = FLG
FX3  = FLG + 0x800
FOP  = FLG + 0x1000
FKM  = FLG + 0x2000
FKV  = FLG + 0x4000
FO   = FLG + 0x8000
TIM  = FLG + 0x10000
PBUF = [ST1 + 0x40000, ST1 + 0x80000]
KVX  = [8*MB_, 40*MB_]
KVM  = [72*MB_, 88*MB_]
OI   = [104*MB_, 120*MB_]
OP   = [136*MB_, 144*MB_]
UX   = 176*MB_
D_TICK = [(x & 3)*16 + (x >> 2) for x in range(8)]; D_OVF = 8; D_DONE = [4, 20, 36, 52]; D_ERR = 40
```

```python
from common import *
from p import coop_weights, vL16
vRd, vFa, vZ, vFl, vV = 1, 2, 3, 4, 5
ACC, BF, PK = 16, 32, 48
sS, sLY, sKQ, sNQ, sOI0, sOP0, sFO0, sFOP, sFO, sNeed, sM0, sPend, sA, sB = range(32, 46)

def o(a, cfg):
    tm = cfg.get('o_time', 0)
    def T(slot):
        if tm: a(f's_mem{"real" if cfg.get("rt") else ""}time s[{70+2*slot}:{71+2*slot}]')
    a('L_o:')
    a(f'''s_lshr_b32 s{sLY}, s{sR}, 4
    s_bfe_u32 s{sKQ}, s{sR}, 0x20002
    s_and_b32 s{sNQ}, s{sR}, 3
    s_mul_i32 s{sOI0}, s{sLY}, {OI[1]-OI[0]:#x}
    s_add_u32 s{sOI0}, s{sOI0}, {OI[0]:#x}
    s_lshl_b32 s6, s{sKQ}, 3
    s_lshl_b32 s7, s{sW}, 1
    s_add_u32 s6, s6, s7
    s_lshl_b32 s7, s6, 13
    s_add_u32 s{sOI0}, s{sOI0}, s7
    s_lshl_b32 s6, s6, 7
    s_lshl_b32 s7, s{sLY}, 13
    s_add_u32 s6, s6, s7
    s_add_u32 s{sFO0}, s6, {FO:#x}
    s_mul_i32 s{sOP0}, s{sLY}, {OP[1]-OP[0]:#x}
    s_add_u32 s{sOP0}, s{sOP0}, {OP[0]:#x}
    s_lshl_b32 s6, s{sKQ}, 15
    s_add_u32 s{sOP0}, s{sOP0}, s6
    s_lshl_b32 s6, s{sNQ}, 13
    s_add_u32 s{sOP0}, s{sOP0}, s6
    s_lshl_b32 s6, s{sW}, 11
    s_add_u32 s{sOP0}, s{sOP0}, s6
    s_lshl_b32 s6, s{sR}, 7
    s_lshl_b32 s7, s{sW}, 2
    s_add_u32 s6, s6, s7
    s_add_u32 s{sFOP}, s6, {FOP:#x}
    s_lshl_b32 s{sM0}, s{sW}, 14
    v_mov_b32 v{vZ}, 0
    s_mov_b64 exec, 1
    buffer_store_dword v{vZ}, v{vZ}, {WS}, s{sFOP} offen sc1
    s_mov_b64 exec, -1''')
    if cfg.get('integ'): a('s_branch L_pro\nL_o2:')
    a(f'v_lshlrev_b32 v{vL16}, 4, v0')
    srd(a, 16, P_WO, 4*MB_)
    def goff(c): a(f's_lshl_b32 s61, s{sKQ}, 20\ns_lshl_b32 s62, s{sNQ}, 8\ns_add_u32 s61, s61, s62\ns_add_u32 s61, s61, {c << 17}')
    coop_weights(a, 8, lambda c, j: ar(32*c + 2*j, 2), lambda c: 16, goff,
                 lambda n: None if cfg.get('integ') else signal_done(a, f'vmcnt({n})', 18), 100, 104, 1024,
                 2, lambda j: 32*(j//4) + 8*((j//2) % 2) + 16*(j % 2))
    a(f'''v_mov_b32 v{vZ}, 0
    v_mov_b32 v{vRd}, v{vL16}
    v_bfe_u32 v{vFa}, v{vL16}, 6, 1
    v_lshlrev_b32 v{vFa}, 7, v{vFa}
    v_bfe_u32 v{vFl}, v{vL16}, 2, 4
    v_or_b32 v{vFa}, v{vFa}, v{vFl}''')
    mark(a, cfg, 2, ACC)
    wait_done(a, ACC, ACC+1, 30)
    a(f's_mov_b32 s{sS}, 0\ns_mov_b32 s{sNeed}, 1\ns_mov_b32 s{sFO}, s{sFO0}')
    def dmal():
        l = [f's_sub_u32 s6, s{sNeed}, 1\ns_lshl_b32 s6, s6, 18\ns_add_u32 s{sA}, s{sOI0}, s6']
        for q in range(4):
            for k in range(4):
                l.append((f's_add_u32 m0, s{sM0}, {q*4096}\ns_add_u32 s{sB}, s{sA}, {q*4096}\n' if k == 0 else '') +
                         f'buffer_load_dwordx4 v{vL16}, {WS}, s{sB} offen offset:{k*1024} lds')
        return l + [f's_xor_b32 s{sM0}, s{sM0}, 0x10000']
    def dma():
        for x in dmal(): a(x)
    def flag(): a(f's_mov_b64 exec, 1\nbuffer_store_dword v{vV}, v{vZ}, {WS}, s{sFOP} offen sc1\ns_mov_b64 exec, -1')
    a('L_o_wait:')
    poll_ge(a, vFa, sFO, sNeed, vFl, 31, 1)
    dma()
    a(f'''s_mov_b32 s{sPend}, 0
    s_waitcnt vmcnt(8)
    L_o_loop:
    s_barrier''')
    T(0)
    order = [8*h + k for h in (0, 2, 4, 6, 1, 3, 5, 7) for k in range(8)]
    def rd(i): a(f'ds_read_b128 {vr(BF+4*(i%4),4)}, v{vRd} offset:{order[i]*1024}')
    def half(lo):
        for i in range(lo, lo+3): rd(i)
        if lo == 0:
            a(f'''s_add_u32 s{sNeed}, s{sS}, 2
            s_xor_b32 s{sFO}, s{sFO}, 0x1000
            buffer_load_dword v{vFl}, v{vFa}, {WS}, s{sFO} offen sc1''')
        else:
            L = a.lab('op');
            a(f's_cmp_eq_u32 s{sPend}, 0\ns_cbranch_scc1 {L}'); flag(); a(f'{L}:')
            L = a.lab('on')
            a(f'''s_mov_b32 s{sPend}, 0
            s_cmp_eq_u32 s{sS}, 63
            s_cbranch_scc1 {L}
            v_cmp_gt_u32 vcc, s{sNeed}, v{vFl}
            s_cbranch_vccnz {L}
            s_mov_b32 s{sPend}, 1''')
            mm(lo, dmal())
            a(f's_branch L_o_h2\n{L}:')
        mm(lo, [])
    def mm(lo, extra):
        for i in range(lo, lo+32):
            a(f's_waitcnt lgkmcnt({min(2, lo+31-i)})')
            a(f'v_mfma_f32_32x32x16_bf16 {vr(ACC,16)}, {ar(4*order[i],4)}, {vr(BF+4*(i%4),4)}, {"0" if i == 0 else vr(ACC,16)}')
            if i + 3 < lo + 32: rd(i+3)
            if extra and (i % 2 == 0 or i - lo < 4): a(extra.pop(0))
        assert not extra
    half(0)
    T(1)
    a('s_waitcnt vmcnt(0)\ns_barrier')
    T(2)
    half(32)
    a('L_o_h2:')
    T(3)
    a(f'''s_lshl_b32 s6, s{sS}, 17
    s_add_u32 s{sA}, s{sOP0}, s6
    s_add_u32 s{sS}, s{sS}, 1
    v_xor_b32 v{vRd}, 0x10000, v{vRd}
    v_mov_b32 v{vV}, s{sS}''')
    for h in range(2):
        for r in range(4): a(f'v_cvt_pk_bf16_f32 v{PK+4*h+r}, v{ACC+8*h+2*r}, v{ACC+8*h+2*r+1}')
        a(f'buffer_store_dwordx4 {vr(PK+4*h,4)}, v{vL16}, {WS}, s{sA} offen offset:{h*1024} sc1')
    if tm:
        a(f'''s_waitcnt lgkmcnt(0)
        s_lshl_b32 s6, s{sX}, 5
        s_add_u32 s6, s6, s{sR}
        s_lshl_b32 s6, s6, 2
        s_add_u32 s6, s6, s{sW}
        s_lshl_b32 s6, s6, 6
        s_add_u32 s6, s6, s{sS}
        s_sub_u32 s6, s6, 1
        s_lshl_b32 s6, s6, 6
        s_add_u32 s6, s6, {160*MB_}''')
        for k in range(4): a(f'v_mov_b32 v{60+k}, s{70+2*k}')
        a(f's_mov_b64 exec, 1\nbuffer_store_dwordx4 v[60:63], v{vZ}, {WS}, s6 offen\ns_mov_b64 exec, -1')
    a(f'''s_cmp_eq_u32 s{sPend}, 0
    s_waitcnt vmcnt({3 if tm else 2})
    s_cbranch_scc0 L_o_loop
    s_waitcnt vmcnt(0)''')
    flag()
    a(f'''s_cmp_lt_u32 s{sS}, 64
    s_cbranch_scc1 L_o_wait
    s_waitcnt vmcnt(0)
    s_endpgm''')
```

```python
from common import *
L_X, L_PK, PKX, L_T, L_RS, L_SP = 0, 0x8000, 0x18000, 0xE000, 0xF200, 0xF400
GQ = 1088
vL16, vXr, vKx, vQx, vVx, vTw, vTr, vMv, vRs, vRw, vONE, vPM, vCS, vMN, vMK = 0, 1, 2, 3, 4, 5, 6, 7, 8, 9, 10, 12, 16, 20, 24
AQ, AK, AV, XF, ST, RR, vPw, vOs, vL4, vFX = 32, 48, 64, 80, 92, 96, 112, 113, 114, 115
KMD, vSr, vSp = 116, 14, 15
WV = 128
sI, sSeg, sC, sLY, sH, sRep = 32, 33, 34, 35, 36, 37
sXT0, sKV0, sKM0, sOI0, sFKV, sFO, sFX, sXT, sKV, sKM, sOI, sNeed, sTag, sVal, sPre, sM0 = range(38, 54)

def wreg(m, r, n): return ar(128*m + r, n) if m < 2 else vr(WV + r, n)

def coop_weights(a, nch, dst, srdof, goff, done_cb, vG, vR, rowb, hish=3, rowof=lambda j: 16*(j//2) + 4*(j % 2)):
    a(f'''v_lshrrev_b32 v{vR}, 4, v{vL16}
    v_lshrrev_b32 v{vG}, 8, v{vL16}
    v_lshlrev_b32 v{vR+1}, 2, v{vG}
    v_and_b32 v{vR}, 15, v{vR}
    v_xor_b32 v{vR}, v{vR}, v{vR+1}
    v_mul_u32_u24 v{vG}, {rowb}, v{vG}
    v_lshl_add_u32 v{vG}, v{vR}, 4, v{vG}''')
    a(f'''v_bfe_u32 v{vR}, v{vL16}, 6, 2
    v_lshlrev_b32 v{vR+1}, 2, v{vR}
    v_bfe_u32 v{vR+2}, v{vL16}, 8, 1
    v_lshlrev_b32 v{vR+2}, 1, v{vR+2}
    v_bfe_u32 v{vR+3}, v{vL16}, 5, 1
    v_or_b32 v{vR+2}, v{vR+2}, v{vR+3}
    s_lshl_b32 s6, s{sW}, 2
    v_or_b32 v{vR+2}, s6, v{vR+2}
    v_xor_b32 v{vR+2}, v{vR+2}, v{vR+1}
    v_lshlrev_b32 v{vR+2}, 4, v{vR+2}
    v_bfe_u32 v{vR+3}, v{vL16}, 4, 1
    v_lshl_or_b32 v{vR+2}, v{vR+3}, 3, v{vR+2}
    v_bfe_u32 v{vR+3}, v{vL16}, 9, 1
    v_lshl_or_b32 v{vR}, v{vR+3}, {hish}, v{vR}
    v_lshl_or_b32 v{vR}, v{vR}, 8, v{vR+2}
    v_add_u32 v{vR+1}, 0x10000, v{vR}
    s_lshl_b32 s60, s{sW}, 13
    s_mul_i32 s63, s{sW}, {32*rowb}''')
    def issue(c):
        goff(c)
        a('s_add_u32 s61, s61, s63')
        for i in range(8):
            a(f'''s_add_u32 m0, s60, {(c % 4)*32768 + i*1024}
            s_add_u32 s62, s61, {i*4*rowb}
            buffer_load_dwordx4 v{vG}, s[{srdof(c)}:{srdof(c)+3}], s62 offen lds''')
    for c in range(3): issue(c)
    done_cb(24)
    for c in range(nch):
        a(f's_waitcnt vmcnt({8*min(2, nch-1-c)})\ns_barrier')
        if c + 3 < nch: issue(c + 3)
        b = c % 4
        for j in range(16):
            a(f'ds_read_b64_tr_b16 {dst(c, j)}, v{vR + b//2} offset:{(b % 2)*32768 + rowof(j)*256}')
        a('s_waitcnt lgkmcnt(0)')
    a('s_barrier')

def p(a, cfg):
    ring = cfg.get('ring', 3); tm = cfg.get('p_time', 0)
    def T(slot):
        if tm: a(f's_memtime s[{70+2*slot}:{71+2*slot}]')
    a('L_p:')
    def sel(dst, pair): a(f's_mul_i32 s{dst}, s{sLY}, {pair[1]-pair[0]:#x}\ns_add_u32 s{dst}, s{dst}, {pair[0]:#x}')
    a(f'''s_sub_u32 s{sLY}, s{sX}, 2
    s_lshr_b32 s{sLY}, s{sLY}, 1
    s_and_b32 s6, s{sX}, 1
    s_lshl_b32 s6, s6, 4
    s_and_b32 s{sH}, s{sR}, 15
    s_add_u32 s{sH}, s{sH}, s6
    s_lshr_b32 s{sRep}, s{sR}, 4''')
    sel(sXT0, XT); sel(sKV0, KVX); sel(sKM0, KVM); sel(sOI0, OI); sel(sFX, (FX1, FX3))
    a(f'''s_lshl_b32 s6, s{sW}, 13
    s_add_u32 s{sXT0}, s{sXT0}, s6
    s_add_u32 s{sM0}, s6, {L_X}
    s_lshl_b32 s6, s{sH}, 14
    s_lshl_b32 s7, s{sW}, 11
    s_add_u32 s{sKV0}, s{sKV0}, s6
    s_add_u32 s{sKV0}, s{sKV0}, s7
    s_lshl_b32 s6, s{sH}, 12
    s_lshl_b32 s7, s{sW}, 10
    s_add_u32 s{sKM0}, s{sKM0}, s6
    s_add_u32 s{sKM0}, s{sKM0}, s7
    s_lshl_b32 s6, s{sH}, 13
    s_lshr_b32 s7, s{sW}, 1
    s_lshl_b32 s7, s7, 12
    s_add_u32 s{sOI0}, s{sOI0}, s6
    s_add_u32 s{sOI0}, s{sOI0}, s7
    s_lshl_b32 s6, s{sLY}, 13
    s_lshl_b32 s7, s{sRep}, 12
    s_add_u32 s6, s6, s7
    s_lshl_b32 s7, s{sH}, 7
    s_add_u32 s6, s6, s7
    s_lshl_b32 s7, s{sW}, 2
    s_add_u32 s6, s6, s7
    s_add_u32 s{sFKV}, s6, {FKV:#x}
    s_add_u32 s{sFO}, s6, {FO:#x}
    s_mov_b32 s{sC}, 0x3e0293ee
    v_mov_b32 v{vPM}, 0
    v_mov_b32 v{vPM+1}, 0
    s_mov_b64 exec, 1
    buffer_store_dword v{vPM}, v{vPM}, {WS}, s{sFKV} offen sc1
    buffer_store_dword v{vPM}, v{vPM}, {WS}, s{sFO} offen sc1
    s_mov_b64 exec, -1''')
    if cfg.get('integ'):
        a(f's_cmp_ge_u32 s{sX}, 4\ns_cbranch_scc1 L_pro\nL_p2:\nv_mov_b32 v{vPM}, 0\nv_mov_b32 v{vPM+1}, 0')
    a(f'v_lshlrev_b32 v{vL16}, 4, v0')
    srd(a, 16, P_WQ, 4*MB_); srd(a, 20, P_WK, 4*MB_); srd(a, 24, P_WV, 4*MB_)
    def goff(c): a(f's_lshl_b32 s61, s{sH}, 8\ns_add_u32 s61, s61, {(c % 4) << 20}')
    coop_weights(a, 12, lambda c, j: wreg(c//4, (c % 4)*32 + 2*j, 2), lambda c: 16 + 4*(c//4), goff,
                 lambda n: role_done(a, cfg, n), 100, 104, 8192)
    a(f'''v_bfe_u32 v16, v{vL16}, 4, 4
    v_lshrrev_b32 v17, 8, v{vL16}
    v_lshrrev_b32 v{vL4}, 2, v{vL16}
    v_bfe_u32 v18, v{vL16}, 6, 2
    v_lshrrev_b32 v19, 9, v{vL16}
    v_lshl_or_b32 v18, v19, 3, v18
    v_lshlrev_b32 v18, 6, v18
    v_and_b32 v20, 1, v17
    v_lshl_or_b32 v18, v20, 5, v18
    v_and_b32 v20, 3, v16
    v_lshl_or_b32 v{vXr}, v20, 3, v18
    v_and_b32 v18, 7, v16
    v_lshrrev_b32 v20, 3, v16
    v_lshl_or_b32 v18, v20, 4, v18
    v_lshlrev_b32 v18, 4, v18
    v_lshl_add_u32 v18, v17, 9, v18
    v_add_u32 v{vKx}, {(L_PK ^ PKX) + 8192}, v18
    s_and_b32 s6, s{sW}, 1
    s_lshl_b32 s6, s6, 8
    v_lshlrev_b32 v18, 4, v16
    v_lshl_or_b32 v18, v17, 9, v18
    v_add_u32 v{vOs}, s6, v18
    v_add_u32 v{vQx}, {L_PK ^ PKX}, v{vOs}
    s_lshr_b32 s7, s{sW}, 1
    s_lshl_b32 s6, s7, 12
    s_add_u32 s6, s6, {(L_PK ^ PKX) + 16384}
    v_add_u32 v{vVx}, s6, v18
    s_lshl_b32 s6, s{sW}, 11
    s_add_u32 s6, s6, {L_PK}
    v_add_u32 v{vPw}, s6, v{vL16}
    v_mul_u32_u24 v18, {GQ}, v17
    v_lshl_add_u32 v18, v16, 3, v18
    s_lshl_b32 s6, s{sW}, 8
    s_add_u32 s6, s6, {L_T}
    v_add_u32 v{vTw}, s6, v18
    s_lshl_b32 s6, s7, 9
    s_add_u32 s6, s6, {L_T}
    v_add_u32 v{vMv}, s6, v18
    v_and_b32 v18, 3, v16
    v_mul_u32_u24 v18, {GQ}, v18
    v_bfe_u32 v20, v{vL16}, 6, 3
    v_lshl_add_u32 v18, v20, 3, v18
    v_lshl_add_u32 v18, v19, 7, v18
    v_add_u32 v{vTr}, {L_T}, v18
    s_lshl_b32 s6, s{sW}, 7
    s_add_u32 s6, s6, {L_RS}
    v_lshlrev_b32 v18, 4, v19
    v_add_u32 v{vRs}, s6, v18
    v_and_b32 v18, 0x7c, v{vL4}
    v_add_u32 v{vRw}, s6, v18
    v_lshlrev_b32 v18, 1, v18
    v_add_u32 v{vSp}, {L_SP}, v18
    s_lshl_b32 s6, s{sW}, 13
    v_add_u32 v{vSr}, s6, v{vXr}
    v_mov_b32 v{vONE}, 0x3f803f80
    v_mov_b32 v{vONE+1}, 0x3f803f80''')
    a(f'''s_and_b32 s6, s{sW}, 1
    s_lshl_b32 s6, s6, 4
    v_add_u32 v16, s6, v16
    v_lshlrev_b32 v18, 4, v19
    v_and_b32 v20, 1, v17
    v_lshl_or_b32 v18, v20, 2, v18
    v_sub_u32 v16, v16, v18
    v_mov_b32 v17, 0xf149f2ca''')
    for T_ in range(2):
        for r in range(4): a(f'v_cmp_gt_i32 vcc, {8*T_+r}, v16\nv_cndmask_b32 v{vMK+4*T_+r}, 0, v17, vcc')
    for r in range(4): a(f'v_mov_b32 v{XF+r}, 0x3f803f80')
    for ks in range(32):
        for m in range(3):
            acc = AQ + 16*m
            a(f'v_mfma_f32_32x32x16_bf16 {vr(acc,16)}, {vr(XF,4)}, {wreg(m,4*ks,4)}, {"0" if ks == 0 else vr(acc,16)}')
    a(f'v_cmp_gt_u32 vcc, 512, v{vL16}')
    for m in range(3):
        acc = AQ + 16*m
        a(f'''v_cvt_pk_bf16_f32 v{acc+1}, v{acc}, v{acc}
        v_and_b32 v{acc+1}, 0xffff0000, v{acc+1}
        v_sub_f32 v{acc}, v{acc}, v{acc+1}
        v_cvt_pk_bf16_f32 v{acc}, v{acc}, v{acc+1}
        v_cndmask_b32 v{vCS+m}, 0, v{acc}, vcc''')
    a(f'v_mov_b32 v{vCS+3}, 0\nv_mov_b32 v{vMN+1}, 0\nv_mov_b32 v{vMN+2}, 0')
    wait_done(a, ST, ST+1, 20)
    a(f's_mov_b32 s{sI}, 0\ns_mov_b32 s{sSeg}, s{sRep}\ns_add_u32 s{sNeed}, s{sSeg}, 1')
    Ls = a.lab('p1')
    a(f's_cmp_lg_u32 s{sLY}, 0\ns_cbranch_scc1 {Ls}')
    poll_ge(a, vL16, sFX, sNeed, ST, 21, 4)
    poll_ge(a, vL16, sFX, sNeed, ST, 21, 4, 1024)
    a(f'{Ls}:')
    def xdma():
        a(f's_sub_u32 s6, s{sNeed}, 1\ns_lshl_b32 s6, s6, 15\ns_add_u32 s{sXT}, s{sXT0}, s6\ns_mov_b32 m0, s{sM0}\ns_add_u32 s6, s{sXT}, 4096')
        for k in range(4): a(f'buffer_load_dwordx4 v{vL16}, {WS}, s{sXT} offen offset:{k*1024} lds')
        a(f's_add_u32 m0, s{sM0}, 4096')
        for k in range(4): a(f'buffer_load_dwordx4 v{vL16}, {WS}, s6 offen offset:{k*1024} lds')
    a('L_p_xwait:')
    poll_ge(a, vL4, sFX, sNeed, ST, 22, 1)
    xdma()
    a('s_waitcnt vmcnt(0)\nL_p_loop:')
    a(f"""s_barrier
    s_and_b32 s6, s{sSeg}, {ring}
    s_lshl_b32 s6, s6, 19
    s_add_u32 s{sKV}, s{sKV0}, s6
    s_add_u32 s{sVal}, s{sSeg}, 1
    s_add_u32 s{sNeed}, s{sSeg}, 3
    s_lshl_b32 s7, s{sW}, 8""")
    T(0)
    qd = []
    def ds(x, tag): a(x); qd.append(tag)
    def need(tag):
        last = max([k for k, x in enumerate(qd) if x == tag], default=-1)
        if last >= 0:
            a(f's_waitcnt lgkmcnt({len(qd)-1-last})'); del qd[:last+1]
    def xr(ks):
        for h in range(2): ds(f'ds_read_b64_tr_b16 {vr(XF+4*(ks%3)+2*h,2)}, v{vXr} offset:{L_X + ks*1024 + h*256}', f'x{ks}')
    SF, U = RR, RR+8
    def sr_(k):
        for h in range(2): ds(f'ds_read_b64_tr_b16 {vr(SF+4*(k%2)+2*h,2)}, v{vSr} offset:{L_X + k*1024 + h*256}', f's{k}')
    xr(0); xr(1); sr_(0)
    a(f'v_mov_b32 v{ST}, 0\nv_mov_b32 v{ST+1}, 0\nv_add_u32 v{U+4}, s7, v{vSp}')
    fill = {ks: [] for ks in range(32)}
    for k in range(8):
        ops = []
        for r in range(4):
            f = SF + 4*(k % 2) + r; u = U + 2*(r % 2)
            ops += [f'v_lshlrev_b32 v{u}, 16, v{f}', f'v_and_b32 v{u+1}, 0xffff0000, v{f}', f'v_add_f32 v{ST}, v{ST}, v{u}', f'v_fmac_f32 v{ST+1}, v{u}, v{u}',
                    f'v_add_f32 v{ST}, v{ST}, v{u+1}', f'v_fmac_f32 v{ST+1}, v{u+1}, v{u+1}']
        fill[3*k].append(('need', f's{k}'))
        if k < 7: fill[3*k].append(('sr', k+1))
        for j in range(3): fill[3*k+j] += ops[8*j:8*j+8]
    fill[24] = [f'v_mov_b32 v{ST+2}, v{ST}', f'v_mov_b32 v{ST+3}, v{ST+1}', f'v_permlane32_swap_b32 v{ST}, v{ST+2}', f'v_permlane32_swap_b32 v{ST+1}, v{ST+3}',
                f'v_add_f32 v{ST}, v{ST}, v{ST+2}', f'v_add_f32 v{ST+1}, v{ST+1}, v{ST+3}', ('ds', f'ds_write_b64 v{U+4}, {vr(ST,2)}', 'w')]
    fill[25] = [('nop',), ('need', 'w'), 's_barrier'] + [('ds', f'ds_read_b64 {vr(SF+2*k,2)}, v{vSp} offset:{256*k}', 'r') for k in range(4)]
    b = Asm()
    b(f"""v_add_f32 v{ST}, v{SF}, v{SF+2}
    v_add_f32 v{ST+1}, v{SF+1}, v{SF+3}
    v_add_f32 v{ST+2}, v{SF+4}, v{SF+6}
    v_add_f32 v{ST+3}, v{SF+5}, v{SF+7}
    v_add_f32 v{ST}, v{ST}, v{ST+2}
    v_add_f32 v{ST+1}, v{ST+1}, v{ST+3}""")
    ln_final(b, ST, ST+1, ST+2)
    b(f"""v_xor_b32 v{ST}, 0x80000000, v{ST}
    v_lshrrev_b32 v{ST+2}, 16, v{ST}
    v_or_b32 v{vMN}, v{ST}, v{ST+2}
    v_or_b32 v{vMN+3}, v{ST}, v{ST+2}
    v_mov_b32 v{ST}, v{ST+1}""")
    ops = [('need', 'r')] + b.lines + [('ds', f'ds_write_b32 v{vRw}, v{ST+1}', 'w2')]
    for j in range(4): fill[27+j] = ops[8*j:8*j+8]
    assert len(ops) <= 32
    fill[31] = [('ds', f'ds_read_b128 {vr(RR+4*q,4)}, v{vRs} offset:{32*q}', 'rr') for q in range(4)]
    def F(lst):
        for x in lst:
            if isinstance(x, str): a(x)
            elif x[0] == 'need': need(x[1])
            elif x[0] == 'sr': sr_(x[1])
            elif x[0] == 'ds': ds(x[1], x[2])
    for ks in range(32):
        f = XF + 4*(ks % 3); c = lambda r: '0' if ks == 0 else vr(r, 16)
        d = fill[ks]
        need(f'x{ks}')
        a(f'v_mfma_f32_32x32x16_bf16 {vr(AK,16)}, {wreg(1,4*ks,4)}, {vr(f,4)}, {c(AK)}')
        if ks + 2 < 32: xr(ks+2)
        n1 = 1 if len(d) < 10 else 3
        F(d[:n1])
        a(f'v_mfma_f32_32x32x16_bf16 {vr(AV,16)}, {vr(f,4)}, {wreg(2,4*ks,4)}, {c(AV)}')
        F(d[n1:n1+4])
        a(f'v_mfma_f32_32x32x16_bf16 {vr(AQ,16)}, {wreg(0,4*ks,4)}, {vr(f,4)}, {c(AQ)}')
        F(d[n1+4:])
    T(1)
    a(f"""v_mfma_f32_32x32x8_bf16 {vr(AK,16)}, {vr(vCS,2)}, {vr(vMN+2,2)}, {vr(AK,16)}
    v_mfma_f32_32x32x8_bf16 {vr(AV,16)}, {vr(vMN,2)}, {vr(vCS+2,2)}, {vr(AV,16)}
    v_mfma_f32_32x32x8_bf16 {vr(AQ,16)}, {vr(vCS,2)}, {vr(vMN,2)}, {vr(AQ,16)}""")
    def fin(acc, sc, goff_, loff):
        for r in range(0, 16, 2):
            a(f'v_pk_mul_f32 {vr(acc+r,2)}, {vr(acc+r,2)}, {sc(r)}')
        for r in range(8): a(f'v_cvt_pk_bf16_f32 v{acc+r}, v{acc+2*r}, v{acc+2*r+1}')
        for h in range(2):
            if goff_ is not None: a(f'buffer_store_dwordx4 {vr(acc+4*h,4)}, v{vL16}, {WS}, s{goff_} offen offset:{h*1024} sc1')
            a(f'ds_write_b128 v{vPw}, {vr(acc+4*h,4)} offset:{loff + h*1024}')
    a(f's_add_u32 s7, s{sKV}, 0x2000')
    fin(AK, lambda r: vr(ST,2), sKV, 8192)
    a('s_waitcnt lgkmcnt(2)')
    fin(AV, lambda r: vr(RR+r,2), 7, 16384)
    a(f'buffer_load_dword v{vFX}, v{vL4}, {WS}, s{sFX} offen sc1')
    fin(AQ, lambda r: vr(ST,2), None, 0)
    a(f'v_mov_b32 v127, s{sVal}')
    T(2)
    a(f's_cmp_eq_u32 s{sI}, 0\ns_cbranch_scc1 L_p_first')
    a('L_p_att:')
    a(f'''s_sub_u32 s{sVal}, s{sSeg}, 2
    s_and_b32 s6, s{sVal}, {ring}
    s_lshl_b32 s6, s6, 17
    s_add_u32 s{sKM}, s{sKM0}, s6
    s_lshr_b32 s6, s{sVal}, 2
    s_andn2_b32 s{sTag}, 1, s6
    s_lshl_b32 s6, s{sVal}, 18
    s_add_u32 s{sOI}, s{sOI0}, s6
    s_add_u32 s{sVal}, s{sVal}, 1
    buffer_load_dwordx4 {vr(KMD,4)}, v{vL16}, {WS}, s{sKM} offen sc1''')
    KF, QF, VF, S_ = 32, 64, 80, 96
    MT, MV, O_, PX, m_, t_, TM = 32, 48, 56, 120, 124, 125, 126
    for ks in range(4):
        a(f'ds_read_b128 {vr(QF+4*ks,4)}, v{vQx} offset:{ks*2048}')
        for T_ in range(2): a(f'ds_read_b128 {vr(KF+16*T_+4*ks,4)}, v{vKx} offset:{ks*2048+T_*128}')
    for ks in range(4):
        a(f's_waitcnt lgkmcnt({9-3*ks})')
        for T_ in range(2):
            a(f'v_mfma_f32_16x16x32_bf16 {vr(S_+4*T_,4)}, {vr(KF+16*T_+4*ks,4)}, {vr(QF+4*ks,4)}, {vr(vMK+4*T_,4) if ks == 0 else vr(S_+4*T_,4)}')
    for u in range(2):
        for t in range(2): a(f'ds_read_b128 {vr(VF+8*u+4*t,4)}, v{vVx} offset:{u*2048+t*256}')
    def kvflag(n): a(f'''s_waitcnt vmcnt({n})
    s_mov_b64 exec, 1
    buffer_store_dword v127, v{vPM+1}, {WS}, s{sFKV} offen sc1
    s_mov_b64 exec, -1''')
    kvflag(2)
    a(f'''s_mov_b32 s7, 0
    s_waitcnt vmcnt(1)
    s_branch L_p_km1
    L_p_km:
    s_waitcnt vmcnt(0)
    L_p_km1:
    v_bitop3_b32 v{TM}, v{KMD}, s{sTag}, 1 bitop3:0x28
    v_cmp_ne_u32 vcc, 0, v{TM}
    s_cbranch_vccz L_p_kmok
    buffer_load_dwordx4 {vr(KMD,4)}, v{vL16}, {WS}, s{sKM} offen sc1''')
    spin_check(a, 7, 23, 'L_p_km')
    a(f'''L_p_kmok:
    ds_write_b64 v{vTw}, {vr(KMD,2)}
    ds_write_b64 v{vTw}, {vr(KMD+2,2)} offset:128
    v_max3_f32 v{m_}, v{S_}, v{S_+1}, v{S_+2}
    v_max3_f32 v{t_}, v{S_+4}, v{S_+5}, v{S_+6}
    v_max3_f32 v{m_}, v{m_}, v{S_+3}, v{S_+7}
    s_waitcnt lgkmcnt(0)
    s_barrier''')
    T(3)
    for ks in range(4):
        for sub in range(2): a(f'ds_read_b64_tr_b16 {vr(MT+4*ks+2*sub,2)}, v{vTr} offset:{ks*256+sub*64}')
    for k in range(4): a(f'ds_read_b64 {vr(MV+2*k,2)}, v{vMv} offset:{k*128}')
    def tryx():
        L = a.lab('nx')
        a(f'''s_mov_b32 s{sPre}, 0
        s_cmp_ge_u32 s{sI}, 31
        s_cbranch_scc1 {L}
        v_cmp_gt_u32 vcc, s{sNeed}, v{vFX}
        s_cbranch_vccnz {L}
        s_mov_b32 s{sPre}, 1''')
        xdma()
        a(f'{L}:')
    tryx()
    for ks in range(4):
        a(f's_waitcnt lgkmcnt({10-2*ks})')
        a(f'v_mfma_f32_16x16x32_bf16 {vr(S_+8,4)}, {vr(MT+4*ks,4)}, {vr(QF+4*ks,4)}, {"0" if ks == 0 else vr(S_+8,4)}')
    sv = [S_+i for i in range(8)] + [S_+10, S_+11]
    a(f'''v_max_f32 v{m_}, v{m_}, v{t_}
    v_max3_f32 v{m_}, v{m_}, v{sv[8]}, v{sv[9]}
    v_mov_b32 v{t_}, v{m_}
    v_permlane32_swap_b32 v{m_}, v{t_}
    v_max_f32 v{m_}, v{m_}, v{t_}
    v_max_f32 v{t_}, v{m_}, v{t_}
    v_permlane16_swap_b32 v{m_}, v{t_}
    v_max_f32 v{m_}, v{m_}, v{t_}
    v_mul_f32 v{m_}, s{sC}, v{m_}''')
    for r in [sv[8], sv[9]] + sv[:8]: a(f'v_fma_f32 v{r}, v{r}, s{sC}, -v{m_}')
    for r in (sv[8], sv[9]): a(f'v_exp_f32 v{r}, v{r}')
    SUM = S_ + 12
    a(f'v_exp_f32 v{sv[0]}, v{sv[0]}\nv_cvt_pk_bf16_f32 v{vPM}, v{sv[8]}, v{sv[9]}\nv_exp_f32 v{sv[1]}, v{sv[1]}\ns_waitcnt lgkmcnt(0)')
    a(f'v_mfma_f32_16x16x16_bf16 {vr(SUM,4)}, {vr(vONE,2)}, {vr(vPM,2)}, 0')
    for k in range(4):
        a(f'v_mfma_f32_16x16x16_bf16 {vr(O_+4*k,4)}, {vr(MV+2*k,2)}, {vr(vPM,2)}, 0')
        if k < 3: a(f'v_exp_f32 v{sv[2+2*k]}, v{sv[2+2*k]}\nv_exp_f32 v{sv[3+2*k]}, v{sv[3+2*k]}')
    for k in range(4): a(f'v_cvt_pk_bf16_f32 v{PX+k}, v{sv[2*k]}, v{sv[2*k+1]}')
    for h in range(2): a(f'v_mfma_f32_16x16x16_bf16 {vr(SUM,4)}, {vr(vONE,2)}, {vr(PX+2*h,2)}, {vr(SUM,4)}')
    for k in range(4): a(f'v_mfma_f32_16x16x32_bf16 {vr(O_+4*k,4)}, {vr(VF+4*k,4)}, {vr(PX,4)}, {vr(O_+4*k,4)}')
    a(f'v_rcp_f32 v{SUM}, v{SUM}\nv_mov_b32 v{TM}, s{sVal}')
    for u in range(2):
        for r in range(0, 8, 2): a(f'v_pk_mul_f32 {vr(O_+8*u+r,2)}, {vr(O_+8*u+r,2)}, {vr(SUM,2)} op_sel_hi:[1,0]')
        for r in range(4): a(f'v_cvt_pk_bf16_f32 v{O_+8*u+r}, v{O_+8*u+2*r}, v{O_+8*u+2*r+1}')
        a(f'buffer_store_dwordx4 {vr(O_+8*u,4)}, v{vOs}, {WS}, s{sOI} offen offset:{u*2048} sc1')
    a(f'''s_waitcnt vmcnt(0)
    s_mov_b64 exec, 1
    buffer_store_dword v{TM}, v{vPM+1}, {WS}, s{sFO} offen sc1
    s_mov_b64 exec, -1''')
    T(4)
    a('L_p_next:')
    for r in (vKx, vQx, vVx, vPw): a(f'v_xor_b32 v{r}, {PKX:#x}, v{r}')
    if tm:
        a(f'''s_waitcnt lgkmcnt(0)
        s_lshl_b32 s6, s{sX}, 5
        s_add_u32 s6, s6, s{sR}
        s_lshl_b32 s6, s6, 2
        s_add_u32 s6, s6, s{sW}
        s_lshl_b32 s6, s6, 6
        s_add_u32 s6, s6, s{sI}
        s_lshl_b32 s6, s6, 6
        s_add_u32 s6, s6, {160*MB_}''')
        for k in range(8): a(f'v_mov_b32 v{AQ+k}, s{70+2*k}')
        a(f'''s_mov_b64 exec, 1
        buffer_store_dwordx4 {vr(AQ,4)}, v{vPM+1}, {WS}, s6 offen
        buffer_store_dwordx4 {vr(AQ+4,4)}, v{vPM+1}, {WS}, s6 offen offset:16
        s_mov_b64 exec, -1''')
    a(f'''s_add_u32 s{sI}, s{sI}, 1
    s_add_u32 s{sSeg}, s{sSeg}, 2
    s_cmp_gt_u32 s{sI}, 32
    s_cbranch_scc1 L_p_end
    s_cmp_eq_u32 s{sI}, 32
    s_cbranch_scc1 L_p_tail
    s_cmp_eq_u32 s{sPre}, 0
    s_cbranch_scc1 L_p_xwait
    s_branch L_p_loop
    L_p_tail:
    s_waitcnt lgkmcnt(0)
    s_barrier
    s_branch L_p_att
    L_p_first:''')
    kvflag(1)
    a('s_waitcnt vmcnt(1) lgkmcnt(0)\ns_barrier')
    tryx()
    a('''s_waitcnt vmcnt(0)
    s_branch L_p_next
    L_p_end:
    s_waitcnt vmcnt(0)
    s_endpgm''')
```

```python
from common import *
from c import unpack, UROW
L_PA, L_FF, L_RT, L_UR, L_XR = 0, 8192, 25600, 44032, 60544
FROW = 4352
sCh, sK0, sT0, sT1 = 60, 61, 62, 63
LOG2E_HI, LOG2E_LO, LN2 = 0x3fb8aa3b, 0x32a57060, 0x3f317218

def exp_bf16(a, r, t):
    a(f'''v_mul_f32 v{t}, {LOG2E_HI:#x}, v{r}
    v_mov_b32 v{t+1}, {LOG2E_HI:#x}
    v_fma_f32 v{t+1}, v{r}, v{t+1}, -v{t}
    v_fmac_f32 v{t+1}, {LOG2E_LO:#x}, v{r}
    v_exp_f32 v{t}, v{t}
    v_mul_f32 v{t+1}, {LN2:#x}, v{t+1}
    v_fma_f32 v{r}, v{t}, v{t+1}, v{t}''')
    bf16r(a, r, r)

def pro(a, cfg):
    tm = cfg.get('pro_time', 0)
    def T(slot):
        if tm: a(f's_memrealtime s[{40+2*slot}:{41+2*slot}]')
    vZ, vL16, vPa = 1, 2, 3
    POS, PR, XD, SD, GA, DV = 4, 8, 200, 216, 160, 232
    a('L_pro:')
    T(0)
    if tm: a('s_memtime s[56:57]')
    a(f'''s_max_u32 s6, s{sX}, 3
    s_sub_u32 s6, s6, 3
    s_lshl_b32 s6, s6, 5
    s_add_u32 s6, s6, s{sR}
    s_lshl_b32 s{sT0}, s6, 15
    s_lshl_b32 s6, s6, 2
    s_add_u32 s{sCh}, s6, s{sW}
    s_lshl_b32 s6, s{sCh}, 2
    s_add_u32 s6, s6, {FX1:#x}
    v_mov_b32 v{vZ}, 0
    v_lshlrev_b32 v{vL16}, 4, v0
    s_mov_b64 exec, 1
    buffer_store_dword v{vZ}, v{vZ}, {WS}, s6 offen sc1
    s_mov_b64 exec, -1
    v_lshlrev_b32 v16, 2, v0
    s_lshl_b32 s6, s{sCh}, 8
    s_lshl_b32 s7, s{sCh}, 1''')
    for k, ptr in enumerate((P_LA, P_AI, P_CR, P_CI)):
        srd(a, 16 + 4*k, ptr, 512*256)
        a(f'buffer_load_dword v{20+k}, v16, s[{16+4*k}:{19+4*k}], s6 offen')
    srd(a, 16, P_LDT, 1024); a(f'buffer_load_ushort v24, v{vZ}, s[16:19], s7 offen')
    srd(a, 20, P_DS, 1024); a(f'buffer_load_ushort v{DV}, v{vZ}, s[20:23], s7 offen')
    signal_done(a, 'vmcnt(6)', 18)
    a(f'''v_and_b32 v16, 15, v0
    v_and_b32 v17, 7, v16
    v_lshrrev_b32 v18, 3, v16
    v_lshl_add_u32 v19, v18, 7, v17
    v_add_u32 v19, 1, v19
    v_cvt_f32_u32 v{POS}, v19
    v_and_b32 v19, 3, v16
    v_lshrrev_b32 v25, 2, v16
    v_lshlrev_b32 v25, 6, v25
    v_add_u32 v19, v19, v25
    v_lshlrev_b32 v19, 1, v19
    v_add_u32 v19, 258, v19
    v_cmp_gt_u32 vcc, 8, v16
    v_cndmask_b32 v19, 0, v19, vcc
    v_cvt_f32_u32 v{POS+1}, v19
    v_and_b32 v19, 1, v16
    v_lshrrev_b32 v25, 1, v17
    v_lshlrev_b32 v25, 7, v25
    v_lshl_add_u32 v19, v19, 2, v25
    v_add_u32 v19, 516, v19
    v_lshlrev_b32 v25, 7, v17
    v_add_u32 v25, 1032, v25
    v_cndmask_b32 v19, v25, v19, vcc
    v_cvt_f32_u32 v{POS+2}, v19
    v_lshlrev_b32 v19, 3, v16
    v_cvt_f32_u32 v{POS+3}, v19
    v_lshrrev_b32 v19, 4, v0
    s_lshl_b32 s6, s{sW}, 11
    v_lshl_add_u32 v{vPa}, v19, 6, s6''')
    a(f'''v_lshlrev_b32 v16, 4, v0
    v_cvt_f32_u32 v16, v16
    s_mul_i32 s{sT1}, s{sW}, {FROW}
    s_add_u32 s{sT1}, s{sT1}, {L_FF}''')
    import struct
    fb = lambda x: struct.unpack('<I', struct.pack('<f', x))[0]
    for m in range(4):
        for i in range(0, 8, 2):
            g0 = GA + 8*m + i
            a(f'''v_sub_f32 v17, {fb(2.0*(2048-512*m-i)):#x}, v16
            v_sub_f32 v18, {fb(2.0*(2048-512*m-i-1)):#x}, v16
            v_cvt_pk_bf16_f32 v17, v17, v18''')
            unpack(a, g0, g0+1, 17)
            a(f'v_cvt_u32_f32 v{g0}, v{g0}\nv_cvt_u32_f32 v{g0+1}, v{g0+1}\nv_add_u32 v{g0}, s{sT1}, v{g0}\nv_add_u32 v{g0+1}, s{sT1}, v{g0+1}')
    a('s_waitcnt vmcnt(1)\nv_lshlrev_b32 v24, 16, v24')
    exp_bf16(a, 24, 26)
    for k in range(4): unpack(a, 32+k, 36+k, 20+k)
    a('v_max3_f32 v28, |v34|, |v35|, |v38|\nv_max_f32 v28, |v39|, v28')
    for m in ('quad_perm:[1,0,3,2]', 'quad_perm:[2,3,0,1]', 'row_half_mirror', 'row_mirror'):
        a(f'v_max_f32_dpp v28, v28, v28 {m} row_mask:0xf bank_mask:0xf')
    a("""v_mov_b32 v29, v28
    v_permlane16_swap_b32 v28, v29
    v_max_f32 v28, v28, v29
    v_mov_b32 v29, v28
    v_permlane32_swap_b32 v28, v29
    v_max_f32 v28, v28, v29
    v_frexp_exp_i32_f32 v28, v28
    v_sub_u32 v29, 0, v28""")
    for b in (32, 36):
        exp_bf16(a, b, 26)
        a(f'''v_mul_f32 v{b}, v{b}, v24
        v_mul_f32 v{b+1}, v{b+1}, v24
        v_ldexp_f32 v{b+2}, v{b+2}, v29
        v_ldexp_f32 v{b+3}, v{b+3}, v29
        v_mul_f32 v{b}, {LOG2E_HI | 0x80000000:#x}, v{b}
        v_mul_f32 v{b+1}, 0x3e22f983, v{b+1}''')
    a(f'v_add_f32 v24, v24, v24\nv_ldexp_f32 v{DV+1}, v24, v28')
    a(f'''s_lshl_b32 s6, s{sW}, 11
    v_lshl_add_u32 v16, v0, 5, s6
    ds_write_b128 v16, v[32:35] offset:{L_PA}
    ds_write_b128 v16, v[36:39] offset:{L_PA+16}
    ds_read_b128 {vr(PR,4)}, v{vPa} offset:{L_PA}''')
    T(1)
    OPS, E_, CS, KD = 16, 32, 40, 48
    for r in range(12): a(f'v_mov_b32 v{KD+r}, 0')
    for r in range(16): a(f'v_mov_b32 v{OPS+r}, 0')
    mf = [f'v_mfma_f32_16x16x32_f16 {vr(KD+4*t,4)}, {vr(OPS+4*t,4)}, {vr(OPS+12,4)}, {vr(KD+4*t,4)}' for t in range(3)]
    def step(qq):
        p = PR + 4*(qq % 2)
        a(f's_waitcnt lgkmcnt(0)\nds_read_b128 {vr(PR+4*(1-qq%2),4)}, v{vPa} offset:{L_PA + (16*(qq+1) if qq < 3 else 256)}')
        o = (3, 0, 1, 2)
        for i, k in enumerate(o):
            if qq == 0 and i < 3: a(mf[i])
            h = k % 2
            a(f'v_pk_mul_f32 {vr(E_+2*k,2)}, {vr(p,2)}, {vr(POS+k-h,2)} op_sel:[0,{h}] op_sel_hi:[1,{h}]')
        for k in o: a(f'v_fract_f32 v{E_+2*k+1}, v{E_+2*k+1}')
        for k in o: a(f'v_exp_f32 v{E_+2*k}, v{E_+2*k}\nv_cos_f32 v{CS+2*k}, v{E_+2*k+1}\nv_sin_f32 v{CS+2*k+1}, v{E_+2*k+1}')
        for k in o: a(f'v_pk_mul_f32 {vr(CS+2*k,2)}, {vr(CS+2*k,2)}, {vr(E_+2*k,2)} op_sel_hi:[1,0]')
        a(f'v_pk_mul_f32 {vr(E_,2)}, {vr(CS+6,2)}, {vr(p+2,2)} op_sel_hi:[1,0] neg_hi:[1,0]')
        a(f'v_cvt_pk_f16_f32 v{OPS+qq}, v{CS}, v{CS+1}')
        a(f'v_pk_fma_f32 {vr(E_,2)}, {vr(CS+6,2)}, {vr(p+2,2)}, {vr(E_,2)} op_sel:[1,1,0] op_sel_hi:[0,1,1] neg_lo:[1,0,0] neg_hi:[1,0,0]')
        for k in (1, 2): a(f'v_cvt_pk_f16_f32 v{OPS+4*k+qq}, v{CS+2*k}, v{CS+2*k+1}')
        a(f'v_cvt_pk_f16_f32 v{OPS+12+qq}, v{E_}, v{E_+1}')
    for quarter in range(4):
        L = a.lab('kg')
        a(f's_mov_b32 s6, 2\n{L}:')
        for qq in range(4): step(qq)
        a(f'v_add_u32 v{vPa}, 256, v{vPa}\ns_sub_u32 s6, s6, 1\ns_cmp_lg_u32 s6, 0\ns_cbranch_scc1 {L}')
        if quarter == 1 and tm == 2: T(3)
        if quarter == 0:
            a(f'v_mov_b32 v{SD}, {D_DONE*4}\nbuffer_load_dword v{SD+1}, v{SD}, {DBG}, 0 offen sc1')
        if quarter == 1:
            Lok = a.lab('dn')
            a(f's_waitcnt vmcnt(0)\nv_cmp_ne_u32 vcc, 0x100, v{SD+1}\ns_cbranch_vccz {Lok}')
            wait_done(a, SD, SD+1, 50)
            a(f'{Lok}:')
            if tm == 2: T(4)
            a(f's_lshl_b32 s6, s{sW}, 13\ns_add_u32 s6, s6, s{sT0}\ns_add_u32 s6, s6, {UX:#x}\ns_lshl_b32 s7, s{sW}, 10\nv_lshlrev_b32 v{SD}, 7, v0')
            for c in range(8):
                a(f's_add_u32 m0, s7, {L_UR + c*UROW + 32 if c < 4 else L_XR + (c-4)*4096}\nbuffer_load_dwordx4 v{SD}, {WS}, s6 offen lds\ns_add_u32 s6, s6, 16')
    for x in mf: a(x)
    T(2)
    a('s_waitcnt lgkmcnt(0)')
    if tm == 1: T(3)
    for r in range(12): a(f'v_mul_f32 v{KD+r}, v{KD+r}, v{DV+1}')
    a(f'''v_readlane_b32 s{sK0}, v{KD+4}, 32
    v_lshrrev_b32 v16, 4, v0
    v_and_b32 v17, 15, v0
    v_lshlrev_b32 v17, 4, v17
    v_add_u32 v17, s{sT1}, v17
    v_lshrrev_b32 v18, 1, v16
    v_and_b32 v19, 1, v16
    v_lshlrev_b32 v20, 8, v18
    v_lshl_add_u32 v20, v19, 3, v20
    v_add3_u32 v20, v20, v17, 2
    v_lshlrev_b32 v21, 8, v19
    v_add_u32 v21, 516, v21
    v_cmp_eq_u32 vcc, 0, v18
    v_cndmask_b32 v21, 0, v21, vcc
    v_cndmask_b32 v22, 0, 4, vcc
    v_add_u32 v21, v21, v17
    v_lshlrev_b32 v23, 9, v19
    v_add_u32 v23, 1032, v23
    v_lshlrev_b32 v24, 10, v19
    v_add_u32 v24, 2064, v24
    v_cndmask_b32 v23, v24, v23, vcc
    v_add_u32 v23, v23, v17
    v_mov_b32 v24, 0x100
    v_cndmask_b32 v24, v24, 8, vcc
    v_mov_b32 v25, 0x200
    v_cndmask_b32 v25, v25, v24, vcc
    v_mov_b32 v26, 0x100
    v_cndmask_b32 v25, v25, v26, vcc''')
    for t in range(3):
        for h in range(2): a(f'v_cvt_pk_bf16_f32 v{32+2*t+h}, v{KD+4*t+2*h}, v{KD+4*t+2*h+1}')
    W = lambda r: f'ds_write_b16{"_d16_hi" if r % 2 else ""}'
    for r in range(4):
        a(f'{W(r)} v21, v{34+r//2}')
        if r < 3: a('v_add_u32 v21, v21, v22')
    for r in range(4): a(f'{W(r)} v20, v{32+r//2} offset:{2*r}')
    a(f'''{W(0)} v23, v36
    v_add_u32 v26, v23, v24
    v_add_u32 v23, v23, v25
    {W(1)} v26, v36
    {W(2)} v23, v37
    v_add_u32 v23, v23, v24
    {W(3)} v23, v37''')
    for k in range(32): a(f'ds_read_u16 v{GA+k}, v{GA+k}')
    a(f'''s_mul_i32 s6, s{sW}, {KT_ROW}
    s_add_u32 s6, s6, {L_RT}
    v_add_u32 v16, s6, v{vL16}
    s_mul_i32 s7, s{sCh}, {KT_ROW}
    s_add_u32 s7, s7, {KT:#x}
    v_mov_b32 v21, 0
    v_mov_b32 v22, 0
    v_mov_b32 v23, 0
    v_mov_b32 v20, s{sK0}
    v_cmp_eq_u32 vcc, 30, v0
    v_cndmask_b32 v20, 0, v20, vcc
    s_mul_i32 s{sT0}, s{sW}, {UROW}
    s_add_u32 s{sT0}, s{sT0}, {L_UR}
    v_and_b32 v24, 16, v{vL16}
    v_add_u32 v24, s{sT0}, v24
    v_mov_b32 v28, 0
    v_mov_b32 v29, 0
    v_mov_b32 v30, 0
    v_mov_b32 v31, 0''')
    for m in range(4):
        a(f's_waitcnt lgkmcnt({min(15, 24 - 8*m + m)})' if m else 's_waitcnt lgkmcnt(15)')
        if m == 1: a('s_waitcnt lgkmcnt(15)')
        for d in range(4): a(f'v_lshl_or_b32 v{GA+8*m+d}, v{GA+8*m+2*d+1}, 16, v{GA+8*m+2*d}')
        a(f'ds_write_b128 v16, {vr(GA+8*m,4)} offset:{m*1024}')
        a(f'buffer_store_dwordx4 {vr(GA+8*m,4)}, v{vL16}, {WS}, s7 offen offset:{m*1024} sc1')
    a(f'''s_add_u32 s7, s7, 4096
    ds_write_b128 v24, v[28:31]
    s_mov_b32 exec_hi, 0
    ds_write_b128 v16, v[20:23] offset:4096
    buffer_store_dwordx4 v[20:23], v{vL16}, {WS}, s7 offen sc1
    s_mov_b32 exec_hi, -1''')
    vKa, vUa, vSh, vUr, vXr, vO = 4, 5, 6, 7, 8, 9
    RW, KB, TF, PT = 10, 32, 22, 44
    a(f'''v_and_b32 v16, 15, v0
    v_lshrrev_b32 v17, 4, v0
    v_lshlrev_b32 v18, 5, v16
    s_add_u32 s6, s6, 480
    v_sub_u32 v18, s6, v18
    v_lshl_add_u32 v{vKa}, v17, 4, v18
    v_lshlrev_b32 v18, 1, v16
    v_lshl_add_u32 v18, v17, 4, v18
    v_and_b32 v{vSh}, 2, v18
    v_and_b32 v18, -4, v18
    v_add_u32 v{vUa}, s{sT0}, v18
    v_lshlrev_b32 v18, 5, v16
    v_lshl_add_u32 v18, v17, 3, v18
    v_add3_u32 v{vUr}, v18, s{sT0}, 32
    s_lshl_b32 s7, s{sW}, 12
    s_add_u32 s7, s7, {L_XR}
    v_add_u32 v{vXr}, s7, v18
    v_lshrrev_b32 v18, 1, v16
    v_lshlrev_b32 v18, 15, v18
    v_and_b32 v19, 1, v16
    v_lshl_or_b32 v18, v19, 5, v18
    v_lshl_or_b32 v{vO}, v17, 3, v18
    v_lshlrev_b32 v31, 16, v{DV}
    v_add_u32 v60, 1024, v{vUa}
    v_add_u32 v61, 2048, v{vUa}
    v_add_u32 v62, 3072, v{vUa}
    s_lshl_b32 s{sT0}, s{sCh}, 6
    s_add_u32 s{sT0}, s{sT0}, {XT[0]:#x}
    s_waitcnt vmcnt(5) lgkmcnt(0)
    s_barrier''')
    if tm == 1: T(4)
    vD = 31
    qd = []
    def ds(x, tag): a(x); qd.append(tag)
    def need(tag):
        last = max([k for k, x in enumerate(qd) if x == tag], default=-1)
        if last >= 0:
            a(f's_waitcnt lgkmcnt({min(15, len(qd)-1-last)})'); del qd[:last+1]
    def uf(s): return vr(64+4*s, 4) if s < 48 else (ar(64+4*(s-48), 4) if s < 56 else vr(TF+4*(s % 2), 4))
    nraw = [0]; slot = {}
    def uread(s):
        r = (10, 16, 32, 38, 44)[nraw[0] % 5]; nraw[0] += 1; slot[s] = r
        ad = (vUa, 60, 61, 62)[s//16]; o = 16*(s % 16)
        ds(f'ds_read2_b32 {vr(r,2)}, v{ad} offset0:{o} offset1:{o+1}', f'u{s}')
        ds(f'ds_read2_b32 {vr(r+2,2)}, v{ad} offset0:{o+2} offset1:{o+3}', f'u{s}')
        ds(f'ds_read_b32 v{r+4}, v{ad} offset:{4*o+16}', f'u{s}')
    def ubuild(s):
        need(f'u{s}'); r = slot[s]
        dst = 64+4*s if s < 48 else (56 if s < 56 else TF+4*(s % 2))
        for d in range(4): a(f'v_alignbyte_b32 v{dst+d}, v{r+d+1}, v{r+d}, v{vSh}')
        if 48 <= s < 56:
            for d in range(4): a(f'v_accvgpr_write_b32 a{64+4*(s-48)+d}, v{dst+d}')
    def kread(dl): ds(f'ds_read_b128 {ar(KB+4*((dl+7) % 4),4)}, v{vKa} offset:{3584 - 64*dl}', f'k{dl}')
    def post(T_):
        Y, U4, D4, X4_, UU, X2 = PT, PT+4, PT+8, 32, 36, 38
        l = [('ds', f'ds_read_b64 {vr(UU,2)}, v{vUr} offset:{512*T_}', f'p{T_}'), ('ds', f'ds_read_b64 {vr(X2,2)}, v{vXr} offset:{512*T_}', f'p{T_}')]
        l += [f'v_accvgpr_read_b32 v{Y+r}, a{4*T_+r}' for r in range(4)]
        l += [('need', f'p{T_}')]
        b = Asm()
        for h in range(2): unpack(b, U4+2*h, U4+2*h+1, UU+h)
        for h in range(2): unpack(b, X4_+2*h, X4_+2*h+1, X2+h)
        for r in range(4): b(f'v_mul_f32 v{D4+r}, v{U4+r}, v{vD}')
        for r in range(4): b(f'v_fmac_f32 v{Y+r}, s{sK0}, v{U4+r}')
        for h in range(2): b(f'v_cvt_pk_bf16_f32 v{UU+h}, v{D4+2*h}, v{D4+2*h+1}')
        for h in range(2): unpack(b, D4+2*h, D4+2*h+1, UU+h)
        def rnd():
            for h in range(2): b(f'v_cvt_pk_bf16_f32 v{UU+h}, v{Y+2*h}, v{Y+2*h+1}')
        rnd()
        for add in (D4, X4_):
            for h in range(2): unpack(b, Y+2*h, Y+2*h+1, UU+h)
            for r in range(4): b(f'v_add_f32 v{Y+r}, v{Y+r}, v{add+r}')
            rnd()
        b(f's_add_u32 s6, s{sT0}, {T_ << 18}')
        b(f'buffer_store_dwordx2 {vr(UU,2)}, v{vO}, {WS}, s6 offen sc1')
        return l + b.lines
    seq = [(dl, T_) for dl in range(-7, 57) for T_ in range(7, -1, -1) if 0 <= 8*T_ - dl]
    first = [8*T_ - dl for dl, T_ in seq[:64]]
    for dl in range(-7, -4): kread(dl)
    for k in range(5): uread(first[k])
    ubuild(first[0])
    fill = []; seen = set()
    for i, (dl, T_) in enumerate(seq):
        s = 8*T_ - dl
        newd = i == 0 or seq[i-1][0] != dl
        if i < 63:
            ubuild(first[i+1])
        if newd: need(f'k{dl}')
        acc = ar(4*T_, 4)
        a(f'v_mfma_f32_16x16x32_bf16 {acc}, {uf(s)}, {ar(KB+4*((dl+7) % 4),4)}, {acc if T_ in seen else "0"}')
        seen.add(T_)
        if i + 5 < 64: uread(first[i+5])
        if newd and dl + 3 <= 56: kread(dl + 3)
        if newd and dl > 0 and dl % 8 == 1: fill += post((dl-1)//8)
        if i == 64: T(7)
        if i >= 64:
            n = 0
            while fill and n < 2:
                x = fill.pop(0)
                if isinstance(x, str): a(x); n += 1
                elif x[0] == 'ds': ds(x[1], x[2])
                else: need(x[1])
    T(5)
    fill += post(7)
    for x in fill:
        if isinstance(x, str): a(x)
        elif x[0] == 'ds': ds(x[1], x[2])
        else: need(x[1])
    a(f'''s_lshl_b32 s6, s{sCh}, 2
    s_add_u32 s6, s6, {FX1:#x}
    v_mov_b32 v16, 127
    s_waitcnt vmcnt(0)
    s_mov_b64 exec, 1
    buffer_store_dword v16, v{vZ}, {WS}, s6 offen sc1
    s_mov_b64 exec, -1''')
    T(6)
    if tm:
        a('s_memtime s[58:59]\ns_waitcnt lgkmcnt(0)\ns_sub_u32 s58, s58, s56\nv_mov_b32 v24, s58')
        a(f's_waitcnt lgkmcnt(0)\ns_lshl_b32 s6, s{sCh}, 6\ns_add_u32 s6, s6, {160*MB_}')
        for k in range(8): a(f's_sub_u32 s{40+2*k}, s{40+2*k}, s98\nv_mov_b32 v{16+k}, s{40+2*k}')
        a(f's_mov_b64 exec, 1\nbuffer_store_dwordx4 v[16:19], v{vZ}, {WS}, s6 offen\nbuffer_store_dwordx4 v[20:23], v{vZ}, {WS}, s6 offen offset:16\nbuffer_store_dword v24, v{vZ}, {WS}, s6 offen offset:32\ns_mov_b64 exec, -1')
    a('s_barrier')
```

```python
from common import *
L_SH, L_KB, L_VB, L_QK, L_OB, L_WO = 0, 8192, 16384, 24576, 28928, 32768
GQ, RS = 1088, 288
vIdx, vL16, vQKw, vXr, vKx, vOw, vOr, vWo, vPst, vVx, vONE, vPM = 0, 1, 2, 3, 4, 5, 6, 7, 8, 9, 10, 12
vT, MA, KX, QK, VA, VC, SA = 16, 20, 52, 84, 100, 108, 116
WV = 128
sStep, sTag, sC = 32, 33, 34
sKV0, sKM0, sFKM, sFKV0, sPB0, sPB1, sPR0, sPR1, sMst, sMld = 35, 36, 37, 38, 39, 40, 41, 42, 43, 44
sA1, sA2, sA3, sSh0, sNeed, sKV, sFKV, sKM, sM0K = 45, 46, 47, 48, 49, 50, 51, 52, 53
sLo, sVal = 54, 56
LY = 58
sKD, sTKM = 37, 59

def wfrag(m, t, ct):
    o = (t*2 + ct)*8
    return ar(o, 8) if m == 0 else (ar(128+o, 8) if m == 1 else vr(WV+o, 8))
def wpair(m, r):
    return ar(r, 2) if m == 0 else (ar(128+r, 2) if m == 1 else vr(WV+r, 2))

def timeout_fix(a, cnt, code, retry):
    L = a.lab('tf')
    a(f'''s_and_b32 s6, s{cnt}, 31
    s_cmp_lg_u32 s6, 31
    s_cbranch_scc1 {L}
    buffer_wbl2 sc1
    s_waitcnt vmcnt(0)
    buffer_inv sc1
    s_waitcnt vmcnt(0)
    {L}:''')
    spin_check(a, cnt, code, retry)

def load_weights(a, cfg, done_cb):
    vG0, vG1, vH0, vH1, vR0, vR1, vRo, vt = 116, 117, 118, 119, 120, 121, 122, 123
    a(f'''v_lshrrev_b32 v16, 2, v0
    v_and_b32 v17, 1, v16
    v_bfe_u32 v18, v16, 1, 1
    v_lshl_or_b32 v17, v18, 5, v17
    v_bfe_u32 v18, v16, 2, 2
    v_lshl_or_b32 v17, v18, 1, v17
    v_lshlrev_b32 v17, 13, v17
    v_and_b32 v18, 3, v0
    v_lshl_or_b32 v{vG0}, v18, 4, v17
    v_xor_b32 v{vG1}, 32, v{vG0}
    v_lshrrev_b32 v16, 4, v0
    v_and_b32 v17, 15, v0
    v_lshlrev_b32 v18, 1, v16
    v_xor_b32 v17, v17, v18
    v_lshlrev_b32 v17, 4, v17
    v_lshl_or_b32 v{vH0}, v16, 10, v17
    v_xor_b32 v{vH1}, 0x80, v{vH0}''')
    a(f'''v_bfe_u32 v17, v0, 2, 2
    v_lshrrev_b32 v18, 5, v0
    v_lshl_or_b32 v17, v18, 3, v17
    v_bfe_u32 v18, v0, 4, 1
    v_lshl_or_b32 v17, v18, 5, v17
    v_lshlrev_b32 v17, 6, v17
    v_lshl_or_b32 v17, v18, 5, v17
    v_and_b32 v19, 3, v0
    v_lshl_or_b32 v17, v19, 3, v17
    s_lshl_b32 s60, s{sW}, 15
    s_add_u32 s60, s60, {L_WO}
    v_add_u32 v{vR0}, s60, v17
    v_xor_b32 v{vR1}, 32, v{vR0}
    v_bfe_u32 v17, v0, 2, 2
    v_lshl_or_b32 v18, v18, 2, v17
    v_lshl_or_b32 v17, v16, 3, v17
    v_lshlrev_b32 v17, 8, v17
    v_lshl_or_b32 v17, v18, 5, v17
    v_lshl_or_b32 v17, v19, 3, v17
    v_add_u32 v{vRo}, s60, v17''')
    def issue(c):
        m, j = c // 4, c % 4
        if m < 3:
            a(f'''s_add_u32 s61, s{sW}, {j}
            s_and_b32 s61, s61, 3
            s_lshl_b32 s61, s61, 20
            s_lshl_b32 s62, s{sR}, 8
            s_add_u32 s61, s61, s62
            s_lshl_b32 s62, s{sW}, 6
            s_add_u32 s61, s61, s62''')
        else:
            a(f'''s_lshl_b32 s61, s{sR}, 17
            s_lshl_b32 s62, s{sW}, 8
            s_add_u32 s61, s61, s62
            s_add_u32 s61, s61, {j*32768}''')
        for i in range(8):
            if m < 3:
                c0 = (64*(i//4) + 8*(i % 2) + 16*((i % 4)//2))*8192; v = vG1 if (i % 4)//2 else vG0
            else:
                c0 = i*4096; v = vH1 if (i//2) % 2 else vH0
            a(f'''s_add_u32 m0, s60, {j*8192 + i*1024}
            s_add_u32 s62, s61, {c0}
            buffer_load_dwordx4 v{v}, s[{16+4*m}:{19+4*m}], s62 offen lds''')
    for c in range(4): issue(c)
    done_cb(32)
    for c in range(16):
        m, j = c // 4, c % 4
        a(f's_waitcnt vmcnt({min(24, 8*(15-c))})')
        if m < 3:
            for kbi in range(2):
                for ct in range(2):
                    for hf in range(2):
                        for rp in range(2):
                            r = ((2*j + kbi)*2 + ct)*8 + 4*hf + 2*rp
                            a(f'ds_read_b64_tr_b16 {wpair(m, r)}, v{vR1 if ct else vR0} offset:{j*8192 + kbi*4096 + (4*rp + 16*hf)*64}')
            a('s_waitcnt lgkmcnt(0)')
            issue(c + 4)
        else:
            for ct in range(8):
                a(f'v_xor_b32 v{vt}, {ct*32}, v{vRo}')
                for rp in range(2):
                    a(f'ds_read_b64_tr_b16 {vr(MA + 4*ct + 2*rp, 2)}, v{vt} offset:{j*8192 + rp*1024}')
            a('s_waitcnt lgkmcnt(0)')
            for ct in range(8):
                a(f'ds_write_b128 v{vWo}, {vr(MA + 4*ct, 4)} offset:{j*8192 + ct*1024}')
            a('s_waitcnt lgkmcnt(0)')

def kv_addr(a, ring):
    a(f'''s_sub_u32 s6, s{sNeed}, 1
    s_and_b32 s7, s6, 1
    s_lshl_b32 s7, s7, 12
    s_add_u32 s{sFKV}, s{sFKV0}, s7
    s_and_b32 s6, s6, {ring}
    s_lshl_b32 s6, s6, 19
    s_add_u32 s{sKV}, s{sKV0}, s6''')

def rec(a, cfg):
    ring = cfg.get('ring', 3); bar = cfg.get('rec_bar', 1); tm = cfg.get('rec_time', 0)
    def T(slot):
        if tm: a(f's_memtime s[{70+2*slot}:{71+2*slot}]')
    a('L_rec:')
    def sel(dst, pair):
        a(f's_cmp_eq_u32 s{LY}, 0\ns_cselect_b32 s{dst}, {pair[0]:#x}, {pair[1]:#x}' if False else
          f's_mul_i32 s{dst}, s{LY}, {pair[1]-pair[0]:#x}\ns_add_u32 s{dst}, s{dst}, {pair[0]:#x}')
    a(f's_and_b32 s{LY}, s{sX}, 1')
    sel(sKV0, KVX); sel(sKM0, KVM); sel(sPB0, PBUF); sel(sMld, MBUF)
    a(f'''s_lshl_b32 s6, s{sR}, 14
    s_lshl_b32 s7, s{sW}, 11
    s_add_u32 s{sKV0}, s{sKV0}, s6
    s_add_u32 s{sKV0}, s{sKV0}, s7
    s_mov_b32 s{sSh0}, s7
    s_lshl_b32 s6, s{sR}, 8
    s_add_u32 s{sMst}, s{sMld}, s6
    s_add_u32 s{sMld}, s{sMld}, s7
    s_lshl_b32 s7, s{sR}, 13
    s_add_u32 s{sPR0}, s{sPB0}, s7
    s_add_u32 s{sPR1}, s{sPR0}, 4096
    s_add_u32 s{sPB0}, s{sPB0}, s6
    s_add_u32 s{sPB1}, s{sPB0}, 32768
    s_lshl_b32 s7, s{sR}, 12
    s_add_u32 s{sKM0}, s{sKM0}, s7
    s_lshl_b32 s7, s{sW}, 10
    s_add_u32 s{sKM0}, s{sKM0}, s7
    s_add_u32 s{sM0K}, s{sSh0}, {L_KB}
    s_add_u32 s{sKD}, s{sSh0}, {L_VB}
    s_lshl_b32 s6, s{LY}, 13
    s_lshl_b32 s7, s{sR}, 7
    s_add_u32 s{sFKV0}, s6, s7
    s_add_u32 s{sFKV0}, s{sFKV0}, {FKV:#x}
    s_mov_b32 s{sLo}, 0x00ff00ff
    s_mov_b32 s{sLo+1}, 0x00ff00ff
    s_mov_b32 s{sVal}, 0x33333333
    s_mov_b32 s{sVal+1}, 0x33333333
    s_mov_b32 s{sC}, 0x3e0293ee''')
    for k, s in ((1, sA1), (2, sA2), (3, sA3)):
        a(f's_add_u32 s6, s{sW}, {k}\ns_and_b32 s6, s6, 3\ns_lshl_b32 s{s}, s6, 11')
    lanec = (f'''v_and_b32 v16, 15, v0
    v_lshrrev_b32 v17, 4, v0
    v_lshlrev_b32 v{vL16}, 4, v0
    s_lshl_b32 s6, s{sW}, 8
    s_add_u32 s6, s6, {L_QK}
    v_mul_u32_u24 v18, {GQ}, v17
    v_lshl_add_u32 v18, v16, 3, v18
    v_add_u32 v{vQKw}, s6, v18
    v_and_b32 v18, 3, v0
    v_mul_u32_u24 v18, {GQ}, v18
    v_bfe_u32 v19, v0, 2, 3
    v_lshl_add_u32 v18, v19, 3, v18
    v_lshrrev_b32 v19, 5, v0
    v_lshl_add_u32 v18, v19, 7, v18
    v_add_u32 v{vXr}, {L_QK}, v18
    v_and_b32 v18, 7, v0
    v_bfe_u32 v19, v0, 3, 1
    v_lshl_or_b32 v18, v19, 4, v18
    v_lshlrev_b32 v18, 4, v18
    v_lshl_add_u32 v18, v17, 9, v18
    v_add_u32 v{vKx}, {L_KB}, v18
    v_lshrrev_b32 v18, 2, v16
    v_and_b32 v19, 1, v0
    v_lshl_or_b32 v18, v18, 1, v19
    v_mul_u32_u24 v18, {RS}, v18
    v_lshl_add_u32 v18, v17, 2, v18
    s_lshl_b32 s6, s{sW}, 6
    s_add_u32 s6, s6, {L_OB}
    v_add_u32 v{vOw}, s6, v18
    v_lshrrev_b32 v18, 1, v16
    v_mul_u32_u24 v18, {RS}, v18
    v_lshl_add_u32 v18, v17, 5, v18
    v_lshl_add_u32 v18, v19, 4, v18
    v_add_u32 v{vOr}, {L_OB}, v18
    s_lshl_b32 s6, s{sW}, 15
    s_add_u32 s6, s6, {L_WO}
    v_add_u32 v{vWo}, s6, v{vL16}
    v_lshrrev_b32 v18, 2, v16
    v_lshlrev_b32 v18, 13, v18
    v_and_b32 v19, 3, v0
    v_lshl_or_b32 v19, v17, 2, v19
    v_lshl_or_b32 v18, v19, 4, v18
    s_lshl_b32 s6, s{sW}, 16
    v_add_u32 v{vPst}, s6, v18
    v_lshlrev_b32 v18, 4, v16
    v_lshl_or_b32 v18, v17, 9, v18
    v_add_u32 v{vVx}, s{sKD}, v18
    v_mov_b32 v{vONE}, 0x3f803f80
    v_mov_b32 v{vONE+1}, 0x3f803f80
    ''' + '\n'.join(f'v_mov_b32 v{vPM+r}, 0' for r in range(4)))
    a(lanec)
    a(f"""buffer_store_dwordx4 {vr(vPM,4)}, v{vPst}, {WS}, s{sPB0} offen sc1
    buffer_store_dwordx4 {vr(vPM,4)}, v{vPst}, {WS}, s{sPB1} offen sc1""")
    for k in range(4): a(f's_add_u32 s6, s{sKM0}, {k << 17}\nbuffer_store_dwordx4 {vr(vPM,4)}, v{vL16}, {WS}, s6 offen sc1')
    a(f"""s_mov_b64 exec, 0xffff
    buffer_store_dwordx4 {vr(vPM,4)}, v{vL16}, {WS}, s{sMst} offen sc1
    s_mov_b64 exec, -1""")
    if cfg.get('integ'):
        a(f's_cmp_eq_u32 s{sX}, 1\ns_cbranch_scc1 L_pro\ns_branch L_rec3\nL_rec2:')
        a(lanec)
        a('L_rec3:')
    srd(a, 16, P_WQ, 4*MB_); srd(a, 20, P_WK, 4*MB_); srd(a, 24, P_WV, 4*MB_); srd(a, 28, P_WO, 4*MB_)
    load_weights(a, cfg, lambda n: role_done(a, cfg, n))
    srd(a, 16, P_M0, 8192)
    a(f"""v_and_b32 v16, 15, v0
    v_lshrrev_b32 v17, 1, v16
    v_lshlrev_b32 v17, 10, v17
    v_and_b32 v18, 1, v0
    v_lshl_or_b32 v17, v18, 6, v17
    v_lshrrev_b32 v19, 4, v0
    v_lshl_or_b32 v17, v19, 3, v17
    s_lshl_b32 s6, s{sW}, 8""")
    for k, off in enumerate((0, 32, 128, 160)):
        a(f'buffer_load_dwordx2 {vr(MA+2*k, 2)}, v17, s[16:19], s6 offen offset:{off}')
    a(f"""v_mov_b32 v19, 0x4444
    v_mov_b32 v16, 0xeeee
    v_cmp_eq_u32 vcc, 0, v18
    v_cndmask_b32 v{vIdx}, v16, v19, vcc""")
    wait_done(a, vT, vT+1, 10)
    a(f's_mov_b32 s{sStep}, 0\ns_mov_b32 s{sNeed}, 1\ns_mov_b32 s{sTag}, 1')
    def kvdma():
        if cfg.get('x_nokv'): return
        a(f"""s_mov_b32 m0, s{sM0K}
        s_add_u32 s6, s{sKV}, 0x2000
        buffer_load_dwordx4 v{vL16}, {WS}, s{sKV} offen sc1 lds
        buffer_load_dwordx4 v{vL16}, {WS}, s{sKV} offen offset:1024 sc1 lds
        s_mov_b32 m0, s{sKD}
        s_nop 0
        buffer_load_dwordx4 v{vL16}, {WS}, s6 offen sc1 lds
        buffer_load_dwordx4 v{vL16}, {WS}, s6 offen offset:1024 sc1 lds""")
    def prep():
        for k, s in enumerate((sSh0, sA1, sA2, sA3)): a(f'v_add_u32 v{SA+k}, s{s}, v{vL16}')
        for r in range(QK, QK+24, 2): a(f'v_mov_b64 {vr(r,2)}, 0')
    kv_addr(a, ring)
    poll_ge(a, vPM+1, sFKV, sNeed, SA+4, 11, 4)
    kvdma()
    a(f's_mov_b32 s{sNeed}, 2')
    kv_addr(a, ring)
    prep()
    a('s_waitcnt vmcnt(0)')
    if cfg.get('memtime'): a('s_memrealtime s[100:101]')
    a('s_branch L_rec_step')
    def gl(r): a(f"""buffer_load_dwordx4 {vr(r,4)}, v{vL16}, {WS}, s{sMld} offen sc1
        buffer_load_dwordx4 {vr(r+4,4)}, v{vL16}, {WS}, s{sMld} offen offset:1024 sc1""")
    def gchk(r, ok): a(f"""v_bitop3_b32 v{vT}, v{r}, v{r+2}, s{sTag} bitop3:0x7e
        v_bitop3_b32 v{vT+1}, v{r+4}, v{r+6}, s{sTag} bitop3:0x7e
        v_bitop3_b32 v{vT}, v{vT}, v{vT+1}, 1 bitop3:0xa8
        v_cmp_ne_u32 vcc, 0, v{vT}
        s_cbranch_vccz {ok}""")
    a('L_rec_loop:')
    gl(MA)
    a('s_mov_b32 s7, 0')
    for k in range(cfg.get('g_gap', 1)): prep()
    a('L_rec_gather:')
    gl(KX)
    a('s_waitcnt vmcnt(2)'); gchk(MA, 'L_rec_got')
    gl(MA)
    a('s_waitcnt vmcnt(2)'); gchk(KX, 'L_rec_gotB')
    timeout_fix(a, 7, 12, 'L_rec_gather')
    a('L_rec_gotB:')
    for r in range(0, 8, 2): a(f'v_mov_b64 {vr(MA+r,2)}, {vr(KX+r,2)}')
    a(f"""L_rec_got:
    s_mov_b32 s63, s7
    s_xor_b32 s{sTag}, s{sTag}, 1
    L_rec_step:""")
    T(0)
    def sm(m, t, ct):
        acc = (QK, QK+8, VA)[m] + 4*ct
        return f'v_smfmac_f32_16x16x64_bf16 {vr(acc,4)}, {vr(MA+4*t,4)}, {wfrag(m,t,ct)}, v{vIdx}'
    def red(acc, dst): return [f'v_add_f32 v{acc}, v{acc}, v{acc+1}', f'v_add_f32 v{acc+2}, v{acc+2}, v{acc+3}', f'v_cvt_pk_bf16_f32 v{dst}, v{acc}, v{acc+2}']
    a(f"""ds_write_b128 v{SA}, {vr(MA,4)}
    ds_write_b128 v{SA}, {vr(MA+4,4)} offset:1024
    buffer_load_dwordx4 {vr(SA+4,4)}, v{vPM+1}, {WS}, s{sFKV} offen sc1""")
    own = [sm(m, t, ct) for m in range(3) for t in range(2) for ct in range(2)]
    nb = cfg.get('own_pre', 4)
    for x in own[:nb]: a(x)
    a('s_waitcnt lgkmcnt(0)\ns_barrier')
    mar = [f'ds_read_b128 {vr(MA+4*t,4)}, v{SA+t//2} offset:{(t%2)*1024}' for t in range(2, 8)]
    kxr = [f'ds_read_b128 {vr(KX+16*T_+4*ks,4)}, v{vKx} offset:{ks*2048+T_*128}' for ks in range(4) for T_ in range(2)]
    a(mar[0]); a(mar[1]); a(own[nb]); a(mar[2]); a(mar[3]); a(own[nb+1]); a(mar[4]); a(mar[5])
    misc = [f's_and_b32 s6, s{sStep}, {ring}', 's_lshl_b32 s6, s6, 17', f's_add_u32 s{sKM}, s{sKM0}, s6', f's_lshr_b32 s6, s{sStep}, 2', f's_andn2_b32 s{sTKM}, 1, s6']
    for x in own[nb+2:]:
        a(x)
        if misc: a(misc.pop(0))
    for x in misc: a(x)
    for t in range(2, 8):
        a(f's_waitcnt lgkmcnt({7-t})'); a(sm(0,t,0)); a(sm(0,t,1))
    a('s_waitcnt vmcnt(1)')
    r0 = red(QK, vT); r1 = red(QK+4, vT+2); r2 = red(QK+8, vT+1); r3 = red(QK+12, vT+3)
    for t in range(2, 8):
        a(sm(1,t,0))
        if t < 6: a(kxr[2*(t-2)]); a(kxr[2*(t-2)+1])
        if t >= 4: a((r0 + r1)[t-4])
    a(sm(1,2,1)); a(r1[1]); a(f'ds_read_b128 {vr(VC,4)}, v{vVx}\nds_read_b128 {vr(VC+4,4)}, v{vVx} offset:256')
    a(sm(1,3,1)); a(r1[2])
    a(sm(1,4,1)); a(r2[0])
    a(sm(1,5,1)); a(r2[1])
    a(sm(1,6,1)); a(r2[2])
    a(sm(1,7,1)); a(f'ds_write_b64 v{vQKw}, {vr(vT,2)}')
    T(1)
    V = [sm(2, t, ct) for t in range(2, 8) for ct in range(2)]
    a(V[0]); a(V[1])
    for x in r3: a(x)
    a(f'ds_write_b64 v{vQKw}, {vr(vT+2,2)} offset:128')
    a(V[2]); a(V[3])
    a('s_waitcnt lgkmcnt(0)\ns_barrier')
    for ks in range(4):
        for sub in range(2): a(f'ds_read_b64_tr_b16 {vr(QK+4*ks+2*sub,2)}, v{vXr} offset:{ks*256+sub*64}')
        a(V[4+ks])
    nv = cfg.get('v_pre', 1)
    a(f"""s_cmp_eq_u32 s{sStep}, 63
    s_waitcnt vmcnt(0)
    s_cbranch_scc1 L_rec_nokv
    v_min_u32 v{SA+4}, v{SA+4}, v{SA+5}
    v_min3_u32 v{SA+4}, v{SA+4}, v{SA+6}, v{SA+7}
    v_cmp_gt_u32 vcc, s{sNeed}, v{SA+4}
    s_cbranch_vccnz L_rec_kvwait
    L_rec_kvok:""")
    kvdma()
    a('L_rec_nokv:')
    for x in V[8:8+nv]: a(x)
    T(2)
    for ks in range(4):
        a(f's_waitcnt lgkmcnt({6-2*ks})')
        c = lambda r: '0' if ks == 0 else vr(r, 4)
        a(f'v_mfma_f32_16x16x32_bf16 {vr(SA,4)}, {vr(KX+4*ks,4)}, {vr(QK+4*ks,4)}, {c(SA)}')
        a(f'v_mfma_f32_16x16x32_bf16 {vr(SA+4,4)}, {vr(KX+16+4*ks,4)}, {vr(QK+4*ks,4)}, {c(SA+4)}')
        a(f'v_mfma_f32_16x16x32_bf16 {vr(SA+8,4)}, {vr(QK+4*ks,4)}, {vr(QK+4*ks,4)}, {c(SA+8)}')
    V = V[8+nv:]
    seq = [(0,0),(1,0),(0,1),(1,1),(2,0),(3,0),(2,1),(3,1),(4,0),(5,0),(4,1),(5,1),(6,0),(7,0),(6,1),(7,1)]
    slots = [KX, KX+8, KX+16, KX+24, MA, MA+8, MA+16, MA+24]
    def word(i):
        ct, kb = seq[i]
        return [f'ds_read_b128 {vr(slots[i%8]+4*hf,4)}, v{vWo} offset:{(2*kb+hf)*8192+ct*1024}' for hf in range(2)]
    pre = sum([word(i) for i in range(8)], [])
    def P(n=1):
        for _ in range(n):
            if pre: a(pre.pop(0))
    def Vn():
        if V: a(V.pop(0))
    Vn(); P(2)
    T(3)
    m_, t_ = QK+4, QK+5; PX = QK+8
    sv = [SA+i for i in range(8)] + [SA+10, SA+11]
    a(f'v_max3_f32 v{m_}, v{sv[0]}, v{sv[1]}, v{sv[2]}')
    a(f'v_max3_f32 v{t_}, v{sv[4]}, v{sv[5]}, v{sv[6]}')
    a(f'v_max3_f32 v{m_}, v{m_}, v{sv[3]}, v{sv[7]}')
    a(f'v_max3_f32 v{t_}, v{t_}, v{sv[8]}, v{sv[9]}')
    a(f'v_max_f32 v{m_}, v{m_}, v{t_}\nv_max_f32 v{t_}, v{m_}, v{t_}')
    Vn(); P(1)
    a(f'v_permlane32_swap_b32 v{m_}, v{t_}\nv_max_f32 v{m_}, v{m_}, v{t_}\nv_max_f32 v{t_}, v{m_}, v{t_}')
    Vn(); P(1)
    a(f'v_permlane16_swap_b32 v{m_}, v{t_}\nv_max_f32 v{m_}, v{m_}, v{t_}\nv_mul_f32 v{m_}, s{sC}, v{m_}')
    while V: Vn()
    def fm(r): a(f'v_fma_f32 v{r}, v{r}, s{sC}, -v{m_}')
    def ex(r): a(f'v_exp_f32 v{r}, v{r}'); P(1)
    fm(sv[8]); fm(sv[9]); ex(sv[8]); ex(sv[9])
    for i in range(4): fm(sv[i])
    SUM = SA+8
    a(f'v_cvt_pk_bf16_f32 v{vPM}, v{sv[8]}, v{sv[9]}')
    ex(sv[0]); ex(sv[1])
    a(f'v_mfma_f32_16x16x16_bf16 {vr(SUM,4)}, {vr(vONE,2)}, {vr(vPM,2)}, 0')
    ex(sv[2]); ex(sv[3])
    for x in red(VA, vT): a(x)
    a(f'v_cvt_pk_bf16_f32 v{PX}, v{sv[0]}, v{sv[1]}\nv_cvt_pk_bf16_f32 v{PX+1}, v{sv[2]}, v{sv[3]}')
    for x in red(VA+4, vT+2): a(x)
    a(f'v_mfma_f32_16x16x16_bf16 {vr(SUM,4)}, {vr(vONE,2)}, {vr(PX,2)}, {vr(SUM,4)}')
    a(f'v_bfi_b32 v{vT}, 1, s{sTKM}, v{vT}')
    for i in range(4, 6): fm(sv[i])
    if not cfg.get('x_nokm'): a(f'buffer_store_dwordx4 {vr(vT,4)}, v{vL16}, {WS}, s{sKM} offen sc1')
    a(f'v_mfma_f32_16x16x16_bf16 {vr(VA,4)}, {vr(vT,2)}, {vr(vPM,2)}, 0')
    for i in range(6, 8): fm(sv[i])
    a(f'v_mfma_f32_16x16x16_bf16 {vr(VA+4,4)}, {vr(vT+2,2)}, {vr(vPM,2)}, 0')
    for i in range(4, 8): ex(sv[i])
    a(f's_cmp_eq_u32 s{sStep}, 63')
    a(f'v_cvt_pk_bf16_f32 v{PX+2}, v{sv[4]}, v{sv[5]}\nv_cvt_pk_bf16_f32 v{PX+3}, v{sv[6]}, v{sv[7]}')
    a('s_cbranch_scc1 L_rec_last')
    T(4)
    a(f'v_mfma_f32_16x16x16_bf16 {vr(SUM,4)}, {vr(vONE,2)}, {vr(PX+2,2)}, {vr(SUM,4)}')
    a(f'v_mfma_f32_16x16x32_bf16 {vr(VA,4)}, {vr(VC,4)}, {vr(PX,4)}, {vr(VA,4)}')
    a(f'v_mfma_f32_16x16x32_bf16 {vr(VA+4,4)}, {vr(VC+4,4)}, {vr(PX,4)}, {vr(VA+4,4)}')
    P(16)
    a(f'v_rcp_f32 v{SUM}, v{SUM}')
    O_ = SA
    for t in range(2):
        for r in range(4): a(f'v_mul_f32 v{VA+4*t+r}, v{SUM}, v{VA+4*t+r}')
        a(f'v_cvt_pk_bf16_f32 v{O_+2*t}, v{VA+4*t}, v{VA+4*t+1}\nv_cvt_pk_bf16_f32 v{O_+2*t+1}, v{VA+4*t+2}, v{VA+4*t+3}')
    a(f"""s_mov_b64 exec, s[{sVal}:{sVal+1}]
    ds_write2_b32 v{vOw}, v{O_}, v{O_+1} offset0:0 offset1:4
    ds_write2_b32 v{vOw}, v{O_+2}, v{O_+3} offset0:8 offset1:12
    s_mov_b64 exec, -1
    v_mfma_f32_32x32x8_bf16 {vr(QK,16)}, {vr(vPM,2)}, {vr(vPM+2,2)}, 0
    v_mfma_f32_32x32x8_bf16 {vr(QK+16,16)}, {vr(vPM,2)}, {vr(vPM+2,2)}, 0
    s_waitcnt lgkmcnt(0)
    s_barrier
    ds_read_b128 {vr(SA,4)}, v{vOr}
    ds_read_b128 {vr(SA+4,4)}, v{vOr} offset:128""")
    T(5)
    qd = ['o0', 'o1']
    def need(tags):
        last = max([k for k, x in enumerate(qd) if x in tags], default=-1)
        if last >= 0:
            a(f's_waitcnt lgkmcnt({len(qd)-1-last})'); del qd[:last+1]
    PK = SA+8; PK2 = vT
    valu = []
    def pack(ct):
        d = (PK, PK2)[ct//4] + ct % 4
        return red(QK+4*ct, d)
    for i in range(16):
        ct, kb = seq[i]; sl = slots[i % 8]
        need({f'f{i}', f'o{kb}'})
        a(f'v_smfmac_f32_16x16x64_bf16 {vr(QK+4*ct,4)}, {vr(SA+4*kb,4)}, {vr(sl,8)}, v{vIdx}')
        if i + 8 < 16:
            for x in word(i+8): a(x)
            qd += [f'f{i+8}']*2
        if i == 5: valu += pack(0) + pack(1)
        if i == 9: valu += pack(2) + pack(3) + [f'v_bfi_b32 v{PK}, 1, s{sTag}, v{PK}', f'buffer_store_dwordx4 {vr(PK,4)}, v{vPst}, {WS}, s{sPB0} offen']
        if i == 13: valu += pack(4) + pack(5)
        n = 1 if i < 8 else 2
        for x in valu[:n]: a(x)
        del valu[:n]
    for x in valu: a(x)
    for x in pack(6) + pack(7): a(x)
    a(f'v_bfi_b32 v{PK2}, 1, s{sTag}, v{PK2}\nbuffer_store_dwordx4 {vr(PK2,4)}, v{vPst}, {WS}, s{sPB1} offen')
    T(6)
    a(f's_add_u32 s{sStep}, s{sStep}, 1\ns_add_u32 s{sNeed}, s{sStep}, 2\ns_cmp_lg_u32 s{sW}, 0\ns_cbranch_scc1 L_rec_nored')
    def rloads(r):
        for i in range(8): a(f'buffer_load_dwordx4 {vr(r+4*i,4)}, v{vL16}, {WS}, s{sPR0 if i < 4 else sPR1} offen offset:{(i%4)*1024} sc1')
    SEL = SA+4; D_ = SA+8; AD = VC; F_ = VC+1
    a(f"""v_bfe_u32 v{AD}, v{vL16}, 4, 4
    v_and_b32 v{F_}, 1, v{AD}
    v_lshlrev_b32 v{F_+1}, 4, v{F_}
    v_mov_b32 v{F_+2}, 0x3f80
    v_lshlrev_b32 v{F_+1}, v{F_+1}, v{F_+2}
    v_lshrrev_b32 v{F_+2}, 1, v{AD}""")
    for k in range(4): a(f'v_cmp_eq_u32 vcc, {k}, v{F_+2}\nv_cndmask_b32 v{SEL+k}, 0, v{F_+1}, vcc')
    rg = cfg.get('r_gap', 0)
    if rg == 0: rloads(MA)
    a(f"""v_lshlrev_b32 v{F_}, 5, v{F_}
    v_bfe_u32 v{F_+1}, v{AD}, 2, 1
    v_lshl_or_b32 v{F_}, v{F_+1}, 4, v{F_}
    v_bfe_u32 v{F_+1}, v{AD}, 1, 1
    v_lshl_or_b32 v{F_}, v{F_+1}, 3, v{F_}
    v_lshrrev_b32 v{F_+1}, 8, v{vL16}
    v_lshl_or_b32 v{AD}, v{F_+1}, 6, v{F_}""")
    kv_addr(a, ring)
    if rg: rloads(MA)
    a('s_mov_b32 s7, 0\nL_rec_rr:')
    def rround(r, ok):
        for i in range(8):
            a(f's_waitcnt vmcnt({15-i})')
            a(f'v_mfma_f32_16x16x32_bf16 {vr(D_,4)}, {vr(r+4*i,4)}, {vr(SEL,4)}, {"0" if i == 0 else vr(D_,4)}')
            if i % 2: a(f'v_bitop3_b32 v{F_+i//2}, v{r+4*i-4}, v{r+4*i}, s{sTag} bitop3:0x7e')
        a(f"""v_or3_b32 v{F_}, v{F_}, v{F_+1}, v{F_+2}
        v_bitop3_b32 v{F_}, v{F_}, v{F_+3}, 1 bitop3:0xa8
        v_cmp_ne_u32 vcc, 0, v{F_}
        s_cbranch_vccz {ok}""")
    rloads(KX); rround(MA, 'L_rec_red')
    rloads(MA); rround(KX, 'L_rec_red')
    timeout_fix(a, 7, 14, 'L_rec_rr')
    a('L_rec_red:')
    T(7)
    if tm: a('s_mov_b32 s62, s7')
    a(f"""v_cvt_pk_bf16_f32 v{D_}, v{D_}, v{D_+1}
    v_cvt_pk_bf16_f32 v{D_+1}, v{D_+2}, v{D_+3}
    v_bfi_b32 v{D_}, 1, s{sTag}, v{D_}
    s_mov_b64 exec, s[{sLo}:{sLo+1}]
    buffer_store_dwordx2 {vr(D_,2)}, v{AD}, {WS}, s{sMst} offen
    s_mov_b64 exec, -1
    s_barrier""")
    T(8)
    if tm: time_dump(a)
    a('s_branch L_rec_loop\nL_rec_nored:')
    kv_addr(a, ring)
    a('s_barrier')
    T(8)
    if tm: time_dump(a)
    a('s_branch L_rec_loop\nL_rec_kvwait:')
    poll_ge(a, vPM+1, sFKV, sNeed, SA+4, 13, 4)
    a(f"""s_branch L_rec_kvok
    L_rec_last:
    buffer_wbl2 sc1""")
    if cfg.get('memtime'):
        a(f"""s_memrealtime s[70:71]
        s_waitcnt lgkmcnt(0)
        s_sub_u32 s70, s70, s98
        s_sub_u32 s100, s100, s98
        v_mov_b32 v16, s100
        v_mov_b32 v17, s70
        v_mov_b32 v18, 0
        s_lshl_b32 s6, s{sX}, 5
        s_add_u32 s6, s6, s{sR}
        s_lshl_b32 s6, s6, 3
        s_add_u32 s6, s6, {TIM:#x}
        s_mov_b64 exec, 1
        buffer_store_dwordx2 v[16:17], v18, {WS}, s6 offen""")
    a('s_waitcnt vmcnt(0)\ns_endpgm')

def time_dump(a):
    a(f'''s_waitcnt lgkmcnt(0)
    s_lshl_b32 s6, s{sX}, 5
    s_add_u32 s6, s6, s{sR}
    s_lshl_b32 s6, s6, 2
    s_add_u32 s6, s6, s{sW}
    s_lshl_b32 s6, s6, 6
    s_add_u32 s6, s6, s{sStep}
    s_lshl_b32 s6, s6, 6
    s_add_u32 s6, s6, {160*MB_}''')
    for k in range(9): a(f'v_mov_b32 v{QK+k}, s{70+2*k}')
    a(f'v_mov_b32 v{QK+9}, s62\nv_mov_b32 v{QK+10}, s63')
    a(f'''s_mov_b64 exec, 1
    buffer_store_dwordx4 {vr(QK,4)}, v{vPM+1}, {WS}, s6 offen
    buffer_store_dwordx4 {vr(QK+4,4)}, v{vPM+1}, {WS}, s6 offen offset:16
    buffer_store_dwordx4 {vr(QK+8,4)}, v{vPM+1}, {WS}, s6 offen offset:32
    s_mov_b64 exec, -1''')
```

```python
import sys
from common import *
import rec, p, o, c, pro
def build(cfg):
    a = Asm(); CFG.clear(); CFG.update(cfg)
    a('; @launch grid=(256,1,1) block=(256,1,1) lds=163840')
    a('.amdgcn_target "amdgcn-amd-amdhsa--gfx950"')
    a(kernel_head(NAME))
    prologue(a, cfg)
    roles = cfg.get('roles', range(8))
    lab = {0: 'L_rec', 1: 'L_rec', 2: 'L_p', 3: 'L_p', 4: 'L_p', 5: 'L_p', 6: 'L_o', 7: 'L_c'}
    if cfg.get('pro_only'):
        for x in (1, 4, 5, 6): a(f's_cmp_eq_u32 s{sX}, {x}\ns_cbranch_scc1 L_pro')
    for x in roles:
        a(f's_cmp_eq_u32 s{sX}, {x}\ns_cbranch_scc1 {lab[x]}')
    signal_done(a)
    a('s_waitcnt vmcnt(0)\ns_endpgm')
    epilogue(a)
    if 0 in roles or 1 in roles: rec.rec(a, cfg)
    if set(roles) & {2, 3, 4, 5}: p.p(a, cfg)
    if 6 in roles: o.o(a, cfg)
    if cfg.get('integ'):
        pro.pro(a, cfg)
        a(f's_cmp_eq_u32 s{sX}, 1\ns_cbranch_scc1 L_rec2\ns_cmp_eq_u32 s{sX}, 6\ns_cbranch_scc1 L_o2\ns_branch L_p2')
    if 7 in roles: c.c(a, cfg)
    if cfg.get('pro_only'):
        pro.pro(a, cfg); a('s_waitcnt vmcnt(0)\ns_endpgm')
    return a.text(verbose=cfg.get('verbose', False)) + kernel_desc(NAME, 512, 256)
if __name__ == '__main__':
    cfg = eval(sys.argv[2]) if len(sys.argv) > 2 else {}
    open(sys.argv[1], 'w').write(build(cfg))
```

```python
from common import *
from rec import timeout_fix
UROW = 4128
L_K, L_U, L_X2, L_TB, L_F = 0, 73728, 139776, 147968, 150016
vL16, vZ, vF = 0, 1, 2
sS, sNeed, sA, sB, sTag, sRes0, sOP0, sFOP, sST, sO = range(32, 42)

def unpack(a, dlo, dhi, src): a(f'v_lshlrev_b32 v{dlo}, 16, v{src}\nv_and_b32 v{dhi}, 0xffff0000, v{src}')

def lds_wait(a, off, n, need, t, code):
    L = a.lab('lw'); Lo = a.lab('lwo')
    a(f's_mov_b32 s7, 0\n{L}:\nds_read_b{32*n} {vr(t,n)}, v{vF} offset:{off}\ns_waitcnt lgkmcnt(0)')
    if n == 2: a(f'v_min_i32 v{t}, v{t}, v{t+1}')
    a(f'v_cmp_gt_i32 vcc, s{need}, v{t}\ns_cbranch_vccz {Lo}')
    spin_check(a, 7, code, L)
    a(f'{Lo}:')

def tdump(a, n, v):
    a(f'''s_waitcnt lgkmcnt(0)
    s_lshl_b32 s6, s{sX}, 5
    s_add_u32 s6, s6, s{sR}
    s_lshl_b32 s6, s6, 2
    s_add_u32 s6, s6, s{sW}
    s_lshl_b32 s6, s6, 6
    s_add_u32 s6, s6, s{sS}
    s_lshl_b32 s6, s6, 6
    s_add_u32 s6, s6, {160*MB_}''')
    for k in range(n): a(f'v_mov_b32 v{v+k}, s{70+2*k}')
    a('s_mov_b64 exec, 1')
    for k in range(0, n, 4): a(f'buffer_store_dwordx4 {vr(v+k,4)}, v{vZ}, {WS}, s6 offen offset:{4*k}')
    a('s_mov_b64 exec, -1')

def c(a, cfg):
    tm = cfg.get('c_time', 0)
    def T(slot):
        if tm: a(f's_mem{"real" if cfg.get("rt") else ""}time s[{70+2*slot}:{71+2*slot}]')
    a('L_c:')
    a(f'''v_lshlrev_b32 v4, 2, v0
    v_lshlrev_b32 v{vL16}, 4, v0
    v_mov_b32 v{vZ}, 0
    v_mov_b32 v{vF}, {L_F}
    s_lshl_b32 s6, s{sR}, 8
    s_add_u32 s6, s6, {ST2:#x}
    s_add_u32 s7, s6, 0x2000
    buffer_store_dword v{vZ}, v4, {WS}, s6 offen sc1
    buffer_store_dword v{vZ}, v4, {WS}, s7 offen sc1
    s_lshl_b32 s6, s{sR}, 3
    s_add_u32 s6, s6, {FX3:#x}
    s_mov_b64 exec, 3
    buffer_store_dword v{vZ}, v4, {WS}, s6 offen sc1
    s_mov_b64 exec, -1''')
    signal_done(a, 'vmcnt(0)', 6)
    a(f'''v_bfe_u32 v5, v{vL16}, 5, 4
    v_mul_u32_u24 v5, {UROW}, v5
    v_and_b32 v6, 16, v{vL16}
    v_add3_u32 v5, v5, v6, v{vZ}''')
    for r in range(8, 12): a(f'v_mov_b32 v{r}, 0')
    a(f'ds_write_b128 v5, v[8:11] offset:{L_U - 65536}' .replace('v5, v[', 'v7, v[') if False else f'v_add_u32 v5, {L_U}, v5\nds_write_b128 v5, v[8:11]\nds_write_b128 v{vF}, v[8:11]')
    for r in range(256): a(f'v_accvgpr_write_b32 a{r}, 0')
    wait_done(a, 8, 9, 40, 1)
    a(f'''v_and_b32 v4, 60, v4
    s_lshl_b32 s6, s{sR}, 6
    s_add_u32 s{sA}, s6, {FX1:#x}
    s_mov_b32 s{sNeed}, 1''')
    poll_ge(a, 4, sA, sNeed, 8, 41, 1)
    a(f's_mul_i32 s{sA}, s{sR}, {16*KT_ROW}\ns_mul_i32 s{sB}, s{sW}, {18*1024}\ns_add_u32 s{sA}, s{sA}, s{sB}\ns_add_u32 s{sA}, s{sA}, {KT:#x}')
    for i in range(18):
        if i % 4 == 0: a(f's_add_u32 m0, s{sB}, {L_K + i*1024}\ns_add_u32 s6, s{sA}, {i*1024}')
        a(f'buffer_load_dwordx4 v{vL16}, {WS}, s6 offen offset:{(i%4)*1024} lds')
    a(f'''s_mov_b32 s{sS}, 0
    s_waitcnt vmcnt(0) lgkmcnt(0)
    s_barrier
    s_cmp_ge_u32 s{sW}, 2
    s_cbranch_scc1 L_c_res''')
    vKa, vUa, vTw, vTr, vUr, vXr, vSt, vK0, vD, vV = 4, 5, 6, 7, 8, 9, 10, 11, 12, 13
    AF, BF, Y, UU, X2, t = 16, 48, 80, 84, 86, 88
    sM = 42
    srd(a, 16, P_DS, 1024)
    a(f'''v_bfe_u32 v16, v{vL16}, 4, 4
    v_lshrrev_b32 v17, 8, v{vL16}
    v_lshrrev_b32 v18, 7, v{vL16}
    s_lshl_b32 s6, s{sR}, 5
    s_lshl_b32 s7, s{sW}, 4
    s_add_u32 s6, s6, s7
    v_lshlrev_b32 v19, 1, v18
    buffer_load_ushort v{vD}, v19, s[16:19], s6 offen
    s_mul_i32 s6, s{sW}, {8*KT_ROW}
    v_mul_u32_u24 v19, {KT_ROW}, v18
    v_add_u32 v19, s6, v19
    ds_read_b32 v{vK0}, v19 offset:{L_K + 4576}
    s_add_u32 s6, s6, {L_K + 480}
    v_lshlrev_b32 v19, 5, v16
    v_sub_u32 v19, s6, v19
    v_lshl_add_u32 v{vKa}, v17, 4, v19
    s_mul_i32 s6, s{sW}, {8*UROW}
    s_add_u32 s6, s6, {L_U}
    v_lshlrev_b32 v19, 1, v16
    v_lshl_add_u32 v19, v17, 4, v19
    v_add_u32 v{vUa}, s6, v19
    v_mul_u32_u24 v19, {UROW}, v18
    v_bfe_u32 v20, v{vL16}, 1, 6
    v_add3_u32 v19, v19, v20, s6
    v_add_u32 v{vUr}, 32, v19
    s_lshl_b32 s6, s{sW}, 10
    s_add_u32 s6, s6, {L_TB}
    v_add_u32 v{vTr}, s6, v{vL16}
    v_and_b32 v19, 1, v16
    v_lshlrev_b32 v19, 6, v19
    v_lshl_add_u32 v19, v17, 4, v19
    v_add_u32 v{vTw}, s6, v19
    v_lshrrev_b32 v{vSt}, 1, v{vL16}
    s_lshl_b32 s6, s{sW}, 9
    s_add_u32 s{sB}, s6, {L_X2}
    s_lshl_b32 s7, s{sR}, 10
    s_add_u32 s6, s6, s7
    s_add_u32 s{sST}, s6, {XT[1]:#x}
    s_lshl_b32 s6, s{sR}, 3
    s_lshl_b32 s7, s{sW}, 2
    s_add_u32 s6, s6, s7
    s_add_u32 s{sFOP}, s6, {FX3:#x}
    v_add_u32 v14, s7, v{vF}
    s_waitcnt vmcnt(0) lgkmcnt(0)
    v_lshlrev_b32 v{vD}, 16, v{vD}''')
    UA, RW, vSh = 104, 112, 15
    a(f'v_and_b32 v{vSh}, 2, v{vUa}\nv_and_b32 v{vUa}, -4, v{vUa}')
    for cl in range(8): a(f'v_add_u32 v{UA+cl}, {cl*UROW}, v{vUa}')
    def kb(i, cl, T_): return f'ds_read_b128 {vr(BF+4*(i%8),4)}, v{vKa} offset:{cl*KT_ROW + 512*(7-T_)}'
    def mf(i, cl, T_):
        acc = ar(32*cl + 4*T_, 4)
        return f'v_mfma_f32_16x16x32_bf16 {acc}, {vr(AF+4*cl,4)}, {vr(BF+4*(i%8),4)}, {acc}'
    for T0 in range(8):
        Lp = f'L_c_conv{T0}'
        a(f'''{Lp}:
        s_add_u32 s{sNeed}, s{sS}, 1
        s_and_b32 s6, s{sS}, 7
        s_lshl_b32 s7, s6, 10
        s_add_u32 s7, s7, s{sB}
        v_add_u32 v{vXr}, s7, v{vSt}
        s_lshl_b32 s6, s6, 1
        s_lshl_b32 s{sM}, 0x30003, s6
        v_mov_b32 v{vV}, s{sNeed}''')
        for cl in range(8): a(kb(cl, cl, T0))
        lds_wait(a, 0, 1, sNeed, t, 42)
        T(0)
        rest = [(cl, T_) for T_ in range(T0+1, 8) for cl in range(8)]
        qd = []
        def ds(x, tag): a(x); qd.append(tag)
        def need(tag):
            last = max([k for k, x in enumerate(qd) if x == tag], default=-1)
            if last >= 0:
                a(f's_waitcnt lgkmcnt({len(qd)-1-last})'); del qd[:last+1]
        def ur(cl):
            r = RW + 6*(cl % 4)
            ds(f'ds_read2_b32 {vr(r,2)}, v{UA+cl} offset0:0 offset1:1', f'u{cl}')
            ds(f'ds_read2_b32 {vr(r+2,2)}, v{UA+cl} offset0:2 offset1:3', f'u{cl}')
            ds(f'ds_read_b32 v{r+4}, v{UA+cl} offset:16', f'u{cl}')
        for cl in range(4): ur(cl)
        for cl in range(8):
            need(f'u{cl}')
            r = RW + 6*(cl % 4)
            for d in range(4): a(f'v_alignbyte_b32 v{AF+4*cl+d}, v{r+d+1}, v{r+d}, v{vSh}')
            if cl < 4: ur(cl + 4)
            if cl == 4: ds(f'ds_read_b64 {vr(UU,2)}, v{vUr}', 'x'); ds(f'ds_read_b64 {vr(X2,2)}, v{vXr}', 'x')
            if cl > 0:
                a(mf(cl-1, cl-1, T0))
        a(mf(7, 7, T0))
        need('x')
        for cl in range(min(8, len(rest))): a(kb(cl, *rest[cl]))
        a(f's_mov_b32 exec_lo, s{sM}\ns_mov_b32 exec_hi, s{sM}')
        for cl in range(8): a(f'ds_write_b128 v{vTw}, {ar(32*cl+4*T0,4)} offset:{cl*128}')
        a(f's_mov_b64 exec, -1\nds_read_b128 {vr(Y,4)}, v{vTr}\nds_write_b32 v14, v{vV} offset:8')
        U4, D4, X4 = t, t+4, t+8
        for h in range(2): unpack(a, U4+2*h, U4+2*h+1, UU+h)
        for h in range(2): unpack(a, X4+2*h, X4+2*h+1, X2+h)
        for r in range(4): a(f'v_mul_f32 v{D4+r}, v{U4+r}, v{vD}')
        for h in range(2): a(f'v_cvt_pk_bf16_f32 v{UU+h}, v{D4+2*h}, v{D4+2*h+1}')
        for h in range(2): unpack(a, D4+2*h, D4+2*h+1, UU+h)
        a('s_waitcnt lgkmcnt(1)')
        for r in range(4): a(f'v_fmac_f32 v{Y+r}, v{U4+r}, v{vK0}')
        def rnd(R):
            for h in range(2): a(f'v_cvt_pk_bf16_f32 v{UU+h}, v{R+2*h}, v{R+2*h+1}')
        rnd(Y)
        for add in (D4, X4):
            for h in range(2): unpack(a, Y+2*h, Y+2*h+1, UU+h)
            for r in range(4): a(f'v_add_f32 v{Y+r}, v{Y+r}, v{add+r}')
            rnd(Y)
        a(f'buffer_store_dwordx2 {vr(UU,2)}, v{vSt}, {WS}, s{sST} offen sc1')
        T(1)
        for i, (cl, T_) in enumerate(rest):
            if i >= 8: a(f's_waitcnt lgkmcnt({min(7, len(rest)-1-i)})')
            a(mf(i, cl, T_))
            if i + 8 < len(rest): a(kb(i, *rest[i+8]))
        T(2)
        for cl in range(8): a(f'v_add_u32 v{UA+cl}, 64, v{UA+cl}')
        a(f'''v_add_u32 v{vKa}, 64, v{vKa}
        v_add_u32 v{vUr}, 64, v{vUr}
        s_add_u32 s{sST}, s{sST}, 0x8000
        s_waitcnt vmcnt(0)
        s_mov_b64 exec, 1
        buffer_store_dword v{vV}, v{vZ}, {WS}, s{sFOP} offen sc1
        s_mov_b64 exec, -1''')
        T(3)
        if tm: tdump(a, 4, 100)
        a(f's_add_u32 s{sS}, s{sS}, 1\ns_and_b32 s6, s{sS}, 7\ns_cbranch_scc1 {Lp}')
    a('s_waitcnt vmcnt(0)\ns_endpgm')
    vRa, vFa, vSa, vUw, vXw, vO = 4, 5, 6, 7, 8, 9
    PT, RS_, X_, XP, S1, G = 16, 32, 40, 48, 52, 64
    a('L_c_res:')
    srd(a, 16, P_OUT, 2048*1024)
    a(f'''s_and_b32 s6, s{sW}, 1
    s_mul_i32 s{sRes0}, s6, {XT[1]-XT[0]:#x}
    s_mul_i32 s{sOP0}, s6, {OP[1]-OP[0]:#x}
    s_lshl_b32 s{sFOP}, s6, 11
    s_lshl_b32 s7, s{sR}, 10
    s_add_u32 s{sRes0}, s{sRes0}, s7
    s_add_u32 s{sRes0}, s{sRes0}, {XT[0]:#x}
    s_add_u32 s{sOP0}, s{sOP0}, s7
    s_add_u32 s{sOP0}, s{sOP0}, {OP[0]:#x}
    s_lshr_b32 s6, s{sR}, 3
    s_lshl_b32 s6, s6, 7
    s_add_u32 s{sFOP}, s{sFOP}, s6
    s_and_b32 s6, s{sR}, 6
    s_lshl_b32 s6, s6, 1
    s_add_u32 s{sFOP}, s{sFOP}, s6
    s_add_u32 s{sFOP}, s{sFOP}, {FOP:#x}
    s_lshl_b32 s{sO}, s{sR}, 5
    v_bfe_u32 v16, v{vL16}, 4, 5
    v_lshrrev_b32 v17, 9, v{vL16}
    v_lshlrev_b32 v18, 1, v16
    v_lshl_or_b32 v{vRa}, v17, 8, v18
    v_add_u32 v{vXw}, {L_X2}, v{vRa}
    v_mul_u32_u24 v19, {4*UROW}, v17
    v_add_u32 v19, v19, v18
    v_add_u32 v{vUw}, {L_U + 32}, v19
    v_bfe_u32 v19, v{vL16}, 4, 2
    v_lshlrev_b32 v{vFa}, 9, v19
    v_lshrrev_b32 v{vSa}, 1, v{vL16}
    v_lshlrev_b32 v19, 10, v16
    v_lshl_or_b32 v{vO}, v17, 3, v19
    L_c_rloop:
    s_add_u32 s{sNeed}, s{sS}, 1''')
    poll_ge(a, vFa, sFOP, sNeed, PT, 43, 1)
    T(0)
    for q in range(4): a(f's_add_u32 s6, s{sOP0}, {q*32768}\nbuffer_load_dwordx4 {vr(PT+4*q,4)}, v{vL16}, {WS}, s6 offen')
    for v in range(8): a(f'buffer_load_ushort v{RS_+v}, v{vRa}, {WS}, s{sRes0} offen offset:{(8*(v//4) + v % 4)*64}')
    a(f's_add_u32 s{sOP0}, s{sOP0}, 0x20000\ns_add_u32 s{sRes0}, s{sRes0}, 0x8000')
    for q in range(4):
        a(f's_waitcnt vmcnt({11-q})')
        for h in range(4):
            if q == 0: unpack(a, X_+2*h, X_+2*h+1, PT+h)
            else:
                unpack(a, S1, S1+1, PT+4*q+h)
                a(f'v_add_f32 v{X_+2*h}, v{X_+2*h}, v{S1}\nv_add_f32 v{X_+2*h+1}, v{X_+2*h+1}, v{S1+1}')
    for h in range(4): a(f'v_cvt_pk_bf16_f32 v{XP+h}, v{X_+2*h}, v{X_+2*h+1}')
    for h in range(4): unpack(a, X_+2*h, X_+2*h+1, XP+h)
    a('s_waitcnt vmcnt(0)')
    for v in range(8): a(f'v_lshlrev_b32 v{RS_+v}, 16, v{RS_+v}')
    for v in range(8): a(f'v_add_f32 v{X_+v}, v{X_+v}, v{RS_+v}')
    for h in range(4): a(f'v_cvt_pk_bf16_f32 v{XP+h}, v{X_+2*h}, v{X_+2*h+1}')
    T(1)
    a(f'''s_cmp_eq_u32 s{sW}, 2
    s_cbranch_scc1 L_c_ln
    buffer_store_dwordx2 {vr(XP,2)}, v{vO}, s[16:19], s{sO} offen
    buffer_store_dwordx2 {vr(XP+2,2)}, v{vO}, s[16:19], s{sO} offen offset:16
    s_add_u32 s{sO}, s{sO}, 0x8000
    s_branch L_c_rnext
    L_c_ln:''')
    for h in range(4): unpack(a, X_+2*h, X_+2*h+1, XP+h)
    a(f'v_add_f32 v{S1}, v{X_}, v{X_+1}\nv_mul_f32 v{S1+1}, v{X_}, v{X_}\nv_fmac_f32 v{S1+1}, v{X_+1}, v{X_+1}')
    for v in range(2, 8): a(f'v_add_f32 v{S1}, v{S1}, v{X_+v}\nv_fmac_f32 v{S1+1}, v{X_+v}, v{X_+v}')
    def halves(): a(f'''v_mov_b32 v{S1+2}, v{S1}
    v_mov_b32 v{S1+3}, v{S1+1}
    v_permlane32_swap_b32 v{S1}, v{S1+2}
    v_permlane32_swap_b32 v{S1+1}, v{S1+3}
    v_add_f32 v{S1}, v{S1}, v{S1+2}
    v_add_f32 v{S1+1}, v{S1+1}, v{S1+3}''')
    a(f'''s_lshr_b32 s6, s{sS}, 1
    s_andn2_b32 s{sTag}, 1, s6
    s_and_b32 s6, s{sS}, 1
    s_lshl_b32 s6, s6, 13
    s_add_u32 s{sA}, s6, {ST2:#x}
    s_add_u32 s{sB}, s{sA}, 4096
    s_lshl_b32 s6, s{sR}, 8
    s_add_u32 s6, s6, s{sA}''')
    halves()
    a(f'''v_bfi_b32 v{S1+1}, 1, s{sTag}, v{S1+1}
    s_mov_b32 exec_hi, 0
    buffer_store_dwordx2 {vr(S1,2)}, v{vSa}, {WS}, s6 offen
    s_cmp_lg_u32 s{sS}, 63
    s_cbranch_scc1 L_c_nl
    buffer_store_dwordx2 {vr(S1,2)}, v{vSa}, {WS}, s6 offen sc1
    L_c_nl:
    s_mov_b32 exec_hi, -1''')
    def gl():
        for i in range(16): a(f'buffer_load_dwordx2 {vr(G+2*i,2)}, v{vSa}, {WS}, s{sA if i < 8 else sB} offen offset:{(i%8)*512} sc1')
    gl()
    a(f's_sub_u32 s{sNeed}, s{sS}, 7')
    lds_wait(a, 8, 2, sNeed, S1, 44)
    a(f's_and_b32 s6, s{sS}, 7\ns_lshl_b32 s6, s6, 10\nv_add_u32 v{S1}, s6, v{vXw}')
    def wr16(addr, pitch):
        for v in range(8):
            a(f'ds_write_b16{"_d16_hi" if v % 2 else ""} v{addr}, v{XP+v//2} offset:{(8*(v//4) + v % 4)*pitch}')
    wr16(S1, 64)
    a('s_mov_b32 s7, 0\nL_c_g:\ns_waitcnt vmcnt(0)')
    for i in range(8): a(f'v_bitop3_b32 v{PT+i}, v{G+4*i+1}, v{G+4*i+3}, s{sTag} bitop3:0x7e')
    a(f'''v_or3_b32 v{PT}, v{PT}, v{PT+1}, v{PT+2}
    v_or3_b32 v{PT+3}, v{PT+3}, v{PT+4}, v{PT+5}
    v_or3_b32 v{PT}, v{PT}, v{PT+6}, v{PT+7}
    v_bitop3_b32 v{PT}, v{PT}, v{PT+3}, 1 bitop3:0xa8
    v_cmp_ne_u32 vcc, 0, v{PT}
    s_cbranch_vccz L_c_gok''')
    gl()
    timeout_fix(a, 7, 45, 'L_c_g')
    a('L_c_gok:')
    T(2)
    n = 16
    while n > 1:
        n //= 2
        for i in range(n):
            d = S1 if n == 1 else G + 2*i
            a(f'v_add_f32 v{d}, v{G+2*i}, v{G+2*(i+n)}\nv_add_f32 v{d+1}, v{G+2*i+1}, v{G+2*(i+n)+1}')
    halves()
    ln_final(a, S1, S1+1, S1+2)
    for v in range(8): a(f'v_sub_f32 v{X_+v}, v{X_+v}, v{S1}')
    for h in range(4): a(f'v_cvt_pk_bf16_f32 v{XP+h}, v{X_+2*h}, v{X_+2*h+1}')
    for h in range(4): unpack(a, X_+2*h, X_+2*h+1, XP+h)
    for v in range(8): a(f'v_mul_f32 v{X_+v}, v{X_+v}, v{S1+1}')
    for h in range(4): a(f'v_cvt_pk_bf16_f32 v{XP+h}, v{X_+2*h}, v{X_+2*h+1}')
    a(f's_add_u32 s6, s{sS}, 1\nv_mov_b32 v{S1}, s6')
    wr16(vUw, UROW)
    a(f'ds_write_b32 v{vF}, v{S1}\nv_add_u32 v{vUw}, 64, v{vUw}')
    T(3)
    a('L_c_rnext:')
    if tm: tdump(a, 4, 100)
    a(f'''s_add_u32 s{sS}, s{sS}, 1
    s_cmp_lt_u32 s{sS}, 64
    s_cbranch_scc1 L_c_rloop''')
    mark(a, cfg, 8, 16)
    a('s_waitcnt vmcnt(0)\ns_endpgm')
```

```python
from asm import *
from layout import *
NAME = 'interleave_layers__ssm_conv_s4d__memory_aug_recurrent_mem_tr__prompt_kernel'
sW, sX, sR = 3, 4, 5
WS, DBG = 's[8:11]', 's[12:15]'
KA = 64
P_U, P_LA, P_AI, P_CR, P_CI, P_LDT, P_DS, P_BX, P_M0, P_WQ, P_WK, P_WV, P_WO, P_SL, P_OUT, P_DBG, P_WS = [KA + 2*i for i in range(17)]
SPIN = 1 << 17

def srd(a, s, ptr, nbytes):
    a(f's_mov_b32 s{s}, s{ptr}\ns_mov_b32 s{s+1}, s{ptr+1}\ns_mov_b32 s{s+2}, {nbytes:#x}\ns_mov_b32 s{s+3}, 0x20000')

def spin_check(a, cnt, code, retry):
    a(f'''s_add_u32 s{cnt}, s{cnt}, 1
    s_cmp_lt_u32 s{cnt}, {SPIN}
    s_cbranch_scc1 {retry}
    s_mov_b32 s6, {code}
    s_branch L_err''')

def bf16r(a, dst, src):
    a(f'v_cvt_pk_bf16_f32 v{dst}, v{src}, v{src}\nv_and_b32 v{dst}, 0xffff0000, v{dst}')

def ln_final(a, s1, s2, t):
    a(f'''v_mul_f32 v{s1}, 0x3b000000, v{s1}
    v_mul_f32 v{t}, v{s1}, v{s1}
    v_mul_f32 v{s2}, 0x3b000000, v{s2}
    v_sub_f32 v{s2}, v{s2}, v{t}
    v_max_f32 v{s2}, 0, v{s2}''')
    bf16r(a, s2, s2)
    a(f'v_add_f32 v{s2}, 0x3727c5ac, v{s2}')
    bf16r(a, s2, s2)
    a(f'v_sqrt_f32 v{s2}, v{s2}')
    bf16r(a, s1, s1)
    bf16r(a, s2, s2)
    a(f'v_rcp_f32 v{s2}, v{s2}')

CFG = {}
def signal_done(a, wait='vmcnt(0)', t=2):
    L = a.lab('sd')
    a(f's_waitcnt {wait}\ns_barrier')
    mark(a, CFG, 9, t)
    a(f'''s_cmp_lg_u32 s{sW}, 0
    s_cbranch_scc1 {L}
    s_mov_b64 exec, 1
    s_and_b32 s6, s{sX}, 3
    s_lshl_b32 s6, s6, 6
    v_mov_b32 v{t}, {D_DONE[0]*4}
    v_mov_b32 v{t+1}, 1
    buffer_atomic_add v{t+1}, v{t}, {DBG}, s6 offen sc1''')
    a(f'''s_mov_b64 exec, -1
    {L}:''')

def role_done(a, cfg, n):
    L = a.lab('rdn')
    if cfg.get('integ'): a(f's_lshr_b32 s6, 0x72, s{sX}\ns_bitcmp1_b32 s6, 0\ns_cbranch_scc1 {L}')
    signal_done(a, f'vmcnt({n})', 18)
    a(f'{L}:')

def wait_done(a, t0, t1, code, one=0):
    L = a.lab('wd'); Lo = a.lab('wdo')
    if one: a(f's_cmp_lg_u32 s{sW}, 0\ns_cbranch_scc1 {Lo}')
    a(f'''s_mov_b32 s7, 0
    v_mbcnt_lo_u32_b32 v{t0}, -1, 0
    v_and_b32 v{t0}, 3, v{t0}
    v_lshlrev_b32 v{t0}, 6, v{t0}
    {L}:
    buffer_load_dword v{t1}, v{t0}, {DBG}, 0 offen offset:{D_DONE[0]*4} sc1
    s_waitcnt vmcnt(0)
    v_cmp_ne_u32 vcc, 64, v{t1}
    s_cbranch_vccz {Lo}''')
    spin_check(a, 7, code, L)
    a(f'{Lo}:')
    if one: a('s_barrier')

def poll_ge(a, vaddr, soff, need, t, code, n=1, imm=0):
    L = a.lab('pl'); Lo = a.lab('plo')
    op = {1: 'dword', 2: 'dwordx2', 4: 'dwordx4'}[n]
    a(f'''s_mov_b32 s7, 0
    {L}:
    buffer_load_{op} {vr(t, n)}, v{vaddr}, {WS}, s{soff} offen offset:{imm} sc1
    s_waitcnt vmcnt(0)''')
    if n == 2: a(f'v_min_u32 v{t}, v{t}, v{t+1}')
    if n == 4: a(f'v_min_u32 v{t}, v{t}, v{t+1}\nv_min3_u32 v{t}, v{t}, v{t+2}, v{t+3}')
    a(f'v_cmp_gt_u32 vcc, s{need}, v{t}\ns_cbranch_vccz {Lo}')
    spin_check(a, 7, code, L)
    a(f'{Lo}:')

def mark(a, cfg, k, t, src=100):
    if not cfg.get('marks'): return
    a(f"""s_memrealtime s[100:101]
    s_waitcnt lgkmcnt(0)
    s_lshl_b32 s6, s{sX}, 5
    s_add_u32 s6, s6, s{sR}
    s_lshl_b32 s6, s6, 2
    s_add_u32 s6, s6, s{sW}
    s_lshl_b32 s6, s6, 2
    s_add_u32 s6, s6, {TIM + 0x1000*(k+1):#x}
    v_mov_b32 v{t}, s{src}
    v_mov_b32 v{t+1}, 0
    s_mov_b64 exec, 1
    buffer_store_dword v{t}, v{t+1}, {WS}, s6 offen
    s_mov_b64 exec, -1""")

def prologue(a, cfg):
    if cfg.get('memtime'): a('s_memrealtime s[98:99]')
    a(f'''s_cmp_ge_u32 s2, 256
    s_cbranch_scc1 L_end
    s_load_dwordx16 s[64:79], s[0:1], 0
    s_load_dwordx16 s[80:95], s[0:1], 64
    s_load_dwordx2 s[96:97], s[0:1], 128
    s_getreg_b32 s{sX}, hwreg(HW_REG_XCC_ID,0,4)
    v_lshrrev_b32 v1, 6, v0
    v_and_b32 v0, 63, v0
    s_and_b32 s{sX}, s{sX}, 7
    v_readfirstlane_b32 s{sW}, v1
    s_waitcnt lgkmcnt(0)''')
    srd(a, 12, P_DBG, 256); srd(a, 8, P_WS, 0x10000000); srd(a, 16, P_U, 2048*1024)
    def PT(k):
        if cfg.get('plt'): a(f's_memrealtime s[{48+2*k}:{49+2*k}]')
    PT(0)
    a(f'''s_lshl_b32 s6, s2, 3
    s_lshl_b32 s7, s{sW}, 1
    s_add_u32 s32, s6, s7
    s_lshl_b32 s6, s32, 10
    v_lshlrev_b32 v4, 5, v0
    buffer_load_dwordx4 v[40:43], v4, s[16:19], s6 offen
    buffer_load_dwordx4 v[44:47], v4, s[16:19], s6 offen offset:16''')
    Lt = a.lab('tk')
    a(f'''s_cmp_lg_u32 s{sW}, 0
    s_cbranch_scc1 {Lt}
    s_and_b32 s6, s{sX}, 3
    s_lshl_b32 s6, s6, 6
    s_and_b32 s7, s{sX}, 4
    s_add_u32 s6, s6, s7
    s_mov_b64 exec, 1
    v_mov_b32 v2, s6
    v_mov_b32 v3, 1
    buffer_atomic_add v3, v2, {DBG}, 0 offen sc0 sc1
    s_mov_b64 exec, -1
    {Lt}:''')
    PT(1)
    Lx = a.lab('xw')
    a(f's_cmp_lg_u32 s{sW}, 0\ns_waitcnt vmcnt(1)\ns_cbranch_scc0 {Lx}\ns_waitcnt vmcnt(0)\n{Lx}:')
    PT(2)
    a(f'''v_mov_b32 v5, 0
    v_mov_b32 v6, 0
    v_mov_b32 v7, 0x3f803f80''')
    for r in range(40, 48): a(f'v_dot2c_f32_bf16 v5, v{r}, v7\nv_dot2c_f32_bf16 v6, v{r}, v{r}')
    for m in ('quad_perm:[1,0,3,2]', 'quad_perm:[2,3,0,1]', 'row_half_mirror', 'row_mirror'):
        a(f'v_add_f32_dpp v5, v5, v5 {m} row_mask:0xf bank_mask:0xf\nv_add_f32_dpp v6, v6, v6 {m} row_mask:0xf bank_mask:0xf')
    a('''v_mov_b32 v8, v5
    v_mov_b32 v9, v6
    v_permlane16_swap_b32 v5, v8
    v_permlane16_swap_b32 v6, v9
    v_add_f32 v8, v5, v8
    v_add_f32 v9, v6, v9''')
    ln_final(a, 8, 9, 10)
    X, U = 16, 32
    for k in range(8):
        a(f'v_lshlrev_b32 v{X+2*k}, 16, v{24+16+k}\nv_and_b32 v{X+2*k+1}, 0xffff0000, v{24+16+k}')
    for k in range(16): a(f'v_sub_f32 v{X+k}, v{X+k}, v8')
    for k in range(8): a(f'v_cvt_pk_bf16_f32 v{U+k}, v{X+2*k}, v{X+2*k+1}')
    for k in range(8): a(f'v_lshlrev_b32 v{X+2*k}, 16, v{U+k}\nv_and_b32 v{X+2*k+1}, 0xffff0000, v{U+k}')
    for k in range(16): a(f'v_mul_f32 v{X+k}, v{X+k}, v9')
    for k in range(8): a(f'v_cvt_pk_bf16_f32 v{U+k}, v{X+2*k}, v{X+2*k+1}')
    a(f"""s_mov_b32 s6, 0x05040100
    s_mov_b32 s7, 0x07060302
    v_and_b32 v4, 31, v0
    v_mul_u32_u24 v4, 528, v4
    v_lshrrev_b32 v5, 5, v0
    v_lshl_add_u32 v4, v5, 8, v4
    s_lshl_b32 s34, s{sW}, 2
    s_add_u32 s34, s34, 64
    v_add_u32 v4, s34, v4""")
    for part in range(2):
        b = U + 8*part
        for k in range(4): a(f'v_permlane32_swap_b32 v{b+k}, v{b+k+4}')
        for k in range(4):
            for h in range(2):
                e = 2*k + h
                a(f'v_perm_b32 v{X+8*part+e}, v{b+k+4}, v{b+k}, s{6+h}')
                a(f'ds_write_b32 v4, v{X+8*part+e} offset:{(e//4)*128 + (e % 4)*16 + 64*part}')
    Lr = a.lab('rl'); Lok = a.lab('rok'); Lw = a.lab('row'); Lw2 = a.lab('row2')
    a(f'''s_cmp_lg_u32 s{sW}, 0
    s_cbranch_scc1 {Lr}
    s_waitcnt vmcnt(0)
    v_readfirstlane_b32 s{sR}, v3
    s_cmp_lt_u32 s{sR}, 32
    s_cbranch_scc1 {Lok}''')
    a(f'''s_mov_b64 exec, 1
    v_mov_b32 v2, {D_OVF*4}
    v_mov_b32 v3, 1
    buffer_atomic_add v3, v2, {DBG}, 0 offen sc0 sc1
    s_waitcnt vmcnt(0)
    v_readfirstlane_b32 s33, v3
    s_mov_b64 exec, -1
    s_mov_b32 s7, 0
    v_lshlrev_b32 v2, 2, v0
    {Lw}:
    buffer_load_dword v3, v2, {DBG}, 0 offen sc1
    s_waitcnt vmcnt(0)
    s_mov_b32 s34, 0''')
    for i in range(8): a(f'v_readlane_b32 s{40+i}, v3, {D_TICK[i]}')
    for i in range(8): a(f's_add_u32 s34, s34, s{40+i}')
    a(f's_cmp_eq_u32 s34, 256\ns_cbranch_scc1 {Lw2}')
    spin_check(a, 7, 1, Lw)
    a(f'{Lw2}:')
    for i in range(8):
        Ln = a.lab('ovn')
        a(f'''s_min_u32 s{sR}, s{40+i}, 32
        s_sub_u32 s35, 32, s{sR}
        s_cmp_ge_u32 s33, s35
        s_cbranch_scc1 {Ln}
        s_add_u32 s{sR}, s{sR}, s33
        s_mov_b32 s{sX}, {i}
        s_branch {Lok}
        {Ln}:
        s_sub_u32 s33, s33, s35''')
    a(f'''s_mov_b32 s6, 2
    s_branch L_err
    {Lok}:
    s_lshl_b32 s6, s{sX}, 5
    s_add_u32 s6, s6, s{sR}
    v_mov_b32 v2, 0
    v_mov_b32 v3, s6
    ds_write_b32 v2, v3
    {Lr}:''')
    a(f"""v_lshrrev_b32 v4, 5, v0
    s_lshl_b32 s6, s{sW}, 1
    v_add_u32 v4, s6, v4
    v_mul_u32_u24 v4, 528, v4
    v_and_b32 v5, 31, v0
    v_lshl_add_u32 v4, v5, 4, v4
    v_lshrrev_b32 v5, 3, v0
    v_lshlrev_b32 v5, 15, v5
    v_and_b32 v6, 7, v0
    v_lshl_or_b32 v5, v6, 4, v5
    s_lshl_b32 s6, s{sW}, 18
    s_lshl_b32 s7, s2, 7
    s_add_u32 s6, s6, s7
    s_add_u32 s6, s6, {UX:#x}
    s_waitcnt lgkmcnt(0)""")
    PT(3)
    a('s_barrier')
    PT(4)
    for k in range(4): a(f'ds_read_b128 {vr(X+4*k,4)}, v4 offset:{64 + k*8*528}')
    for k in range(4): a(f's_waitcnt lgkmcnt({3-k})\nbuffer_store_dwordx4 {vr(X+4*k,4)}, v5, {WS}, s6 offen sc1\ns_add_u32 s6, s6, {1 << 20}')
    a(f'''
    v_mov_b32 v2, 0
    ds_read_b32 v3, v2
    s_waitcnt lgkmcnt(0)
    v_readfirstlane_b32 s6, v3
    s_barrier
    s_lshr_b32 s{sX}, s6, 5
    s_and_b32 s{sX}, s{sX}, 7
    s_and_b32 s{sR}, s6, 31''')
    mark(a, cfg, 0, 2); mark(a, cfg, 6, 2, 98)
    if cfg.get('plt'):
        for k in range(5): mark(a, cfg, 10+k, 2, 48+2*k)

def epilogue(a):
    a(f'''L_err:
    s_mov_b64 exec, 1
    s_lshl_b32 s7, s{sX}, 2
    s_add_u32 s7, s7, {D_ERR*4}
    v_mov_b32 v2, s7
    v_mov_b32 v3, s6
    buffer_store_dword v3, v2, {DBG}, 0 offen sc1
    s_waitcnt vmcnt(0)
    L_end:
    s_endpgm''')
```

```python
from common import *
L_X, L_PK, PKX, L_T, L_RS, L_SP = 0, 0x8000, 0x18000, 0xE000, 0xF200, 0xF400
GQ = 1088
vL16, vXr, vKx, vQx, vVx, vTw, vTr, vMv, vRs, vRw, vONE, vPM, vCS, vMN, vMK = 0, 1, 2, 3, 4, 5, 6, 7, 8, 9, 10, 12, 16, 20, 24
AQ, AK, AV, XF, ST, RR, vPw, vOs, vL4, vFX = 32, 48, 64, 80, 92, 96, 112, 113, 114, 115
KMD, vSr, vSp = 116, 14, 15
WV = 128
sI, sSeg, sC, sLY, sH, sRep = 32, 33, 34, 35, 36, 37
sXT0, sKV0, sKM0, sOI0, sFKV, sFO, sFX, sXT, sKV, sKM, sOI, sNeed, sTag, sVal, sPre, sM0 = range(38, 54)

def wreg(m, r, n): return ar(128*m + r, n) if m < 2 else vr(WV + r, n)

def coop_weights(a, nch, dst, srdof, goff, done_cb, vG, vR, rowb, hish=3, rowof=lambda j: 16*(j//2) + 4*(j % 2)):
    a(f'''v_lshrrev_b32 v{vR}, 4, v{vL16}
    v_lshrrev_b32 v{vG}, 8, v{vL16}
    v_lshlrev_b32 v{vR+1}, 2, v{vG}
    v_and_b32 v{vR}, 15, v{vR}
    v_xor_b32 v{vR}, v{vR}, v{vR+1}
    v_mul_u32_u24 v{vG}, {rowb}, v{vG}
    v_lshl_add_u32 v{vG}, v{vR}, 4, v{vG}''')
    a(f'''v_bfe_u32 v{vR}, v{vL16}, 6, 2
    v_lshlrev_b32 v{vR+1}, 2, v{vR}
    v_bfe_u32 v{vR+2}, v{vL16}, 8, 1
    v_lshlrev_b32 v{vR+2}, 1, v{vR+2}
    v_bfe_u32 v{vR+3}, v{vL16}, 5, 1
    v_or_b32 v{vR+2}, v{vR+2}, v{vR+3}
    s_lshl_b32 s6, s{sW}, 2
    v_or_b32 v{vR+2}, s6, v{vR+2}
    v_xor_b32 v{vR+2}, v{vR+2}, v{vR+1}
    v_lshlrev_b32 v{vR+2}, 4, v{vR+2}
    v_bfe_u32 v{vR+3}, v{vL16}, 4, 1
    v_lshl_or_b32 v{vR+2}, v{vR+3}, 3, v{vR+2}
    v_bfe_u32 v{vR+3}, v{vL16}, 9, 1
    v_lshl_or_b32 v{vR}, v{vR+3}, {hish}, v{vR}
    v_lshl_or_b32 v{vR}, v{vR}, 8, v{vR+2}
    v_add_u32 v{vR+1}, 0x10000, v{vR}
    s_lshl_b32 s60, s{sW}, 13
    s_mul_i32 s63, s{sW}, {32*rowb}''')
    def issue(c):
        goff(c)
        a('s_add_u32 s61, s61, s63')
        for i in range(8):
            a(f'''s_add_u32 m0, s60, {(c % 4)*32768 + i*1024}
            s_add_u32 s62, s61, {i*4*rowb}
            buffer_load_dwordx4 v{vG}, s[{srdof(c)}:{srdof(c)+3}], s62 offen lds''')
    done_cb(0)
    for c in range(3): issue(c)
    for c in range(nch):
        a(f's_waitcnt vmcnt({8*min(2, nch-1-c)})\ns_barrier')
        if c + 3 < nch: issue(c + 3)
        b = c % 4
        for j in range(16):
            a(f'ds_read_b64_tr_b16 {dst(c, j)}, v{vR + b//2} offset:{(b % 2)*32768 + rowof(j)*256}')
        a('s_waitcnt lgkmcnt(0)')
    a('s_barrier')

def p(a, cfg):
    ring = cfg.get('ring', 3); tm = cfg.get('p_time', 0)
    def T(slot):
        if tm: a(f's_mem{"real" if cfg.get("rt") else ""}time s[{70+2*slot}:{71+2*slot}]')
    a('L_p:')
    def sel(dst, pair): a(f's_mul_i32 s{dst}, s{sLY}, {pair[1]-pair[0]:#x}\ns_add_u32 s{dst}, s{dst}, {pair[0]:#x}')
    a(f'''s_sub_u32 s{sLY}, s{sX}, 2
    s_lshr_b32 s{sLY}, s{sLY}, 1
    s_and_b32 s6, s{sX}, 1
    s_lshl_b32 s6, s6, 4
    s_and_b32 s{sH}, s{sR}, 15
    s_add_u32 s{sH}, s{sH}, s6
    s_lshr_b32 s{sRep}, s{sR}, 4''')
    sel(sXT0, XT); sel(sKV0, KVX); sel(sKM0, KVM); sel(sOI0, OI); sel(sFX, (FX1, FX3))
    a(f'''s_lshl_b32 s6, s{sW}, 13
    s_add_u32 s{sXT0}, s{sXT0}, s6
    s_add_u32 s{sM0}, s6, {L_X}
    s_lshl_b32 s6, s{sH}, 14
    s_lshl_b32 s7, s{sW}, 11
    s_add_u32 s{sKV0}, s{sKV0}, s6
    s_add_u32 s{sKV0}, s{sKV0}, s7
    s_lshl_b32 s6, s{sH}, 12
    s_lshl_b32 s7, s{sW}, 10
    s_add_u32 s{sKM0}, s{sKM0}, s6
    s_add_u32 s{sKM0}, s{sKM0}, s7
    s_lshl_b32 s6, s{sH}, 13
    s_lshr_b32 s7, s{sW}, 1
    s_lshl_b32 s7, s7, 12
    s_add_u32 s{sOI0}, s{sOI0}, s6
    s_add_u32 s{sOI0}, s{sOI0}, s7
    s_lshl_b32 s6, s{sLY}, 13
    s_lshl_b32 s7, s{sRep}, 12
    s_add_u32 s6, s6, s7
    s_lshl_b32 s7, s{sH}, 7
    s_add_u32 s6, s6, s7
    s_lshl_b32 s7, s{sW}, 2
    s_add_u32 s6, s6, s7
    s_add_u32 s{sFKV}, s6, {FKV:#x}
    s_add_u32 s{sFO}, s6, {FO:#x}
    s_mov_b32 s{sC}, 0x3e0293ee
    v_mov_b32 v{vPM}, 0
    v_mov_b32 v{vPM+1}, 0
    s_mov_b64 exec, 1
    buffer_store_dword v{vPM}, v{vPM}, {WS}, s{sFKV} offen sc1
    buffer_store_dword v{vPM}, v{vPM}, {WS}, s{sFO} offen sc1
    s_mov_b64 exec, -1''')
    if cfg.get('integ'):
        a(f's_cmp_ge_u32 s{sX}, 4\ns_cbranch_scc1 L_pro\nL_p2:\nv_mov_b32 v{vPM}, 0\nv_mov_b32 v{vPM+1}, 0')
    a(f'v_lshlrev_b32 v{vL16}, 4, v0')
    srd(a, 16, P_WQ, 4*MB_); srd(a, 20, P_WK, 4*MB_); srd(a, 24, P_WV, 4*MB_)
    def goff(c): a(f's_lshl_b32 s61, s{sH}, 8\ns_add_u32 s61, s61, {(c % 4) << 20}')
    coop_weights(a, 12, lambda c, j: wreg(c//4, (c % 4)*32 + 2*j, 2), lambda c: 16 + 4*(c//4), goff,
                 lambda n: role_done(a, cfg, n), 100, 104, 8192)
    mark(a, cfg, 2, 16)
    a(f'''v_bfe_u32 v16, v{vL16}, 4, 4
    v_lshrrev_b32 v17, 8, v{vL16}
    v_lshrrev_b32 v{vL4}, 2, v{vL16}
    v_bfe_u32 v18, v{vL16}, 6, 2
    v_lshrrev_b32 v19, 9, v{vL16}
    v_lshl_or_b32 v18, v19, 3, v18
    v_lshlrev_b32 v18, 6, v18
    v_and_b32 v20, 1, v17
    v_lshl_or_b32 v18, v20, 5, v18
    v_and_b32 v20, 3, v16
    v_lshl_or_b32 v{vXr}, v20, 3, v18
    v_and_b32 v18, 7, v16
    v_lshrrev_b32 v20, 3, v16
    v_lshl_or_b32 v18, v20, 4, v18
    v_lshlrev_b32 v18, 4, v18
    v_lshl_add_u32 v18, v17, 9, v18
    v_add_u32 v{vKx}, {(L_PK ^ PKX) + 8192}, v18
    s_and_b32 s6, s{sW}, 1
    s_lshl_b32 s6, s6, 8
    v_lshlrev_b32 v18, 4, v16
    v_lshl_or_b32 v18, v17, 9, v18
    v_add_u32 v{vOs}, s6, v18
    v_add_u32 v{vQx}, {L_PK ^ PKX}, v{vOs}
    s_lshr_b32 s7, s{sW}, 1
    s_lshl_b32 s6, s7, 12
    s_add_u32 s6, s6, {(L_PK ^ PKX) + 16384}
    v_add_u32 v{vVx}, s6, v18
    s_lshl_b32 s6, s{sW}, 11
    s_add_u32 s6, s6, {L_PK}
    v_add_u32 v{vPw}, s6, v{vL16}
    v_mul_u32_u24 v18, {GQ}, v17
    v_lshl_add_u32 v18, v16, 3, v18
    s_lshl_b32 s6, s{sW}, 8
    s_add_u32 s6, s6, {L_T}
    v_add_u32 v{vTw}, s6, v18
    s_lshl_b32 s6, s7, 9
    s_add_u32 s6, s6, {L_T}
    v_add_u32 v{vMv}, s6, v18
    v_and_b32 v18, 3, v16
    v_mul_u32_u24 v18, {GQ}, v18
    v_bfe_u32 v20, v{vL16}, 6, 3
    v_lshl_add_u32 v18, v20, 3, v18
    v_lshl_add_u32 v18, v19, 7, v18
    v_add_u32 v{vTr}, {L_T}, v18
    s_lshl_b32 s6, s{sW}, 7
    s_add_u32 s6, s6, {L_RS}
    v_lshlrev_b32 v18, 4, v19
    v_add_u32 v{vRs}, s6, v18
    v_and_b32 v18, 0x7c, v{vL4}
    v_add_u32 v{vRw}, s6, v18
    v_lshlrev_b32 v18, 1, v18
    v_add_u32 v{vSp}, {L_SP}, v18
    s_lshl_b32 s6, s{sW}, 13
    v_add_u32 v{vSr}, s6, v{vXr}
    v_mov_b32 v{vONE}, 0x3f803f80
    v_mov_b32 v{vONE+1}, 0x3f803f80''')
    a(f'''s_and_b32 s6, s{sW}, 1
    s_lshl_b32 s6, s6, 4
    v_add_u32 v16, s6, v16
    v_lshlrev_b32 v18, 4, v19
    v_and_b32 v20, 1, v17
    v_lshl_or_b32 v18, v20, 2, v18
    v_sub_u32 v16, v16, v18
    v_mov_b32 v17, 0xf149f2ca''')
    for T_ in range(2):
        for r in range(4): a(f'v_cmp_gt_i32 vcc, {8*T_+r}, v16\nv_cndmask_b32 v{vMK+4*T_+r}, 0, v17, vcc')
    for r in range(4): a(f'v_mov_b32 v{XF+r}, 0x3f803f80')
    for ks in range(32):
        for m in range(3):
            acc = AQ + 16*m
            a(f'v_mfma_f32_32x32x16_bf16 {vr(acc,16)}, {vr(XF,4)}, {wreg(m,4*ks,4)}, {"0" if ks == 0 else vr(acc,16)}')
    a(f'v_cmp_gt_u32 vcc, 512, v{vL16}')
    for m in range(3):
        acc = AQ + 16*m
        a(f'''v_cvt_pk_bf16_f32 v{acc+1}, v{acc}, v{acc}
        v_and_b32 v{acc+1}, 0xffff0000, v{acc+1}
        v_sub_f32 v{acc}, v{acc}, v{acc+1}
        v_cvt_pk_bf16_f32 v{acc}, v{acc}, v{acc+1}
        v_cndmask_b32 v{vCS+m}, 0, v{acc}, vcc''')
    a(f'v_mov_b32 v{vCS+3}, 0\nv_mov_b32 v{vMN+1}, 0\nv_mov_b32 v{vMN+2}, 0')
    wait_done(a, ST, ST+1, 20)
    mark(a, cfg, 3, ST)
    a(f's_mov_b32 s{sI}, 0\ns_mov_b32 s{sSeg}, s{sRep}\ns_add_u32 s{sNeed}, s{sSeg}, 1')
    Ls = a.lab('p1')
    a(f's_cmp_lg_u32 s{sLY}, 0\ns_cbranch_scc1 {Ls}')
    poll_ge(a, vL16, sFX, sNeed, ST, 21, 4)
    poll_ge(a, vL16, sFX, sNeed, ST, 21, 4, 1024)
    a(f'{Ls}:')
    mark(a, cfg, 4, ST)
    def xdma():
        a(f's_sub_u32 s6, s{sNeed}, 1\ns_lshl_b32 s6, s6, 15\ns_add_u32 s{sXT}, s{sXT0}, s6\ns_mov_b32 m0, s{sM0}\ns_add_u32 s6, s{sXT}, 4096')
        for k in range(4): a(f'buffer_load_dwordx4 v{vL16}, {WS}, s{sXT} offen offset:{k*1024} lds')
        a(f's_add_u32 m0, s{sM0}, 4096')
        for k in range(4): a(f'buffer_load_dwordx4 v{vL16}, {WS}, s6 offen offset:{k*1024} lds')
    a('L_p_xwait:')
    poll_ge(a, vL4, sFX, sNeed, ST, 22, 1)
    xdma()
    a('s_waitcnt vmcnt(0)\nL_p_loop:')
    a(f"""s_barrier
    s_and_b32 s6, s{sSeg}, {ring}
    s_lshl_b32 s6, s6, 19
    s_add_u32 s{sKV}, s{sKV0}, s6
    s_add_u32 s{sVal}, s{sSeg}, 1
    s_add_u32 s{sNeed}, s{sSeg}, 3
    s_lshl_b32 s7, s{sW}, 8""")
    T(0)
    qd = []
    def ds(x, tag): a(x); qd.append(tag)
    def need(tag):
        last = max([k for k, x in enumerate(qd) if x == tag], default=-1)
        if last >= 0:
            a(f's_waitcnt lgkmcnt({len(qd)-1-last})'); del qd[:last+1]
    def xr(ks):
        for h in range(2): ds(f'ds_read_b64_tr_b16 {vr(XF+4*(ks%3)+2*h,2)}, v{vXr} offset:{L_X + ks*1024 + h*256}', f'x{ks}')
    SF, U = RR, RR+8
    def sr_(k):
        for h in range(2): ds(f'ds_read_b64_tr_b16 {vr(SF+4*(k%2)+2*h,2)}, v{vSr} offset:{L_X + k*1024 + h*256}', f's{k}')
    xr(0); xr(1); sr_(0)
    a(f'v_mov_b32 v{ST}, 0\nv_mov_b32 v{ST+1}, 0\nv_add_u32 v{U+4}, s7, v{vSp}')
    fill = {ks: [] for ks in range(32)}
    for k in range(8):
        ops = []
        for r in range(4):
            f = SF + 4*(k % 2) + r; u = U + 2*(r % 2)
            ops += [f'v_lshlrev_b32 v{u}, 16, v{f}', f'v_and_b32 v{u+1}, 0xffff0000, v{f}', f'v_add_f32 v{ST}, v{ST}, v{u}', f'v_fmac_f32 v{ST+1}, v{u}, v{u}',
                    f'v_add_f32 v{ST}, v{ST}, v{u+1}', f'v_fmac_f32 v{ST+1}, v{u+1}, v{u+1}']
        fill[3*k].append(('need', f's{k}'))
        if k < 7: fill[3*k].append(('sr', k+1))
        for j in range(3): fill[3*k+j] += ops[8*j:8*j+8]
    fill[24] = [f'v_mov_b32 v{ST+2}, v{ST}', f'v_mov_b32 v{ST+3}, v{ST+1}', f'v_permlane32_swap_b32 v{ST}, v{ST+2}', f'v_permlane32_swap_b32 v{ST+1}, v{ST+3}',
                f'v_add_f32 v{ST}, v{ST}, v{ST+2}', f'v_add_f32 v{ST+1}, v{ST+1}, v{ST+3}', ('ds', f'ds_write_b64 v{U+4}, {vr(ST,2)}', 'w')]
    fill[25] = [('nop',), ('need', 'w'), 's_barrier'] + [('ds', f'ds_read_b64 {vr(SF+2*k,2)}, v{vSp} offset:{256*k}', 'r') for k in range(4)]
    b = Asm()
    b(f"""v_add_f32 v{ST}, v{SF}, v{SF+2}
    v_add_f32 v{ST+1}, v{SF+1}, v{SF+3}
    v_add_f32 v{ST+2}, v{SF+4}, v{SF+6}
    v_add_f32 v{ST+3}, v{SF+5}, v{SF+7}
    v_add_f32 v{ST}, v{ST}, v{ST+2}
    v_add_f32 v{ST+1}, v{ST+1}, v{ST+3}""")
    ln_final(b, ST, ST+1, ST+2)
    b(f"""v_xor_b32 v{ST}, 0x80000000, v{ST}
    v_lshrrev_b32 v{ST+2}, 16, v{ST}
    v_or_b32 v{vMN}, v{ST}, v{ST+2}
    v_or_b32 v{vMN+3}, v{ST}, v{ST+2}
    v_mov_b32 v{ST}, v{ST+1}""")
    ops = [('need', 'r')] + b.lines + [('ds', f'ds_write_b32 v{vRw}, v{ST+1}', 'w2')]
    for j in range(4): fill[27+j] = ops[8*j:8*j+8]
    assert len(ops) <= 32
    fill[31] = [('ds', f'ds_read_b128 {vr(RR+4*q,4)}, v{vRs} offset:{32*q}', 'rr') for q in range(4)]
    def F(lst):
        for x in lst:
            if isinstance(x, str): a(x)
            elif x[0] == 'need': need(x[1])
            elif x[0] == 'sr': sr_(x[1])
            elif x[0] == 'ds': ds(x[1], x[2])
    for ks in range(32):
        f = XF + 4*(ks % 3); c = lambda r: '0' if ks == 0 else vr(r, 16)
        d = fill[ks]
        need(f'x{ks}')
        a(f'v_mfma_f32_32x32x16_bf16 {vr(AK,16)}, {wreg(1,4*ks,4)}, {vr(f,4)}, {c(AK)}')
        if ks + 2 < 32: xr(ks+2)
        n1 = 1 if len(d) < 10 else 3
        F(d[:n1])
        a(f'v_mfma_f32_32x32x16_bf16 {vr(AV,16)}, {vr(f,4)}, {wreg(2,4*ks,4)}, {c(AV)}')
        F(d[n1:n1+4])
        a(f'v_mfma_f32_32x32x16_bf16 {vr(AQ,16)}, {wreg(0,4*ks,4)}, {vr(f,4)}, {c(AQ)}')
        F(d[n1+4:])
    T(1)
    a(f"""v_mfma_f32_32x32x8_bf16 {vr(AK,16)}, {vr(vCS,2)}, {vr(vMN+2,2)}, {vr(AK,16)}
    v_mfma_f32_32x32x8_bf16 {vr(AV,16)}, {vr(vMN,2)}, {vr(vCS+2,2)}, {vr(AV,16)}
    v_mfma_f32_32x32x8_bf16 {vr(AQ,16)}, {vr(vCS,2)}, {vr(vMN,2)}, {vr(AQ,16)}""")
    def fin(acc, sc, goff_, loff):
        for r in range(0, 16, 2):
            a(f'v_pk_mul_f32 {vr(acc+r,2)}, {vr(acc+r,2)}, {sc(r)}')
        for r in range(8): a(f'v_cvt_pk_bf16_f32 v{acc+r}, v{acc+2*r}, v{acc+2*r+1}')
        for h in range(2):
            if goff_ is not None: a(f'buffer_store_dwordx4 {vr(acc+4*h,4)}, v{vL16}, {WS}, s{goff_} offen offset:{h*1024} sc1')
            a(f'ds_write_b128 v{vPw}, {vr(acc+4*h,4)} offset:{loff + h*1024}')
    a(f's_add_u32 s7, s{sKV}, 0x2000')
    fin(AK, lambda r: vr(ST,2), sKV, 8192)
    a('s_waitcnt lgkmcnt(2)')
    fin(AV, lambda r: vr(RR+r,2), 7, 16384)
    a(f'buffer_load_dword v{vFX}, v{vL4}, {WS}, s{sFX} offen sc1')
    fin(AQ, lambda r: vr(ST,2), None, 0)
    a(f'v_mov_b32 v127, s{sVal}')
    T(2)
    a(f's_cmp_eq_u32 s{sI}, 0\ns_cbranch_scc1 L_p_first')
    a('L_p_att:')
    a(f'''s_sub_u32 s{sVal}, s{sSeg}, 2
    s_and_b32 s6, s{sVal}, {ring}
    s_lshl_b32 s6, s6, 17
    s_add_u32 s{sKM}, s{sKM0}, s6
    s_lshr_b32 s6, s{sVal}, 2
    s_andn2_b32 s{sTag}, 1, s6
    s_lshl_b32 s6, s{sVal}, 18
    s_add_u32 s{sOI}, s{sOI0}, s6
    s_add_u32 s{sVal}, s{sVal}, 1
    buffer_load_dwordx4 {vr(KMD,4)}, v{vL16}, {WS}, s{sKM} offen sc1''')
    KF, QF, VF, S_ = 32, 64, 80, 96
    MT, MV, O_, PX, m_, t_, TM = 32, 48, 56, 120, 124, 125, 126
    for ks in range(4):
        a(f'ds_read_b128 {vr(QF+4*ks,4)}, v{vQx} offset:{ks*2048}')
        for T_ in range(2): a(f'ds_read_b128 {vr(KF+16*T_+4*ks,4)}, v{vKx} offset:{ks*2048+T_*128}')
    for ks in range(4):
        a(f's_waitcnt lgkmcnt({9-3*ks})')
        for T_ in range(2):
            a(f'v_mfma_f32_16x16x32_bf16 {vr(S_+4*T_,4)}, {vr(KF+16*T_+4*ks,4)}, {vr(QF+4*ks,4)}, {vr(vMK+4*T_,4) if ks == 0 else vr(S_+4*T_,4)}')
    for u in range(2):
        for t in range(2): a(f'ds_read_b128 {vr(VF+8*u+4*t,4)}, v{vVx} offset:{u*2048+t*256}')
    def kvflag(n): a(f'''s_waitcnt vmcnt({n})
    s_mov_b64 exec, 1
    buffer_store_dword v127, v{vPM+1}, {WS}, s{sFKV} offen sc1
    s_mov_b64 exec, -1''')
    kvflag(2)
    a(f'''s_mov_b32 s7, 0
    s_waitcnt vmcnt(1)
    s_branch L_p_km1
    L_p_km:
    s_waitcnt vmcnt(0)
    L_p_km1:
    v_bitop3_b32 v{TM}, v{KMD}, s{sTag}, 1 bitop3:0x28
    v_cmp_ne_u32 vcc, 0, v{TM}
    s_cbranch_vccz L_p_kmok
    buffer_load_dwordx4 {vr(KMD,4)}, v{vL16}, {WS}, s{sKM} offen sc1''')
    spin_check(a, 7, 23, 'L_p_km')
    a(f'''L_p_kmok:
    ds_write_b64 v{vTw}, {vr(KMD,2)}
    ds_write_b64 v{vTw}, {vr(KMD+2,2)} offset:128
    v_max3_f32 v{m_}, v{S_}, v{S_+1}, v{S_+2}
    v_max3_f32 v{t_}, v{S_+4}, v{S_+5}, v{S_+6}
    v_max3_f32 v{m_}, v{m_}, v{S_+3}, v{S_+7}
    s_waitcnt lgkmcnt(0)
    s_barrier''')
    T(3)
    for ks in range(4):
        for sub in range(2): a(f'ds_read_b64_tr_b16 {vr(MT+4*ks+2*sub,2)}, v{vTr} offset:{ks*256+sub*64}')
    for k in range(4): a(f'ds_read_b64 {vr(MV+2*k,2)}, v{vMv} offset:{k*128}')
    def tryx():
        L = a.lab('nx')
        a(f'''s_mov_b32 s{sPre}, 0
        s_cmp_ge_u32 s{sI}, 31
        s_cbranch_scc1 {L}
        v_cmp_gt_u32 vcc, s{sNeed}, v{vFX}
        s_cbranch_vccnz {L}
        s_mov_b32 s{sPre}, 1''')
        xdma()
        a(f'{L}:')
    tryx()
    for ks in range(4):
        a(f's_waitcnt lgkmcnt({10-2*ks})')
        a(f'v_mfma_f32_16x16x32_bf16 {vr(S_+8,4)}, {vr(MT+4*ks,4)}, {vr(QF+4*ks,4)}, {"0" if ks == 0 else vr(S_+8,4)}')
    sv = [S_+i for i in range(8)] + [S_+10, S_+11]
    a(f'''v_max_f32 v{m_}, v{m_}, v{t_}
    v_max3_f32 v{m_}, v{m_}, v{sv[8]}, v{sv[9]}
    v_mov_b32 v{t_}, v{m_}
    v_permlane32_swap_b32 v{m_}, v{t_}
    v_max_f32 v{m_}, v{m_}, v{t_}
    v_max_f32 v{t_}, v{m_}, v{t_}
    v_permlane16_swap_b32 v{m_}, v{t_}
    v_max_f32 v{m_}, v{m_}, v{t_}
    v_mul_f32 v{m_}, s{sC}, v{m_}''')
    for r in [sv[8], sv[9]] + sv[:8]: a(f'v_fma_f32 v{r}, v{r}, s{sC}, -v{m_}')
    for r in (sv[8], sv[9]): a(f'v_exp_f32 v{r}, v{r}')
    SUM = S_ + 12
    a(f'v_exp_f32 v{sv[0]}, v{sv[0]}\nv_cvt_pk_bf16_f32 v{vPM}, v{sv[8]}, v{sv[9]}\nv_exp_f32 v{sv[1]}, v{sv[1]}\ns_waitcnt lgkmcnt(0)')
    a(f'v_mfma_f32_16x16x16_bf16 {vr(SUM,4)}, {vr(vONE,2)}, {vr(vPM,2)}, 0')
    for k in range(4):
        a(f'v_mfma_f32_16x16x16_bf16 {vr(O_+4*k,4)}, {vr(MV+2*k,2)}, {vr(vPM,2)}, 0')
        if k < 3: a(f'v_exp_f32 v{sv[2+2*k]}, v{sv[2+2*k]}\nv_exp_f32 v{sv[3+2*k]}, v{sv[3+2*k]}')
    for k in range(4): a(f'v_cvt_pk_bf16_f32 v{PX+k}, v{sv[2*k]}, v{sv[2*k+1]}')
    for h in range(2): a(f'v_mfma_f32_16x16x16_bf16 {vr(SUM,4)}, {vr(vONE,2)}, {vr(PX+2*h,2)}, {vr(SUM,4)}')
    for k in range(4): a(f'v_mfma_f32_16x16x32_bf16 {vr(O_+4*k,4)}, {vr(VF+4*k,4)}, {vr(PX,4)}, {vr(O_+4*k,4)}')
    a(f'v_rcp_f32 v{SUM}, v{SUM}\nv_mov_b32 v{TM}, s{sVal}')
    for u in range(2):
        for r in range(0, 8, 2): a(f'v_pk_mul_f32 {vr(O_+8*u+r,2)}, {vr(O_+8*u+r,2)}, {vr(SUM,2)} op_sel_hi:[1,0]')
        for r in range(4): a(f'v_cvt_pk_bf16_f32 v{O_+8*u+r}, v{O_+8*u+2*r}, v{O_+8*u+2*r+1}')
        a(f'buffer_store_dwordx4 {vr(O_+8*u,4)}, v{vOs}, {WS}, s{sOI} offen offset:{u*2048} sc1')
    a(f'''s_waitcnt vmcnt(0)
    s_mov_b64 exec, 1
    buffer_store_dword v{TM}, v{vPM+1}, {WS}, s{sFO} offen sc1
    s_mov_b64 exec, -1''')
    T(4)
    a('L_p_next:')
    for r in (vKx, vQx, vVx, vPw): a(f'v_xor_b32 v{r}, {PKX:#x}, v{r}')
    if tm:
        a(f'''s_waitcnt lgkmcnt(0)
        s_lshl_b32 s6, s{sX}, 5
        s_add_u32 s6, s6, s{sR}
        s_lshl_b32 s6, s6, 2
        s_add_u32 s6, s6, s{sW}
        s_lshl_b32 s6, s6, 6
        s_add_u32 s6, s6, s{sI}
        s_lshl_b32 s6, s6, 6
        s_add_u32 s6, s6, {160*MB_}''')
        for k in range(8): a(f'v_mov_b32 v{AQ+k}, s{70+2*k}')
        a(f'''s_mov_b64 exec, 1
        buffer_store_dwordx4 {vr(AQ,4)}, v{vPM+1}, {WS}, s6 offen
        buffer_store_dwordx4 {vr(AQ+4,4)}, v{vPM+1}, {WS}, s6 offen offset:16
        s_mov_b64 exec, -1''')
    a(f'''s_add_u32 s{sI}, s{sI}, 1
    s_add_u32 s{sSeg}, s{sSeg}, 2
    s_cmp_gt_u32 s{sI}, 32
    s_cbranch_scc1 L_p_end
    s_cmp_eq_u32 s{sI}, 32
    s_cbranch_scc1 L_p_tail
    s_cmp_eq_u32 s{sPre}, 0
    s_cbranch_scc1 L_p_xwait
    s_branch L_p_loop
    L_p_tail:
    s_waitcnt lgkmcnt(0)
    s_barrier
    s_branch L_p_att
    L_p_first:''')
    kvflag(1)
    mark(a, cfg, 7, KMD)
    a(f's_waitcnt vmcnt({2 if cfg.get("marks") else 1}) lgkmcnt(0)\ns_barrier')
    tryx()
    a('''s_waitcnt vmcnt(0)
    s_branch L_p_next
    L_p_end:
    s_waitcnt vmcnt(0)
    s_endpgm''')
```

```python
from common import *
from c import unpack, UROW
L_PA, L_FF, L_RT, L_UR, L_XR = 0, 8192, 25600, 44032, 60544
FROW = 4352
sCh, sK0, sT0, sT1 = 60, 61, 62, 63
LOG2E_HI, LOG2E_LO, LN2 = 0x3fb8aa3b, 0x32a57060, 0x3f317218

def exp_bf16(a, r, t):
    a(f'''v_mul_f32 v{t}, {LOG2E_HI:#x}, v{r}
    v_mov_b32 v{t+1}, {LOG2E_HI:#x}
    v_fma_f32 v{t+1}, v{r}, v{t+1}, -v{t}
    v_fmac_f32 v{t+1}, {LOG2E_LO:#x}, v{r}
    v_exp_f32 v{t}, v{t}
    v_mul_f32 v{t+1}, {LN2:#x}, v{t+1}
    v_fma_f32 v{r}, v{t}, v{t+1}, v{t}''')
    bf16r(a, r, r)

def pro(a, cfg):
    tm = cfg.get('pro_time', 0)
    def T(slot):
        if tm: a(f's_memrealtime s[{40+2*slot}:{41+2*slot}]')
    vZ, vL16, vPa = 1, 2, 3
    POS, PR, XD, SD, GA, DV = 4, 8, 200, 216, 160, 232
    a('L_pro:')
    T(0)
    if tm: a('s_memtime s[56:57]')
    a(f'''s_max_u32 s6, s{sX}, 3
    s_sub_u32 s6, s6, 3
    s_lshl_b32 s6, s6, 5
    s_add_u32 s6, s6, s{sR}
    s_lshl_b32 s{sT0}, s6, 15
    s_lshl_b32 s6, s6, 2
    s_add_u32 s{sCh}, s6, s{sW}
    s_lshl_b32 s6, s{sCh}, 2
    s_add_u32 s6, s6, {FX1:#x}
    v_mov_b32 v{vZ}, 0
    v_lshlrev_b32 v{vL16}, 4, v0
    s_mov_b64 exec, 1
    buffer_store_dword v{vZ}, v{vZ}, {WS}, s6 offen sc1
    s_mov_b64 exec, -1
    v_lshlrev_b32 v16, 2, v0
    s_lshl_b32 s6, s{sCh}, 8
    s_lshl_b32 s7, s{sCh}, 1''')
    for k, ptr in enumerate((P_LA, P_AI, P_CR, P_CI)):
        srd(a, 16 + 4*k, ptr, 512*256)
        a(f'buffer_load_dword v{20+k}, v16, s[{16+4*k}:{19+4*k}], s6 offen')
    srd(a, 16, P_LDT, 1024); a(f'buffer_load_ushort v24, v{vZ}, s[16:19], s7 offen')
    srd(a, 20, P_DS, 1024); a(f'buffer_load_ushort v{DV}, v{vZ}, s[20:23], s7 offen')
    signal_done(a, 'vmcnt(6)', 18)
    a(f'''v_and_b32 v16, 15, v0
    v_and_b32 v17, 7, v16
    v_lshrrev_b32 v18, 3, v16
    v_lshl_add_u32 v19, v18, 7, v17
    v_add_u32 v19, 1, v19
    v_cvt_f32_u32 v{POS}, v19
    v_and_b32 v19, 3, v16
    v_lshrrev_b32 v25, 2, v16
    v_lshlrev_b32 v25, 6, v25
    v_add_u32 v19, v19, v25
    v_lshlrev_b32 v19, 1, v19
    v_add_u32 v19, 258, v19
    v_cmp_gt_u32 vcc, 8, v16
    v_cndmask_b32 v19, 0, v19, vcc
    v_cvt_f32_u32 v{POS+1}, v19
    v_and_b32 v19, 1, v16
    v_lshrrev_b32 v25, 1, v17
    v_lshlrev_b32 v25, 7, v25
    v_lshl_add_u32 v19, v19, 2, v25
    v_add_u32 v19, 516, v19
    v_lshlrev_b32 v25, 7, v17
    v_add_u32 v25, 1032, v25
    v_cndmask_b32 v19, v25, v19, vcc
    v_cvt_f32_u32 v{POS+2}, v19
    v_lshlrev_b32 v19, 3, v16
    v_cvt_f32_u32 v{POS+3}, v19
    v_lshrrev_b32 v19, 4, v0
    s_lshl_b32 s6, s{sW}, 11
    v_lshl_add_u32 v{vPa}, v19, 6, s6''')
    a(f'''v_lshlrev_b32 v16, 4, v0
    v_cvt_f32_u32 v16, v16
    s_mul_i32 s{sT1}, s{sW}, {FROW}
    s_add_u32 s{sT1}, s{sT1}, {L_FF}''')
    import struct
    fb = lambda x: struct.unpack('<I', struct.pack('<f', x))[0]
    for m in range(4):
        for i in range(0, 8, 2):
            g0 = GA + 8*m + i
            a(f'''v_sub_f32 v17, {fb(2.0*(2048-512*m-i)):#x}, v16
            v_sub_f32 v18, {fb(2.0*(2048-512*m-i-1)):#x}, v16
            v_cvt_pk_bf16_f32 v17, v17, v18''')
            unpack(a, g0, g0+1, 17)
            a(f'v_cvt_u32_f32 v{g0}, v{g0}\nv_cvt_u32_f32 v{g0+1}, v{g0+1}\nv_add_u32 v{g0}, s{sT1}, v{g0}\nv_add_u32 v{g0+1}, s{sT1}, v{g0+1}')
    a('s_waitcnt vmcnt(1)\nv_lshlrev_b32 v24, 16, v24')
    exp_bf16(a, 24, 26)
    for k in range(4): unpack(a, 32+k, 36+k, 20+k)
    a('v_max3_f32 v28, |v34|, |v35|, |v38|\nv_max_f32 v28, |v39|, v28')
    for m in ('quad_perm:[1,0,3,2]', 'quad_perm:[2,3,0,1]', 'row_half_mirror', 'row_mirror'):
        a(f'v_max_f32_dpp v28, v28, v28 {m} row_mask:0xf bank_mask:0xf')
    a("""v_mov_b32 v29, v28
    v_permlane16_swap_b32 v28, v29
    v_max_f32 v28, v28, v29
    v_mov_b32 v29, v28
    v_permlane32_swap_b32 v28, v29
    v_max_f32 v28, v28, v29
    v_frexp_exp_i32_f32 v28, v28
    v_sub_u32 v29, 0, v28""")
    for b in (32, 36):
        exp_bf16(a, b, 26)
        a(f'''v_mul_f32 v{b}, v{b}, v24
        v_mul_f32 v{b+1}, v{b+1}, v24
        v_ldexp_f32 v{b+2}, v{b+2}, v29
        v_ldexp_f32 v{b+3}, v{b+3}, v29
        v_mul_f32 v{b}, {LOG2E_HI | 0x80000000:#x}, v{b}
        v_mul_f32 v{b+1}, 0x3e22f983, v{b+1}''')
    a(f'v_add_f32 v24, v24, v24\nv_ldexp_f32 v{DV+1}, v24, v28')
    a(f'''s_lshl_b32 s6, s{sW}, 11
    v_lshl_add_u32 v16, v0, 5, s6
    ds_write_b128 v16, v[32:35] offset:{L_PA}
    ds_write_b128 v16, v[36:39] offset:{L_PA+16}
    ds_read_b128 {vr(PR,4)}, v{vPa} offset:{L_PA}''')
    T(1)
    OPS, E_, CS, KD = 16, 32, 40, 48
    for r in range(12): a(f'v_mov_b32 v{KD+r}, 0')
    for r in range(16): a(f'v_mov_b32 v{OPS+r}, 0')
    mf = [f'v_mfma_f32_16x16x32_f16 {vr(KD+4*t,4)}, {vr(OPS+4*t,4)}, {vr(OPS+12,4)}, {vr(KD+4*t,4)}' for t in range(3)]
    def step(qq):
        p = PR + 4*(qq % 2)
        a(f's_waitcnt lgkmcnt(0)\nds_read_b128 {vr(PR+4*(1-qq%2),4)}, v{vPa} offset:{L_PA + (16*(qq+1) if qq < 3 else 256)}')
        o = (3, 0, 1, 2)
        for i, k in enumerate(o):
            if qq == 0 and i < 3: a(mf[i])
            h = k % 2
            a(f'v_pk_mul_f32 {vr(E_+2*k,2)}, {vr(p,2)}, {vr(POS+k-h,2)} op_sel:[0,{h}] op_sel_hi:[1,{h}]')
        for k in o: a(f'v_fract_f32 v{E_+2*k+1}, v{E_+2*k+1}')
        for k in o: a(f'v_exp_f32 v{E_+2*k}, v{E_+2*k}\nv_cos_f32 v{CS+2*k}, v{E_+2*k+1}\nv_sin_f32 v{CS+2*k+1}, v{E_+2*k+1}')
        for k in o: a(f'v_pk_mul_f32 {vr(CS+2*k,2)}, {vr(CS+2*k,2)}, {vr(E_+2*k,2)} op_sel_hi:[1,0]')
        a(f'v_pk_mul_f32 {vr(E_,2)}, {vr(CS+6,2)}, {vr(p+2,2)} op_sel_hi:[1,0] neg_hi:[1,0]')
        a(f'v_cvt_pk_f16_f32 v{OPS+qq}, v{CS}, v{CS+1}')
        a(f'v_pk_fma_f32 {vr(E_,2)}, {vr(CS+6,2)}, {vr(p+2,2)}, {vr(E_,2)} op_sel:[1,1,0] op_sel_hi:[0,1,1] neg_lo:[1,0,0] neg_hi:[1,0,0]')
        for k in (1, 2): a(f'v_cvt_pk_f16_f32 v{OPS+4*k+qq}, v{CS+2*k}, v{CS+2*k+1}')
        a(f'v_cvt_pk_f16_f32 v{OPS+12+qq}, v{E_}, v{E_+1}')
    for quarter in range(4):
        L = a.lab('kg')
        a(f's_mov_b32 s6, 2\n{L}:')
        for qq in range(4): step(qq)
        a(f'v_add_u32 v{vPa}, 256, v{vPa}\ns_sub_u32 s6, s6, 1\ns_cmp_lg_u32 s6, 0\ns_cbranch_scc1 {L}')
        if quarter == 1 and tm == 2: T(3)
        if quarter == cfg.get('pro_q', 2):
            wait_done(a, SD, SD+1, 50, 1)
            mark(a, cfg, 5, SD)
            if tm == 2: T(4)
            a(f's_lshl_b32 s6, s{sW}, 13\ns_add_u32 s6, s6, s{sT0}\ns_add_u32 s6, s6, {UX:#x}\ns_lshl_b32 s7, s{sW}, 10\nv_lshlrev_b32 v{SD}, 7, v0')
            for c in range(8):
                a(f's_add_u32 m0, s7, {L_UR + c*UROW + 32 if c < 4 else L_XR + (c-4)*4096}\nbuffer_load_dwordx4 v{SD}, {WS}, s6 offen lds\ns_add_u32 s6, s6, 16')
    for x in mf: a(x)
    T(2)
    a('s_waitcnt lgkmcnt(0)')
    if tm == 1: T(3)
    for r in range(12): a(f'v_mul_f32 v{KD+r}, v{KD+r}, v{DV+1}')
    a(f'''v_readlane_b32 s{sK0}, v{KD+4}, 32
    v_lshrrev_b32 v16, 4, v0
    v_and_b32 v17, 15, v0
    v_lshlrev_b32 v17, 4, v17
    v_add_u32 v17, s{sT1}, v17
    v_lshrrev_b32 v18, 1, v16
    v_and_b32 v19, 1, v16
    v_lshlrev_b32 v20, 8, v18
    v_lshl_add_u32 v20, v19, 3, v20
    v_add3_u32 v20, v20, v17, 2
    v_lshlrev_b32 v21, 8, v19
    v_add_u32 v21, 516, v21
    v_cmp_eq_u32 vcc, 0, v18
    v_cndmask_b32 v21, 0, v21, vcc
    v_cndmask_b32 v22, 0, 4, vcc
    v_add_u32 v21, v21, v17
    v_lshlrev_b32 v23, 9, v19
    v_add_u32 v23, 1032, v23
    v_lshlrev_b32 v24, 10, v19
    v_add_u32 v24, 2064, v24
    v_cndmask_b32 v23, v24, v23, vcc
    v_add_u32 v23, v23, v17
    v_mov_b32 v24, 0x100
    v_cndmask_b32 v24, v24, 8, vcc
    v_mov_b32 v25, 0x200
    v_cndmask_b32 v25, v25, v24, vcc
    v_mov_b32 v26, 0x100
    v_cndmask_b32 v25, v25, v26, vcc''')
    for t in range(3):
        for h in range(2): a(f'v_cvt_pk_bf16_f32 v{32+2*t+h}, v{KD+4*t+2*h}, v{KD+4*t+2*h+1}')
    W = lambda r: f'ds_write_b16{"_d16_hi" if r % 2 else ""}'
    for r in range(4):
        a(f'{W(r)} v21, v{34+r//2}')
        if r < 3: a('v_add_u32 v21, v21, v22')
    for r in range(4): a(f'{W(r)} v20, v{32+r//2} offset:{2*r}')
    a(f'''{W(0)} v23, v36
    v_add_u32 v26, v23, v24
    v_add_u32 v23, v23, v25
    {W(1)} v26, v36
    {W(2)} v23, v37
    v_add_u32 v23, v23, v24
    {W(3)} v23, v37''')
    for k in range(32): a(f'ds_read_u16 v{GA+k}, v{GA+k}')
    a(f'''s_mul_i32 s6, s{sW}, {KT_ROW}
    s_add_u32 s6, s6, {L_RT}
    v_add_u32 v16, s6, v{vL16}
    s_mul_i32 s7, s{sCh}, {KT_ROW}
    s_add_u32 s7, s7, {KT:#x}
    v_mov_b32 v21, 0
    v_mov_b32 v22, 0
    v_mov_b32 v23, 0
    v_mov_b32 v20, s{sK0}
    v_cmp_eq_u32 vcc, 30, v0
    v_cndmask_b32 v20, 0, v20, vcc
    s_mul_i32 s{sT0}, s{sW}, {UROW}
    s_add_u32 s{sT0}, s{sT0}, {L_UR}
    v_and_b32 v24, 16, v{vL16}
    v_add_u32 v24, s{sT0}, v24
    v_mov_b32 v28, 0
    v_mov_b32 v29, 0
    v_mov_b32 v30, 0
    v_mov_b32 v31, 0''')
    for m in range(4):
        a(f's_waitcnt lgkmcnt({min(15, 24 - 8*m + m)})' if m else 's_waitcnt lgkmcnt(15)')
        if m == 1: a('s_waitcnt lgkmcnt(15)')
        for d in range(4): a(f'v_lshl_or_b32 v{GA+8*m+d}, v{GA+8*m+2*d+1}, 16, v{GA+8*m+2*d}')
        a(f'ds_write_b128 v16, {vr(GA+8*m,4)} offset:{m*1024}')
        a(f'buffer_store_dwordx4 {vr(GA+8*m,4)}, v{vL16}, {WS}, s7 offen offset:{m*1024} sc1')
    a(f'''s_add_u32 s7, s7, 4096
    ds_write_b128 v24, v[28:31]
    s_mov_b32 exec_hi, 0
    ds_write_b128 v16, v[20:23] offset:4096
    buffer_store_dwordx4 v[20:23], v{vL16}, {WS}, s7 offen sc1
    s_mov_b32 exec_hi, -1''')
    vKa, vUa, vSh, vUr, vXr, vO = 4, 5, 6, 7, 8, 9
    RW, KB, TF, PT = 10, 32, 22, 44
    a(f'''v_and_b32 v16, 15, v0
    v_lshrrev_b32 v17, 4, v0
    v_lshlrev_b32 v18, 5, v16
    s_add_u32 s6, s6, 480
    v_sub_u32 v18, s6, v18
    v_lshl_add_u32 v{vKa}, v17, 4, v18
    v_lshlrev_b32 v18, 1, v16
    v_lshl_add_u32 v18, v17, 4, v18
    v_and_b32 v{vSh}, 2, v18
    v_and_b32 v18, -4, v18
    v_add_u32 v{vUa}, s{sT0}, v18
    v_lshlrev_b32 v18, 5, v16
    v_lshl_add_u32 v18, v17, 3, v18
    v_add3_u32 v{vUr}, v18, s{sT0}, 32
    s_lshl_b32 s7, s{sW}, 12
    s_add_u32 s7, s7, {L_XR}
    v_add_u32 v{vXr}, s7, v18
    v_lshrrev_b32 v18, 1, v16
    v_lshlrev_b32 v18, 15, v18
    v_and_b32 v19, 1, v16
    v_lshl_or_b32 v18, v19, 5, v18
    v_lshl_or_b32 v{vO}, v17, 3, v18
    v_lshlrev_b32 v31, 16, v{DV}
    v_add_u32 v60, 1024, v{vUa}
    v_add_u32 v61, 2048, v{vUa}
    v_add_u32 v62, 3072, v{vUa}
    s_lshl_b32 s{sT0}, s{sCh}, 6
    s_add_u32 s{sT0}, s{sT0}, {XT[0]:#x}
    s_waitcnt vmcnt(5) lgkmcnt(0)
    s_barrier''')
    if tm == 1: T(4)
    vD = 31
    qd = []
    def ds(x, tag): a(x); qd.append(tag)
    def need(tag):
        last = max([k for k, x in enumerate(qd) if x == tag], default=-1)
        if last >= 0:
            a(f's_waitcnt lgkmcnt({min(15, len(qd)-1-last)})'); del qd[:last+1]
    def uf(s): return vr(64+4*s, 4) if s < 48 else (ar(64+4*(s-48), 4) if s < 56 else vr(TF+4*(s % 2), 4))
    nraw = [0]; slot = {}
    def uread(s):
        r = (10, 16, 32, 38, 44)[nraw[0] % 5]; nraw[0] += 1; slot[s] = r
        ad = (vUa, 60, 61, 62)[s//16]; o = 16*(s % 16)
        ds(f'ds_read2_b32 {vr(r,2)}, v{ad} offset0:{o} offset1:{o+1}', f'u{s}')
        ds(f'ds_read2_b32 {vr(r+2,2)}, v{ad} offset0:{o+2} offset1:{o+3}', f'u{s}')
        ds(f'ds_read_b32 v{r+4}, v{ad} offset:{4*o+16}', f'u{s}')
    def ubuild(s):
        need(f'u{s}'); r = slot[s]
        dst = 64+4*s if s < 48 else (56 if s < 56 else TF+4*(s % 2))
        for d in range(4): a(f'v_alignbyte_b32 v{dst+d}, v{r+d+1}, v{r+d}, v{vSh}')
        if 48 <= s < 56:
            for d in range(4): a(f'v_accvgpr_write_b32 a{64+4*(s-48)+d}, v{dst+d}')
    def kread(dl): ds(f'ds_read_b128 {ar(KB+4*((dl+7) % 4),4)}, v{vKa} offset:{3584 - 64*dl}', f'k{dl}')
    def post(T_):
        Y, U4, D4, X4_, UU, X2 = PT, PT+4, PT+8, 32, 36, 38
        l = [('ds', f'ds_read_b64 {vr(UU,2)}, v{vUr} offset:{512*T_}', f'p{T_}'), ('ds', f'ds_read_b64 {vr(X2,2)}, v{vXr} offset:{512*T_}', f'p{T_}')]
        l += [f'v_accvgpr_read_b32 v{Y+r}, a{4*T_+r}' for r in range(4)]
        l += [('need', f'p{T_}')]
        b = Asm()
        for h in range(2): unpack(b, U4+2*h, U4+2*h+1, UU+h)
        for h in range(2): unpack(b, X4_+2*h, X4_+2*h+1, X2+h)
        for r in range(4): b(f'v_mul_f32 v{D4+r}, v{U4+r}, v{vD}')
        for r in range(4): b(f'v_fmac_f32 v{Y+r}, s{sK0}, v{U4+r}')
        for h in range(2): b(f'v_cvt_pk_bf16_f32 v{UU+h}, v{D4+2*h}, v{D4+2*h+1}')
        for h in range(2): unpack(b, D4+2*h, D4+2*h+1, UU+h)
        def rnd():
            for h in range(2): b(f'v_cvt_pk_bf16_f32 v{UU+h}, v{Y+2*h}, v{Y+2*h+1}')
        rnd()
        for add in (D4, X4_):
            for h in range(2): unpack(b, Y+2*h, Y+2*h+1, UU+h)
            for r in range(4): b(f'v_add_f32 v{Y+r}, v{Y+r}, v{add+r}')
            rnd()
        b(f's_add_u32 s6, s{sT0}, {T_ << 18}')
        b(f'buffer_store_dwordx2 {vr(UU,2)}, v{vO}, {WS}, s6 offen sc1')
        return l + b.lines
    seq = [(dl, T_) for dl in range(-7, 57) for T_ in range(7, -1, -1) if 0 <= 8*T_ - dl]
    first = [8*T_ - dl for dl, T_ in seq[:64]]
    for dl in range(-7, -4): kread(dl)
    for k in range(5): uread(first[k])
    ubuild(first[0])
    fill = []; seen = set()
    for i, (dl, T_) in enumerate(seq):
        s = 8*T_ - dl
        newd = i == 0 or seq[i-1][0] != dl
        if i < 63:
            ubuild(first[i+1])
        if newd: need(f'k{dl}')
        acc = ar(4*T_, 4)
        a(f'v_mfma_f32_16x16x32_bf16 {acc}, {uf(s)}, {ar(KB+4*((dl+7) % 4),4)}, {acc if T_ in seen else "0"}')
        seen.add(T_)
        if i + 5 < 64: uread(first[i+5])
        if newd and dl + 3 <= 56: kread(dl + 3)
        if newd and dl > 0 and dl % 8 == 1: fill += post((dl-1)//8)
        if i == 64: T(7)
        if i >= 64:
            n = 0
            while fill and n < 2:
                x = fill.pop(0)
                if isinstance(x, str): a(x); n += 1
                elif x[0] == 'ds': ds(x[1], x[2])
                else: need(x[1])
    T(5)
    fill += post(7)
    for x in fill:
        if isinstance(x, str): a(x)
        elif x[0] == 'ds': ds(x[1], x[2])
        else: need(x[1])
    a(f'''s_lshl_b32 s6, s{sCh}, 2
    s_add_u32 s6, s6, {FX1:#x}
    v_mov_b32 v16, 127
    s_waitcnt vmcnt(0)
    s_mov_b64 exec, 1
    buffer_store_dword v16, v{vZ}, {WS}, s6 offen sc1
    s_mov_b64 exec, -1''')
    T(6)
    mark(a, cfg, 1, 16)
    if tm:
        a('s_memtime s[58:59]\ns_waitcnt lgkmcnt(0)\ns_sub_u32 s58, s58, s56\nv_mov_b32 v24, s58')
        a(f's_waitcnt lgkmcnt(0)\ns_lshl_b32 s6, s{sCh}, 6\ns_add_u32 s6, s6, {160*MB_}')
        for k in range(8): a(f's_sub_u32 s{40+2*k}, s{40+2*k}, s98\nv_mov_b32 v{16+k}, s{40+2*k}')
        a(f's_mov_b64 exec, 1\nbuffer_store_dwordx4 v[16:19], v{vZ}, {WS}, s6 offen\nbuffer_store_dwordx4 v[20:23], v{vZ}, {WS}, s6 offen offset:16\nbuffer_store_dword v24, v{vZ}, {WS}, s6 offen offset:32\ns_mov_b64 exec, -1')
    a('s_barrier')
```

```python
from common import *
L_SH, L_KB, L_VB, L_QK, L_OB, L_WO = 0, 8192, 16384, 24576, 28928, 32768
GQ, RS = 1088, 288
vIdx, vL16, vQKw, vXr, vKx, vOw, vOr, vWo, vPst, vVx, vONE, vPM = 0, 1, 2, 3, 4, 5, 6, 7, 8, 9, 10, 12
vT, MA, KX, QK, VA, VC, SA = 16, 20, 52, 84, 100, 108, 116
WV = 128
sStep, sTag, sC = 32, 33, 34
sKV0, sKM0, sFKM, sFKV0, sPB0, sPB1, sPR0, sPR1, sMst, sMld = 35, 36, 37, 38, 39, 40, 41, 42, 43, 44
sA1, sA2, sA3, sSh0, sNeed, sKV, sFKV, sKM, sM0K = 45, 46, 47, 48, 49, 50, 51, 52, 53
sLo, sVal = 54, 56
LY = 58
sKD, sTKM = 37, 59

def wfrag(m, t, ct):
    o = (t*2 + ct)*8
    return ar(o, 8) if m == 0 else (ar(128+o, 8) if m == 1 else vr(WV+o, 8))
def wpair(m, r):
    return ar(r, 2) if m == 0 else (ar(128+r, 2) if m == 1 else vr(WV+r, 2))

def timeout_fix(a, cnt, code, retry):
    L = a.lab('tf')
    a(f'''s_and_b32 s6, s{cnt}, 31
    s_cmp_lg_u32 s6, 31
    s_cbranch_scc1 {L}
    buffer_wbl2 sc1
    s_waitcnt vmcnt(0)
    buffer_inv sc1
    s_waitcnt vmcnt(0)
    {L}:''')
    spin_check(a, cnt, code, retry)

def load_weights(a, cfg, done_cb):
    vG, vH0, vH1, vR0, vRo, vt, vWw = 116, 118, 119, 120, 124, 126, 127
    done_cb(0)
    a(f'''v_bfe_u32 v16, v0, 4, 1
    v_lshrrev_b32 v17, 5, v0
    v_lshl_or_b32 v18, v17, 5, v16
    s_and_b32 s6, s{sW}, 1
    s_lshr_b32 s7, s{sW}, 1
    s_lshl_b32 s60, s6, 4
    s_lshl_b32 s7, s7, 6
    s_add_u32 s7, s7, s60
    v_add_u32 v18, s7, v18
    v_lshlrev_b32 v18, 13, v18
    v_lshrrev_b32 v19, 4, v0
    s_lshl_b32 s6, s6, 2
    v_or_b32 v19, s6, v19
    v_lshlrev_b32 v19, 1, v19
    v_and_b32 v{vG}, 15, v0
    v_xor_b32 v19, v19, v{vG}
    v_lshl_or_b32 v{vG}, v19, 4, v18''')
    a(f'''v_bfe_u32 v18, v0, 2, 2
    v_lshl_or_b32 v19, v16, 2, v18
    v_lshl_or_b32 v18, v17, 3, v18
    v_lshl_or_b32 v18, v16, 5, v18
    v_lshlrev_b32 v18, 8, v18
    s_lshl_b32 s6, s{sW}, 1
    v_xor_b32 v19, s6, v19
    v_lshl_or_b32 v18, v19, 5, v18
    v_and_b32 v19, 3, v0
    v_lshl_or_b32 v18, v19, 3, v18
    v_add_u32 v{vR0}, {L_WO}, v18
    v_xor_b32 v{vR0+1}, 32, v{vR0}
    v_add_u32 v{vR0+2}, 0x10000, v{vR0}
    v_add_u32 v{vR0+3}, 0x10000, v{vR0+1}''')
    a(f'''v_lshrrev_b32 v16, 4, v0
    v_and_b32 v17, 15, v0
    v_lshlrev_b32 v18, 1, v16
    v_xor_b32 v17, v17, v18
    v_lshlrev_b32 v17, 4, v17
    v_lshl_or_b32 v{vH0}, v16, 10, v17
    v_xor_b32 v{vH1}, 0x80, v{vH0}
    s_lshl_b32 s60, s{sW}, 13
    s_add_u32 s60, s60, {L_WO}
    v_bfe_u32 v17, v0, 2, 2
    v_bfe_u32 v18, v0, 4, 1
    v_lshl_or_b32 v18, v18, 2, v17
    v_lshl_or_b32 v17, v16, 3, v17
    v_lshlrev_b32 v17, 8, v17
    v_lshl_or_b32 v17, v18, 5, v17
    v_lshl_or_b32 v17, v19, 3, v17
    v_add_u32 v{vRo}, s60, v17
    v_add_u32 v{vWw}, s60, v{vL16}
    s_lshl_b32 s63, s{sR}, 8''')
    def issue(c):
        m, j = c // 4, c % 4
        if m < 3: a(f's_add_u32 s61, s63, {j << 20}')
        else: a(f's_lshl_b32 s61, s{sR}, 17\ns_lshl_b32 s62, s{sW}, 15\ns_add_u32 s61, s61, s62\ns_add_u32 s61, s61, {j*256}')
        for i in range(8):
            c0, v = (i*2*8192, vG) if m < 3 else (i*4096, vH1 if (i//2) % 2 else vH0)
            a(f'''s_add_u32 m0, s60, {j*32768 + i*1024}
            s_add_u32 s62, s61, {c0}
            buffer_load_dwordx4 v{v}, s[{16+4*m}:{19+4*m}], s62 offen lds''')
    for c in range(3): issue(c)
    for c in range(16):
        m, b = c // 4, c % 4
        a(f's_waitcnt vmcnt({8*min(2, 15-c)})')
        if c <= 12: a('s_barrier')
        if c + 3 < 16: issue(c + 3)
        if m < 3:
            Le = a.lab('lw'); Ls = [a.lab('lv') for _ in range(4)]
            for w in range(1, 4): a(f's_cmp_eq_u32 s{sW}, {w}\ns_cbranch_scc1 {Ls[w]}')
            for w in range(4):
                a(f'{Ls[w]}:')
                j = (b - w) & 3
                for kbi in range(2):
                    for ct in range(2):
                        for hf in range(2):
                            for rp in range(2):
                                r = ((2*j + kbi)*2 + ct)*8 + 4*hf + 2*rp
                                a(f'ds_read_b64_tr_b16 {wpair(m, r)}, v{vR0 + ct + 2*(b//2)} offset:{(b % 2)*32768 + (4*rp + 16*hf + 64*kbi)*256}')
                if w < 3: a(f's_branch {Le}')
            a(f'{Le}:\ns_waitcnt lgkmcnt(0)')
        else:
            for ct in range(8):
                a(f'v_xor_b32 v{vt}, {ct*32}, v{vRo}')
                for rp in range(2):
                    a(f'ds_read_b64_tr_b16 {vr(MA + 4*ct + 2*rp, 2)}, v{vt} offset:{rp*1024}')
            a('s_waitcnt lgkmcnt(0)')
            for ct in range(8):
                a(f'ds_write_b128 v{vWw}, {vr(MA + 4*ct, 4)} offset:{ct*1024}')
            a(f's_waitcnt lgkmcnt(0)\nv_add_u32 v{vRo}, 0x8000, v{vRo}\nv_add_u32 v{vWw}, 0x8000, v{vWw}')

def kv_addr(a, ring):
    a(f'''s_sub_u32 s6, s{sNeed}, 1
    s_and_b32 s7, s6, 1
    s_lshl_b32 s7, s7, 12
    s_add_u32 s{sFKV}, s{sFKV0}, s7
    s_and_b32 s6, s6, {ring}
    s_lshl_b32 s6, s6, 19
    s_add_u32 s{sKV}, s{sKV0}, s6''')

def rec(a, cfg):
    ring = cfg.get('ring', 3); bar = cfg.get('rec_bar', 1); tm = cfg.get('rec_time', 0)
    def T(slot):
        if tm: a(f's_mem{"real" if cfg.get("rt") else ""}time s[{70+2*slot}:{71+2*slot}]')
    a('L_rec:')
    def sel(dst, pair):
        a(f's_cmp_eq_u32 s{LY}, 0\ns_cselect_b32 s{dst}, {pair[0]:#x}, {pair[1]:#x}' if False else
          f's_mul_i32 s{dst}, s{LY}, {pair[1]-pair[0]:#x}\ns_add_u32 s{dst}, s{dst}, {pair[0]:#x}')
    a(f's_and_b32 s{LY}, s{sX}, 1')
    sel(sKV0, KVX); sel(sKM0, KVM); sel(sPB0, PBUF); sel(sMld, MBUF)
    a(f'''s_lshl_b32 s6, s{sR}, 14
    s_lshl_b32 s7, s{sW}, 11
    s_add_u32 s{sKV0}, s{sKV0}, s6
    s_add_u32 s{sKV0}, s{sKV0}, s7
    s_mov_b32 s{sSh0}, s7
    s_lshl_b32 s6, s{sR}, 8
    s_add_u32 s{sMst}, s{sMld}, s6
    s_add_u32 s{sMld}, s{sMld}, s7
    s_lshl_b32 s7, s{sR}, 13
    s_add_u32 s{sPR0}, s{sPB0}, s7
    s_add_u32 s{sPR1}, s{sPR0}, 4096
    s_add_u32 s{sPB0}, s{sPB0}, s6
    s_add_u32 s{sPB1}, s{sPB0}, 32768
    s_lshl_b32 s7, s{sR}, 12
    s_add_u32 s{sKM0}, s{sKM0}, s7
    s_lshl_b32 s7, s{sW}, 10
    s_add_u32 s{sKM0}, s{sKM0}, s7
    s_add_u32 s{sM0K}, s{sSh0}, {L_KB}
    s_add_u32 s{sKD}, s{sSh0}, {L_VB}
    s_lshl_b32 s6, s{LY}, 13
    s_lshl_b32 s7, s{sR}, 7
    s_add_u32 s{sFKV0}, s6, s7
    s_add_u32 s{sFKV0}, s{sFKV0}, {FKV:#x}
    s_mov_b32 s{sLo}, 0x00ff00ff
    s_mov_b32 s{sLo+1}, 0x00ff00ff
    s_mov_b32 s{sVal}, 0x33333333
    s_mov_b32 s{sVal+1}, 0x33333333
    s_mov_b32 s{sC}, 0x3e0293ee''')
    for k, s in ((1, sA1), (2, sA2), (3, sA3)):
        a(f's_add_u32 s6, s{sW}, {k}\ns_and_b32 s6, s6, 3\ns_lshl_b32 s{s}, s6, 11')
    lanec = (f'''v_and_b32 v16, 15, v0
    v_lshrrev_b32 v17, 4, v0
    v_lshlrev_b32 v{vL16}, 4, v0
    s_lshl_b32 s6, s{sW}, 8
    s_add_u32 s6, s6, {L_QK}
    v_mul_u32_u24 v18, {GQ}, v17
    v_lshl_add_u32 v18, v16, 3, v18
    v_add_u32 v{vQKw}, s6, v18
    v_and_b32 v18, 3, v0
    v_mul_u32_u24 v18, {GQ}, v18
    v_bfe_u32 v19, v0, 2, 3
    v_lshl_add_u32 v18, v19, 3, v18
    v_lshrrev_b32 v19, 5, v0
    v_lshl_add_u32 v18, v19, 7, v18
    v_add_u32 v{vXr}, {L_QK}, v18
    v_and_b32 v18, 7, v0
    v_bfe_u32 v19, v0, 3, 1
    v_lshl_or_b32 v18, v19, 4, v18
    v_lshlrev_b32 v18, 4, v18
    v_lshl_add_u32 v18, v17, 9, v18
    v_add_u32 v{vKx}, {L_KB}, v18
    v_lshrrev_b32 v18, 2, v16
    v_and_b32 v19, 1, v0
    v_lshl_or_b32 v18, v18, 1, v19
    v_mul_u32_u24 v18, {RS}, v18
    v_lshl_add_u32 v18, v17, 2, v18
    s_lshl_b32 s6, s{sW}, 6
    s_add_u32 s6, s6, {L_OB}
    v_add_u32 v{vOw}, s6, v18
    v_lshrrev_b32 v18, 1, v16
    v_mul_u32_u24 v18, {RS}, v18
    v_lshl_add_u32 v18, v17, 5, v18
    v_lshl_add_u32 v18, v19, 4, v18
    v_add_u32 v{vOr}, {L_OB}, v18
    s_lshl_b32 s6, s{sW}, 15
    s_add_u32 s6, s6, {L_WO}
    v_add_u32 v{vWo}, s6, v{vL16}
    v_lshrrev_b32 v18, 2, v16
    v_lshlrev_b32 v18, 13, v18
    v_and_b32 v19, 3, v0
    v_lshl_or_b32 v19, v17, 2, v19
    v_lshl_or_b32 v18, v19, 4, v18
    s_lshl_b32 s6, s{sW}, 16
    v_add_u32 v{vPst}, s6, v18
    v_lshlrev_b32 v18, 4, v16
    v_lshl_or_b32 v18, v17, 9, v18
    v_add_u32 v{vVx}, s{sKD}, v18
    v_mov_b32 v{vONE}, 0x3f803f80
    v_mov_b32 v{vONE+1}, 0x3f803f80
    ''' + '\n'.join(f'v_mov_b32 v{vPM+r}, 0' for r in range(4)))
    a(lanec)
    a(f"""buffer_store_dwordx4 {vr(vPM,4)}, v{vPst}, {WS}, s{sPB0} offen sc1
    buffer_store_dwordx4 {vr(vPM,4)}, v{vPst}, {WS}, s{sPB1} offen sc1""")
    for k in range(4): a(f's_add_u32 s6, s{sKM0}, {k << 17}\nbuffer_store_dwordx4 {vr(vPM,4)}, v{vL16}, {WS}, s6 offen sc1')
    a(f"""s_mov_b64 exec, 0xffff
    buffer_store_dwordx4 {vr(vPM,4)}, v{vL16}, {WS}, s{sMst} offen sc1
    s_mov_b64 exec, -1""")
    if cfg.get('integ'):
        a(f's_cmp_eq_u32 s{sX}, 1\ns_cbranch_scc1 L_pro\ns_branch L_rec3\nL_rec2:')
        a(lanec)
        a('L_rec3:')
    srd(a, 16, P_WQ, 4*MB_); srd(a, 20, P_WK, 4*MB_); srd(a, 24, P_WV, 4*MB_); srd(a, 28, P_WO, 4*MB_)
    load_weights(a, cfg, lambda n: role_done(a, cfg, n))
    mark(a, cfg, 2, 16)
    srd(a, 16, P_M0, 8192)
    a(f"""v_and_b32 v16, 15, v0
    v_lshrrev_b32 v17, 1, v16
    v_lshlrev_b32 v17, 10, v17
    v_and_b32 v18, 1, v0
    v_lshl_or_b32 v17, v18, 6, v17
    v_lshrrev_b32 v19, 4, v0
    v_lshl_or_b32 v17, v19, 3, v17
    s_lshl_b32 s6, s{sW}, 8""")
    for k, off in enumerate((0, 32, 128, 160)):
        a(f'buffer_load_dwordx2 {vr(MA+2*k, 2)}, v17, s[16:19], s6 offen offset:{off}')
    a(f"""v_mov_b32 v19, 0x4444
    v_mov_b32 v16, 0xeeee
    v_cmp_eq_u32 vcc, 0, v18
    v_cndmask_b32 v{vIdx}, v16, v19, vcc""")
    wait_done(a, vT, vT+1, 10)
    a(f's_mov_b32 s{sStep}, 0\ns_mov_b32 s{sNeed}, 1\ns_mov_b32 s{sTag}, 1')
    def kvdma():
        if cfg.get('x_nokv'): return
        a(f"""s_mov_b32 m0, s{sM0K}
        s_add_u32 s6, s{sKV}, 0x2000
        buffer_load_dwordx4 v{vL16}, {WS}, s{sKV} offen sc1 lds
        buffer_load_dwordx4 v{vL16}, {WS}, s{sKV} offen offset:1024 sc1 lds
        s_mov_b32 m0, s{sKD}
        s_nop 0
        buffer_load_dwordx4 v{vL16}, {WS}, s6 offen sc1 lds
        buffer_load_dwordx4 v{vL16}, {WS}, s6 offen offset:1024 sc1 lds""")
    def prep():
        for k, s in enumerate((sSh0, sA1, sA2, sA3)): a(f'v_add_u32 v{SA+k}, s{s}, v{vL16}')
        for r in range(QK, QK+24, 2): a(f'v_mov_b64 {vr(r,2)}, 0')
    kv_addr(a, ring)
    poll_ge(a, vPM+1, sFKV, sNeed, SA+4, 11, 4)
    mark(a, cfg, 3, 16)
    kvdma()
    a(f's_mov_b32 s{sNeed}, 2')
    kv_addr(a, ring)
    prep()
    a('s_waitcnt vmcnt(0)')
    mark(a, cfg, 7, 16)
    a('s_branch L_rec_step')
    def gl(r): a(f"""buffer_load_dwordx4 {vr(r,4)}, v{vL16}, {WS}, s{sMld} offen sc1
        buffer_load_dwordx4 {vr(r+4,4)}, v{vL16}, {WS}, s{sMld} offen offset:1024 sc1""")
    def gchk(r, ok): a(f"""v_bitop3_b32 v{vT}, v{r}, v{r+2}, s{sTag} bitop3:0x7e
        v_bitop3_b32 v{vT+1}, v{r+4}, v{r+6}, s{sTag} bitop3:0x7e
        v_bitop3_b32 v{vT}, v{vT}, v{vT+1}, 1 bitop3:0xa8
        v_cmp_ne_u32 vcc, 0, v{vT}
        s_cbranch_vccz {ok}""")
    a('L_rec_loop:')
    gl(MA)
    a('s_mov_b32 s7, 0')
    for k in range(cfg.get('g_gap', 1)): prep()
    a('L_rec_gather:')
    gl(KX)
    a('s_waitcnt vmcnt(2)'); gchk(MA, 'L_rec_got')
    gl(MA)
    a('s_waitcnt vmcnt(2)'); gchk(KX, 'L_rec_gotB')
    timeout_fix(a, 7, 12, 'L_rec_gather')
    a('L_rec_gotB:')
    for r in range(0, 8, 2): a(f'v_mov_b64 {vr(MA+r,2)}, {vr(KX+r,2)}')
    a(f"""L_rec_got:
    s_mov_b32 s63, s7
    s_xor_b32 s{sTag}, s{sTag}, 1
    L_rec_step:""")
    T(0)
    def sm(m, t, ct):
        acc = (QK, QK+8, VA)[m] + 4*ct
        return f'v_smfmac_f32_16x16x64_bf16 {vr(acc,4)}, {vr(MA+4*t,4)}, {wfrag(m,t,ct)}, v{vIdx}'
    def red(acc, dst): return [f'v_add_f32 v{acc}, v{acc}, v{acc+1}', f'v_add_f32 v{acc+2}, v{acc+2}, v{acc+3}', f'v_cvt_pk_bf16_f32 v{dst}, v{acc}, v{acc+2}']
    a(f"""ds_write_b128 v{SA}, {vr(MA,4)}
    ds_write_b128 v{SA}, {vr(MA+4,4)} offset:1024
    buffer_load_dwordx4 {vr(SA+4,4)}, v{vPM+1}, {WS}, s{sFKV} offen sc1""")
    own = [sm(m, t, ct) for m in range(3) for t in range(2) for ct in range(2)]
    nb = cfg.get('own_pre', 4)
    for x in own[:nb]: a(x)
    a('s_waitcnt lgkmcnt(0)\ns_barrier')
    mar = [f'ds_read_b128 {vr(MA+4*t,4)}, v{SA+t//2} offset:{(t%2)*1024}' for t in range(2, 8)]
    kxr = [f'ds_read_b128 {vr(KX+16*T_+4*ks,4)}, v{vKx} offset:{ks*2048+T_*128}' for ks in range(4) for T_ in range(2)]
    a(mar[0]); a(mar[1]); a(own[nb]); a(mar[2]); a(mar[3]); a(own[nb+1]); a(mar[4]); a(mar[5])
    misc = [f's_and_b32 s6, s{sStep}, {ring}', 's_lshl_b32 s6, s6, 17', f's_add_u32 s{sKM}, s{sKM0}, s6', f's_lshr_b32 s6, s{sStep}, 2', f's_andn2_b32 s{sTKM}, 1, s6']
    for x in own[nb+2:]:
        a(x)
        if misc: a(misc.pop(0))
    for x in misc: a(x)
    for t in range(2, 8):
        a(f's_waitcnt lgkmcnt({7-t})'); a(sm(0,t,0)); a(sm(0,t,1))
    a('s_waitcnt vmcnt(1)')
    r0 = red(QK, vT); r1 = red(QK+4, vT+2); r2 = red(QK+8, vT+1); r3 = red(QK+12, vT+3)
    for t in range(2, 8):
        a(sm(1,t,0))
        if t < 6: a(kxr[2*(t-2)]); a(kxr[2*(t-2)+1])
        if t >= 4: a((r0 + r1)[t-4])
    a(sm(1,2,1)); a(r1[1]); a(f'ds_read_b128 {vr(VC,4)}, v{vVx}\nds_read_b128 {vr(VC+4,4)}, v{vVx} offset:256')
    a(sm(1,3,1)); a(r1[2])
    a(sm(1,4,1)); a(r2[0])
    a(sm(1,5,1)); a(r2[1])
    a(sm(1,6,1)); a(r2[2])
    a(sm(1,7,1)); a(f'ds_write_b64 v{vQKw}, {vr(vT,2)}')
    T(1)
    V = [sm(2, t, ct) for t in range(2, 8) for ct in range(2)]
    a(V[0]); a(V[1])
    for x in r3: a(x)
    a(f'ds_write_b64 v{vQKw}, {vr(vT+2,2)} offset:128')
    a(V[2]); a(V[3])
    a('s_waitcnt lgkmcnt(0)\ns_barrier')
    for ks in range(4):
        for sub in range(2): a(f'ds_read_b64_tr_b16 {vr(QK+4*ks+2*sub,2)}, v{vXr} offset:{ks*256+sub*64}')
        a(V[4+ks])
    nv = cfg.get('v_pre', 1)
    a(f"""s_cmp_eq_u32 s{sStep}, 63
    s_waitcnt vmcnt(0)
    s_cbranch_scc1 L_rec_nokv
    v_min_u32 v{SA+4}, v{SA+4}, v{SA+5}
    v_min3_u32 v{SA+4}, v{SA+4}, v{SA+6}, v{SA+7}
    v_cmp_gt_u32 vcc, s{sNeed}, v{SA+4}
    s_cbranch_vccnz L_rec_kvwait
    L_rec_kvok:""")
    kvdma()
    a('L_rec_nokv:')
    for x in V[8:8+nv]: a(x)
    T(2)
    for ks in range(4):
        a(f's_waitcnt lgkmcnt({6-2*ks})')
        c = lambda r: '0' if ks == 0 else vr(r, 4)
        a(f'v_mfma_f32_16x16x32_bf16 {vr(SA,4)}, {vr(KX+4*ks,4)}, {vr(QK+4*ks,4)}, {c(SA)}')
        a(f'v_mfma_f32_16x16x32_bf16 {vr(SA+4,4)}, {vr(KX+16+4*ks,4)}, {vr(QK+4*ks,4)}, {c(SA+4)}')
        a(f'v_mfma_f32_16x16x32_bf16 {vr(SA+8,4)}, {vr(QK+4*ks,4)}, {vr(QK+4*ks,4)}, {c(SA+8)}')
    V = V[8+nv:]
    seq = [(0,0),(1,0),(0,1),(1,1),(2,0),(3,0),(2,1),(3,1),(4,0),(5,0),(4,1),(5,1),(6,0),(7,0),(6,1),(7,1)]
    slots = [KX, KX+8, KX+16, KX+24, MA, MA+8, MA+16, MA+24]
    def word(i):
        ct, kb = seq[i]
        return [f'ds_read_b128 {vr(slots[i%8]+4*hf,4)}, v{vWo} offset:{(2*kb+hf)*8192+ct*1024}' for hf in range(2)]
    pre = sum([word(i) for i in range(8)], [])
    def P(n=1):
        for _ in range(n):
            if pre: a(pre.pop(0))
    def Vn():
        if V: a(V.pop(0))
    Vn(); P(2)
    T(3)
    m_, t_ = QK+4, QK+5; PX = QK+8
    sv = [SA+i for i in range(8)] + [SA+10, SA+11]
    a(f'v_max3_f32 v{m_}, v{sv[0]}, v{sv[1]}, v{sv[2]}')
    a(f'v_max3_f32 v{t_}, v{sv[4]}, v{sv[5]}, v{sv[6]}')
    a(f'v_max3_f32 v{m_}, v{m_}, v{sv[3]}, v{sv[7]}')
    a(f'v_max3_f32 v{t_}, v{t_}, v{sv[8]}, v{sv[9]}')
    a(f'v_max_f32 v{m_}, v{m_}, v{t_}\nv_max_f32 v{t_}, v{m_}, v{t_}')
    Vn(); P(1)
    a(f'v_permlane32_swap_b32 v{m_}, v{t_}\nv_max_f32 v{m_}, v{m_}, v{t_}\nv_max_f32 v{t_}, v{m_}, v{t_}')
    Vn(); P(1)
    a(f'v_permlane16_swap_b32 v{m_}, v{t_}\nv_max_f32 v{m_}, v{m_}, v{t_}\nv_mul_f32 v{m_}, s{sC}, v{m_}')
    while V: Vn()
    def fm(r): a(f'v_fma_f32 v{r}, v{r}, s{sC}, -v{m_}')
    def ex(r): a(f'v_exp_f32 v{r}, v{r}'); P(1)
    fm(sv[8]); fm(sv[9]); ex(sv[8]); ex(sv[9])
    for i in range(4): fm(sv[i])
    SUM = SA+8
    a(f'v_cvt_pk_bf16_f32 v{vPM}, v{sv[8]}, v{sv[9]}')
    ex(sv[0]); ex(sv[1])
    a(f'v_mfma_f32_16x16x16_bf16 {vr(SUM,4)}, {vr(vONE,2)}, {vr(vPM,2)}, 0')
    ex(sv[2]); ex(sv[3])
    for x in red(VA, vT): a(x)
    a(f'v_cvt_pk_bf16_f32 v{PX}, v{sv[0]}, v{sv[1]}\nv_cvt_pk_bf16_f32 v{PX+1}, v{sv[2]}, v{sv[3]}')
    for x in red(VA+4, vT+2): a(x)
    a(f'v_mfma_f32_16x16x16_bf16 {vr(SUM,4)}, {vr(vONE,2)}, {vr(PX,2)}, {vr(SUM,4)}')
    a(f'v_bfi_b32 v{vT}, 1, s{sTKM}, v{vT}')
    for i in range(4, 6): fm(sv[i])
    if not cfg.get('x_nokm'): a(f'buffer_store_dwordx4 {vr(vT,4)}, v{vL16}, {WS}, s{sKM} offen sc1')
    a(f'v_mfma_f32_16x16x16_bf16 {vr(VA,4)}, {vr(vT,2)}, {vr(vPM,2)}, 0')
    for i in range(6, 8): fm(sv[i])
    a(f'v_mfma_f32_16x16x16_bf16 {vr(VA+4,4)}, {vr(vT+2,2)}, {vr(vPM,2)}, 0')
    for i in range(4, 8): ex(sv[i])
    a(f's_cmp_eq_u32 s{sStep}, 63')
    a(f'v_cvt_pk_bf16_f32 v{PX+2}, v{sv[4]}, v{sv[5]}\nv_cvt_pk_bf16_f32 v{PX+3}, v{sv[6]}, v{sv[7]}')
    a('s_cbranch_scc1 L_rec_last')
    T(4)
    a(f'v_mfma_f32_16x16x16_bf16 {vr(SUM,4)}, {vr(vONE,2)}, {vr(PX+2,2)}, {vr(SUM,4)}')
    a(f'v_mfma_f32_16x16x32_bf16 {vr(VA,4)}, {vr(VC,4)}, {vr(PX,4)}, {vr(VA,4)}')
    a(f'v_mfma_f32_16x16x32_bf16 {vr(VA+4,4)}, {vr(VC+4,4)}, {vr(PX,4)}, {vr(VA+4,4)}')
    P(16)
    a(f'v_rcp_f32 v{SUM}, v{SUM}')
    O_ = SA
    for t in range(2):
        for r in range(4): a(f'v_mul_f32 v{VA+4*t+r}, v{SUM}, v{VA+4*t+r}')
        a(f'v_cvt_pk_bf16_f32 v{O_+2*t}, v{VA+4*t}, v{VA+4*t+1}\nv_cvt_pk_bf16_f32 v{O_+2*t+1}, v{VA+4*t+2}, v{VA+4*t+3}')
    a(f"""s_mov_b64 exec, s[{sVal}:{sVal+1}]
    ds_write2_b32 v{vOw}, v{O_}, v{O_+1} offset0:0 offset1:4
    ds_write2_b32 v{vOw}, v{O_+2}, v{O_+3} offset0:8 offset1:12
    s_mov_b64 exec, -1
    v_mfma_f32_32x32x8_bf16 {vr(QK,16)}, {vr(vPM,2)}, {vr(vPM+2,2)}, 0
    v_mfma_f32_32x32x8_bf16 {vr(QK+16,16)}, {vr(vPM,2)}, {vr(vPM+2,2)}, 0
    s_waitcnt lgkmcnt(0)
    s_barrier
    ds_read_b128 {vr(SA,4)}, v{vOr}
    ds_read_b128 {vr(SA+4,4)}, v{vOr} offset:128""")
    T(5)
    qd = ['o0', 'o1']
    def need(tags):
        last = max([k for k, x in enumerate(qd) if x in tags], default=-1)
        if last >= 0:
            a(f's_waitcnt lgkmcnt({len(qd)-1-last})'); del qd[:last+1]
    PK = SA+8; PK2 = vT
    valu = []
    def pack(ct):
        d = (PK, PK2)[ct//4] + ct % 4
        return red(QK+4*ct, d)
    for i in range(16):
        ct, kb = seq[i]; sl = slots[i % 8]
        need({f'f{i}', f'o{kb}'})
        a(f'v_smfmac_f32_16x16x64_bf16 {vr(QK+4*ct,4)}, {vr(SA+4*kb,4)}, {vr(sl,8)}, v{vIdx}')
        if i + 8 < 16:
            for x in word(i+8): a(x)
            qd += [f'f{i+8}']*2
        if i == 5: valu += pack(0) + pack(1)
        if i == 9: valu += pack(2) + pack(3) + [f'v_bfi_b32 v{PK}, 1, s{sTag}, v{PK}', f'buffer_store_dwordx4 {vr(PK,4)}, v{vPst}, {WS}, s{sPB0} offen']
        if i == 13: valu += pack(4) + pack(5)
        n = 1 if i < 8 else 2
        for x in valu[:n]: a(x)
        del valu[:n]
    for x in valu: a(x)
    for x in pack(6) + pack(7): a(x)
    a(f'v_bfi_b32 v{PK2}, 1, s{sTag}, v{PK2}\nbuffer_store_dwordx4 {vr(PK2,4)}, v{vPst}, {WS}, s{sPB1} offen')
    T(6)
    a(f's_add_u32 s{sStep}, s{sStep}, 1\ns_add_u32 s{sNeed}, s{sStep}, 2\ns_cmp_lg_u32 s{sW}, 0\ns_cbranch_scc1 L_rec_nored')
    def rloads(r):
        for i in range(8): a(f'buffer_load_dwordx4 {vr(r+4*i,4)}, v{vL16}, {WS}, s{sPR0 if i < 4 else sPR1} offen offset:{(i%4)*1024} sc1')
    SEL = SA+4; D_ = SA+8; AD = VC; F_ = VC+1
    a(f"""v_bfe_u32 v{AD}, v{vL16}, 4, 4
    v_and_b32 v{F_}, 1, v{AD}
    v_lshlrev_b32 v{F_+1}, 4, v{F_}
    v_mov_b32 v{F_+2}, 0x3f80
    v_lshlrev_b32 v{F_+1}, v{F_+1}, v{F_+2}
    v_lshrrev_b32 v{F_+2}, 1, v{AD}""")
    for k in range(4): a(f'v_cmp_eq_u32 vcc, {k}, v{F_+2}\nv_cndmask_b32 v{SEL+k}, 0, v{F_+1}, vcc')
    rg = cfg.get('r_gap', 0)
    if rg == 0: rloads(MA)
    a(f"""v_lshlrev_b32 v{F_}, 5, v{F_}
    v_bfe_u32 v{F_+1}, v{AD}, 2, 1
    v_lshl_or_b32 v{F_}, v{F_+1}, 4, v{F_}
    v_bfe_u32 v{F_+1}, v{AD}, 1, 1
    v_lshl_or_b32 v{F_}, v{F_+1}, 3, v{F_}
    v_lshrrev_b32 v{F_+1}, 8, v{vL16}
    v_lshl_or_b32 v{AD}, v{F_+1}, 6, v{F_}""")
    kv_addr(a, ring)
    if rg: rloads(MA)
    a('s_mov_b32 s7, 0\nL_rec_rr:')
    def rround(r, ok):
        for i in range(8):
            a(f's_waitcnt vmcnt({15-i})')
            a(f'v_mfma_f32_16x16x32_bf16 {vr(D_,4)}, {vr(r+4*i,4)}, {vr(SEL,4)}, {"0" if i == 0 else vr(D_,4)}')
            if i % 2: a(f'v_bitop3_b32 v{F_+i//2}, v{r+4*i-4}, v{r+4*i}, s{sTag} bitop3:0x7e')
        a(f"""v_or3_b32 v{F_}, v{F_}, v{F_+1}, v{F_+2}
        v_bitop3_b32 v{F_}, v{F_}, v{F_+3}, 1 bitop3:0xa8
        v_cmp_ne_u32 vcc, 0, v{F_}
        s_cbranch_vccz {ok}""")
    rloads(KX); rround(MA, 'L_rec_red')
    rloads(MA); rround(KX, 'L_rec_red')
    timeout_fix(a, 7, 14, 'L_rec_rr')
    a('L_rec_red:')
    T(7)
    if tm: a('s_mov_b32 s62, s7')
    a(f"""v_cvt_pk_bf16_f32 v{D_}, v{D_}, v{D_+1}
    v_cvt_pk_bf16_f32 v{D_+1}, v{D_+2}, v{D_+3}
    v_bfi_b32 v{D_}, 1, s{sTag}, v{D_}
    s_mov_b64 exec, s[{sLo}:{sLo+1}]
    buffer_store_dwordx2 {vr(D_,2)}, v{AD}, {WS}, s{sMst} offen
    s_cmp_lg_u32 s{sStep}, 63
    s_cbranch_scc1 L_rec_nl
    buffer_store_dwordx2 {vr(D_,2)}, v{AD}, {WS}, s{sMst} offen sc1
    L_rec_nl:
    s_mov_b64 exec, -1
    s_barrier""")
    T(8)
    if tm: time_dump(a)
    a('s_branch L_rec_loop\nL_rec_nored:')
    kv_addr(a, ring)
    a('s_barrier')
    T(8)
    if tm: time_dump(a)
    a('s_branch L_rec_loop\nL_rec_kvwait:')
    poll_ge(a, vPM+1, sFKV, sNeed, SA+4, 13, 4)
    a(f"""s_branch L_rec_kvok
    L_rec_last:""")
    mark(a, cfg, 8, 16)
    a('s_waitcnt vmcnt(0)\ns_endpgm')

def time_dump(a):
    a(f'''s_waitcnt lgkmcnt(0)
    s_lshl_b32 s6, s{sX}, 5
    s_add_u32 s6, s6, s{sR}
    s_lshl_b32 s6, s6, 2
    s_add_u32 s6, s6, s{sW}
    s_lshl_b32 s6, s6, 6
    s_add_u32 s6, s6, s{sStep}
    s_lshl_b32 s6, s6, 6
    s_add_u32 s6, s6, {160*MB_}''')
    for k in range(9): a(f'v_mov_b32 v{QK+k}, s{70+2*k}')
    a(f'v_mov_b32 v{QK+9}, s62\nv_mov_b32 v{QK+10}, s63')
    a(f'''s_mov_b64 exec, 1
    buffer_store_dwordx4 {vr(QK,4)}, v{vPM+1}, {WS}, s6 offen
    buffer_store_dwordx4 {vr(QK+4,4)}, v{vPM+1}, {WS}, s6 offen offset:16
    buffer_store_dwordx4 {vr(QK+8,4)}, v{vPM+1}, {WS}, s6 offen offset:32
    s_mov_b64 exec, -1''')
```

```python
from common import *
from rec import timeout_fix
UROW = 4128
L_K, L_U, L_X2, L_TB, L_F = 0, 73728, 139776, 147968, 150016
vL16, vZ, vF = 0, 1, 2
sS, sNeed, sA, sB, sTag, sRes0, sOP0, sFOP, sST, sO = range(32, 42)
sNx, sPa, sTP, sGo, sSel = 43, 44, 45, 46, 20

def unpack(a, dlo, dhi, src): a(f'v_lshlrev_b32 v{dlo}, 16, v{src}\nv_and_b32 v{dhi}, 0xffff0000, v{src}')

def lds_wait(a, off, n, need, t, code):
    L = a.lab('lw'); Lo = a.lab('lwo')
    a(f's_mov_b32 s7, 0\n{L}:\nds_read_b{32*n} {vr(t,n)}, v{vF} offset:{off}\ns_waitcnt lgkmcnt(0)')
    if n == 2: a(f'v_min_i32 v{t}, v{t}, v{t+1}')
    a(f'v_cmp_gt_i32 vcc, s{need}, v{t}\ns_cbranch_vccz {Lo}')
    spin_check(a, 7, code, L)
    a(f'{Lo}:')

def tdump(a, n, v):
    a(f'''s_waitcnt lgkmcnt(0)
    s_lshl_b32 s6, s{sX}, 5
    s_add_u32 s6, s6, s{sR}
    s_lshl_b32 s6, s6, 2
    s_add_u32 s6, s6, s{sW}
    s_lshl_b32 s6, s6, 6
    s_add_u32 s6, s6, s{sS}
    s_lshl_b32 s6, s6, 6
    s_add_u32 s6, s6, {160*MB_}''')
    for k in range(n): a(f'v_mov_b32 v{v+k}, s{70+2*k}')
    a('s_mov_b64 exec, 1')
    for k in range(0, n, 4): a(f'buffer_store_dwordx4 {vr(v+k,4)}, v{vZ}, {WS}, s6 offen offset:{4*k}')
    a('s_mov_b64 exec, -1')

def c(a, cfg):
    tm = cfg.get('c_time', 0)
    def T(slot):
        if tm: a(f's_mem{"real" if cfg.get("rt") else ""}time s[{70+2*slot}:{71+2*slot}]')
    a('L_c:')
    a(f'''v_lshlrev_b32 v4, 2, v0
    v_lshlrev_b32 v{vL16}, 4, v0
    v_mov_b32 v{vZ}, 0
    v_mov_b32 v{vF}, {L_F}
    s_lshl_b32 s6, s{sR}, 8
    s_add_u32 s6, s6, {ST2:#x}
    s_add_u32 s7, s6, 0x2000
    buffer_store_dword v{vZ}, v4, {WS}, s6 offen sc1
    buffer_store_dword v{vZ}, v4, {WS}, s7 offen sc1
    s_lshl_b32 s6, s{sR}, 3
    s_add_u32 s6, s6, {FX3:#x}
    s_mov_b64 exec, 3
    buffer_store_dword v{vZ}, v4, {WS}, s6 offen sc1
    buffer_store_dword v{vZ}, v4, {WS}, s6 offen offset:256 sc1
    s_mov_b64 exec, -1
    s_lshl_b32 s6, s{sR}, 10
    s_lshl_b32 s7, s{sW}, 15
    s_add_u32 s6, s6, s7
    s_add_u32 s6, s6, {OP[0]:#x}''')
    for r in range(8, 12): a(f'v_mov_b32 v{r}, 0')
    for k in range(8):
        a(f'buffer_store_dwordx4 v[8:11], v{vL16}, {WS}, s6 offen sc1')
        if k < 7: a(f's_add_u32 s6, s6, {0x20000 if k != 3 else OP[1] - OP[0] - 0x60000:#x}')
    signal_done(a, 'vmcnt(0)', 6)
    a(f'''v_bfe_u32 v5, v{vL16}, 5, 4
    v_mul_u32_u24 v5, {UROW}, v5
    v_and_b32 v6, 16, v{vL16}
    v_add3_u32 v5, v5, v6, v{vZ}''')
    a(f'v_add_u32 v5, {L_U}, v5\nds_write_b128 v5, v[8:11]\nds_write_b128 v{vF}, v[8:11]\nds_write_b128 v{vF}, v[8:11] offset:16')
    for r in range(256): a(f'v_accvgpr_write_b32 a{r}, 0')
    wait_done(a, 8, 9, 40, 1)
    a(f'''v_and_b32 v4, 60, v4
    s_lshl_b32 s6, s{sR}, 6
    s_add_u32 s{sA}, s6, {FX1:#x}
    s_mov_b32 s{sNeed}, 127''')
    poll_ge(a, 4, sA, sNeed, 8, 41, 1)
    a(f's_mul_i32 s{sA}, s{sR}, {16*KT_ROW}\ns_mul_i32 s{sB}, s{sW}, {18*1024}\ns_add_u32 s{sA}, s{sA}, s{sB}\ns_add_u32 s{sA}, s{sA}, {KT:#x}')
    for i in range(18):
        if i % 4 == 0: a(f's_add_u32 m0, s{sB}, {L_K + i*1024}\ns_add_u32 s6, s{sA}, {i*1024}')
        a(f'buffer_load_dwordx4 v{vL16}, {WS}, s6 offen offset:{(i%4)*1024} lds')
    a(f'''s_mov_b32 s{sS}, 0
    s_waitcnt vmcnt(0) lgkmcnt(0)
    s_barrier
    s_cmp_ge_u32 s{sW}, 2
    s_cbranch_scc1 L_c_res''')
    vKa, vUa, vTw, vTr, vUr, vXr, vSt, vK0, vD, vV = 4, 5, 6, 7, 8, 9, 10, 11, 12, 13
    AF, BF, Y, UU, X2, t = 16, 48, 80, 84, 86, 88
    sM = 42
    srd(a, 16, P_DS, 1024)
    a(f'''v_bfe_u32 v16, v{vL16}, 4, 4
    v_lshrrev_b32 v17, 8, v{vL16}
    v_lshrrev_b32 v18, 7, v{vL16}
    s_lshl_b32 s6, s{sR}, 5
    s_lshl_b32 s7, s{sW}, 4
    s_add_u32 s6, s6, s7
    v_lshlrev_b32 v19, 1, v18
    buffer_load_ushort v{vD}, v19, s[16:19], s6 offen
    s_mul_i32 s6, s{sW}, {8*KT_ROW}
    v_mul_u32_u24 v19, {KT_ROW}, v18
    v_add_u32 v19, s6, v19
    ds_read_b32 v{vK0}, v19 offset:{L_K + 4576}
    s_add_u32 s6, s6, {L_K + 480}
    v_lshlrev_b32 v19, 5, v16
    v_sub_u32 v19, s6, v19
    v_lshl_add_u32 v{vKa}, v17, 4, v19
    s_mul_i32 s6, s{sW}, {8*UROW}
    s_add_u32 s6, s6, {L_U}
    v_lshlrev_b32 v19, 1, v16
    v_lshl_add_u32 v19, v17, 4, v19
    v_add_u32 v{vUa}, s6, v19
    v_mul_u32_u24 v19, {UROW}, v18
    v_bfe_u32 v20, v{vL16}, 1, 6
    v_add3_u32 v19, v19, v20, s6
    v_add_u32 v{vUr}, 32, v19
    s_lshl_b32 s6, s{sW}, 10
    s_add_u32 s6, s6, {L_TB}
    v_add_u32 v{vTr}, s6, v{vL16}
    v_and_b32 v19, 1, v16
    v_lshlrev_b32 v19, 6, v19
    v_lshl_add_u32 v19, v17, 4, v19
    v_add_u32 v{vTw}, s6, v19
    v_lshrrev_b32 v{vSt}, 1, v{vL16}
    s_lshl_b32 s6, s{sW}, 9
    s_add_u32 s{sB}, s6, {L_X2}
    s_lshl_b32 s7, s{sR}, 10
    s_add_u32 s6, s6, s7
    s_add_u32 s{sST}, s6, {XT[1]:#x}
    s_lshl_b32 s6, s{sR}, 3
    s_lshl_b32 s7, s{sW}, 2
    s_add_u32 s6, s6, s7
    s_add_u32 s{sFOP}, s6, {FX3:#x}
    v_add_u32 v14, s7, v{vF}
    s_waitcnt vmcnt(0) lgkmcnt(0)
    v_lshlrev_b32 v{vD}, 16, v{vD}''')
    UA, RW, vSh = 104, 112, 15
    a(f'v_and_b32 v{vSh}, 2, v{vUa}\nv_and_b32 v{vUa}, -4, v{vUa}')
    for cl in range(8): a(f'v_add_u32 v{UA+cl}, {cl*UROW}, v{vUa}')
    def kb(i, cl, T_): return f'ds_read_b128 {vr(BF+4*(i%8),4)}, v{vKa} offset:{cl*KT_ROW + 512*(7-T_)}'
    def mf(i, cl, T_):
        acc = ar(32*cl + 4*T_, 4)
        return f'v_mfma_f32_16x16x32_bf16 {acc}, {vr(AF+4*cl,4)}, {vr(BF+4*(i%8),4)}, {acc}'
    for T0 in range(8):
        Lp = f'L_c_conv{T0}'
        a(f'''{Lp}:
        s_add_u32 s{sNeed}, s{sS}, 1
        s_and_b32 s6, s{sS}, 7
        s_lshl_b32 s7, s6, 10
        s_add_u32 s7, s7, s{sB}
        v_add_u32 v{vXr}, s7, v{vSt}
        s_lshl_b32 s6, s6, 1
        s_lshl_b32 s{sM}, 0x30003, s6
        v_mov_b32 v{vV}, s{sNeed}''')
        for cl in range(8): a(kb(cl, cl, T0))
        lds_wait(a, 0, 1, sNeed, t, 42)
        T(0)
        rest = [(cl, T_) for T_ in range(T0+1, 8) for cl in range(8)]
        if cfg.get('x_c'): rest = []
        qd = []
        def ds(x, tag): a(x); qd.append(tag)
        def need(tag):
            last = max([k for k, x in enumerate(qd) if x == tag], default=-1)
            if last >= 0:
                a(f's_waitcnt lgkmcnt({len(qd)-1-last})'); del qd[:last+1]
        def ur(cl):
            r = RW + 6*(cl % 4)
            ds(f'ds_read2_b32 {vr(r,2)}, v{UA+cl} offset0:0 offset1:1', f'u{cl}')
            ds(f'ds_read2_b32 {vr(r+2,2)}, v{UA+cl} offset0:2 offset1:3', f'u{cl}')
            ds(f'ds_read_b32 v{r+4}, v{UA+cl} offset:16', f'u{cl}')
        for cl in range(4): ur(cl)
        for cl in range(8):
            need(f'u{cl}')
            r = RW + 6*(cl % 4)
            for d in range(4): a(f'v_alignbyte_b32 v{AF+4*cl+d}, v{r+d+1}, v{r+d}, v{vSh}')
            if cl < 4: ur(cl + 4)
            if cl == 4: ds(f'ds_read_b64 {vr(UU,2)}, v{vUr}', 'x'); ds(f'ds_read_b64 {vr(X2,2)}, v{vXr}', 'x')
            if cl > 0:
                a(mf(cl-1, cl-1, T0))
        a(mf(7, 7, T0))
        need('x')
        for cl in range(min(8, len(rest))): a(kb(cl, *rest[cl]))
        a(f's_mov_b32 exec_lo, s{sM}\ns_mov_b32 exec_hi, s{sM}')
        for cl in range(8): a(f'ds_write_b128 v{vTw}, {ar(32*cl+4*T0,4)} offset:{cl*128}')
        a(f's_mov_b64 exec, -1\nds_read_b128 {vr(Y,4)}, v{vTr}\nds_write_b32 v14, v{vV} offset:8')
        U4, D4, X4 = t, t+4, t+8
        for h in range(2): unpack(a, U4+2*h, U4+2*h+1, UU+h)
        for h in range(2): unpack(a, X4+2*h, X4+2*h+1, X2+h)
        for r in range(4): a(f'v_mul_f32 v{D4+r}, v{U4+r}, v{vD}')
        for h in range(2): a(f'v_cvt_pk_bf16_f32 v{UU+h}, v{D4+2*h}, v{D4+2*h+1}')
        for h in range(2): unpack(a, D4+2*h, D4+2*h+1, UU+h)
        a('s_waitcnt lgkmcnt(1)')
        for r in range(4): a(f'v_fmac_f32 v{Y+r}, v{U4+r}, v{vK0}')
        def rnd(R):
            for h in range(2): a(f'v_cvt_pk_bf16_f32 v{UU+h}, v{R+2*h}, v{R+2*h+1}')
        rnd(Y)
        for add in (D4, X4):
            for h in range(2): unpack(a, Y+2*h, Y+2*h+1, UU+h)
            for r in range(4): a(f'v_add_f32 v{Y+r}, v{Y+r}, v{add+r}')
            rnd(Y)
        a(f'buffer_store_dwordx2 {vr(UU,2)}, v{vSt}, {WS}, s{sST} offen sc1')
        if cfg.get('x_cv'): rest = []
        T(1)
        for i, (cl, T_) in enumerate(rest):
            if i >= 8: a(f's_waitcnt lgkmcnt({min(7, len(rest)-1-i)})')
            a(mf(i, cl, T_))
            if i + 8 < len(rest): a(kb(i, *rest[i+8]))
        T(2)
        for cl in range(8): a(f'v_add_u32 v{UA+cl}, 64, v{UA+cl}')
        a(f'''v_add_u32 v{vKa}, 64, v{vKa}
        v_add_u32 v{vUr}, 64, v{vUr}
        s_add_u32 s{sST}, s{sST}, 0x8000
        s_waitcnt vmcnt(0)
        s_mov_b64 exec, 1
        buffer_store_dword v{vV}, v{vZ}, {WS}, s{sFOP} offen sc1
        s_mov_b64 exec, -1
        ds_write_b32 v14, v{vV} offset:16''')
        T(3)
        if tm: tdump(a, 4, 100)
        a(f's_add_u32 s{sS}, s{sS}, 1\ns_and_b32 s6, s{sS}, 7\ns_cbranch_scc1 {Lp}')
    a('s_waitcnt vmcnt(0)\ns_endpgm')
    vRa, vFa, vSa, vUw, vXw, vO, vLk = 4, 5, 6, 7, 8, 9, 10
    PT, RS_, X_, XP, S1, G = 16, 32, 40, 48, 52, 64
    a('L_c_res:')
    srd(a, 16, P_OUT, 2048*1024)
    a(f'''s_and_b32 s6, s{sW}, 1
    s_mul_i32 s{sRes0}, s6, {XT[1]-XT[0]:#x}
    s_mul_i32 s{sOP0}, s6, {OP[1]-OP[0]:#x}
    s_lshl_b32 s7, s{sR}, 10
    s_add_u32 s{sRes0}, s{sRes0}, s7
    s_add_u32 s{sRes0}, s{sRes0}, {XT[0]:#x}
    s_add_u32 s{sOP0}, s{sOP0}, s7
    s_add_u32 s{sOP0}, s{sOP0}, {OP[0]:#x}
    s_lshl_b32 s6, s{sR}, 3
    s_add_u32 s{sFOP}, s6, {FX3 + 256:#x}
    s_lshl_b32 s{sO}, s{sR}, 5
    v_bfe_u32 v16, v{vL16}, 4, 5
    v_lshrrev_b32 v17, 9, v{vL16}
    v_lshlrev_b32 v18, 1, v16
    v_lshl_or_b32 v{vRa}, v17, 8, v18
    v_add_u32 v{vXw}, {L_X2}, v{vRa}
    v_mul_u32_u24 v19, {4*UROW}, v17
    v_add_u32 v19, v19, v18
    v_add_u32 v{vUw}, {L_U + 32}, v19
    v_bfe_u32 v{vFa}, v{vL16}, 2, 3
    v_bfe_u32 v{vSa}, v{vL16}, 8, 1
    v_lshlrev_b32 v{vSa}, 3, v{vSa}
    v_and_b32 v19, 0xf0, v{vL16}
    v_or_b32 v{vSa}, v19, v{vSa}
    v_lshlrev_b32 v19, 10, v16
    v_lshl_or_b32 v{vO}, v17, 3, v19
    s_mov_b32 s{sNx}, 0
    s_mov_b32 s{sGo}, 0
    s_mov_b32 s{sSel}, 0x3f80
    s_mov_b32 s{sSel+1}, 0x3f800000
    s_mov_b32 s{sSel+2}, 0x3f803f80
    v_bfe_u32 v{vLk}, v{vL16}, 4, 2
    v_lshlrev_b32 v{vLk}, 15, v{vLk}''')
    for v in range(8): a(f'v_mov_b32 v{RS_+v}, 0')
    def gate(both, bump=1):
        La = a.lab('ga'); Lb = a.lab('gb'); L = a.lab('gl')
        if both:
            a(f'''s_cmp_eq_u32 s{sW}, 2
            s_cbranch_scc1 {La}
            s_mov_b32 s47, 0''')
            if cfg.get('c_edge', 0): a(f'''ds_read_b32 v{S1}, v{vF} offset:24
            s_waitcnt lgkmcnt(0)
            v_readfirstlane_b32 s6, v{S1}
            s_min_i32 s{sGo}, s6, 0x7ffffffe''')
            a(f'''{L}:
            ds_read_b32 v{S1}, v{vF} offset:24
            s_waitcnt lgkmcnt(0)
            v_readfirstlane_b32 s6, v{S1}
            s_cmp_gt_i32 s6, s{sGo}
            s_cbranch_scc1 {Lb}''')
            spin_check(a, 47, 47, L)
        if not bump:
            a(f'{Lb}:\ns_min_i32 s{sGo}, s6, 0x7ffffffe\n{La}:')
            return
        a(f'''{La}:
        s_add_u32 s6, s{sGo}, 1
        v_mov_b32 v{S1}, {0 if cfg.get('x_r5') else 's6'}
        ds_write_b32 v{vF}, v{S1} offset:24
        {Lb}:
        s_min_i32 s{sGo}, s6, 0x7ffffffe''')
    def parts():
        for q in range(4): a(f's_add_u32 s6, s{sPa}, {q*32768}\nbuffer_load_dwordx4 {vr(PT+4*q,4)}, v{vL16}, {WS}, s6 offen sc1')
    def fetch(both):
        gate(both)
        for v in range(8): a(f'buffer_load_short_d16_hi v{RS_+v}, v{vRa}, {WS}, s{sRes0} offen offset:{(8*(v//4) + v % 4)*64}')
        a(f's_and_b32 s6, s{sNx}, 3\ns_lshl_b32 s6, s6, 17\ns_add_u32 s{sPa}, s{sOP0}, s6\ns_lshr_b32 s6, s{sNx}, 2\ns_andn2_b32 s{sTP}, 1, s6')
        parts()
        a(f's_add_u32 s{sRes0}, s{sRes0}, 0x8000\ns_add_u32 s{sNx}, s{sNx}, 1')
    a(f's_cmp_eq_u32 s{sW}, 2\ns_cbranch_scc0 L_c_r5\nL_c_rf:')
    fetch(1)
    a('L_c_rloop:\ns_mov_b32 s7, 0\nL_c_rp:\ns_waitcnt vmcnt(0)')
    a(f'''v_bitop3_b32 v{S1}, v{PT}, v{PT+4}, s{sTP} bitop3:0x7e
    v_bitop3_b32 v{S1+1}, v{PT+8}, v{PT+12}, s{sTP} bitop3:0x7e
    v_bitop3_b32 v{S1}, v{S1}, v{S1+1}, 1 bitop3:0xa8
    v_cmp_ne_u32 vcc, 0, v{S1}
    s_cbranch_vccz L_c_rok''')
    gate(1, cfg.get('c_bump', 0))
    if cfg.get('c_look'):
        a(f's_mov_b32 s47, 0\nL_c_lk:\ns_mov_b64 exec, 15\nbuffer_load_dword v{S1}, v{vLk}, {WS}, s{sPa} offen offset:1008 sc1\ns_waitcnt vmcnt(0)')
        a(f'v_bitop3_b32 v{S1}, v{S1}, s{sTP}, 1 bitop3:0x28\nv_cmp_ne_u32 vcc, 0, v{S1}\ns_mov_b64 exec, -1\ns_cbranch_vccz L_c_lko')
        spin_check(a, 47, 43, 'L_c_lk')
        a('L_c_lko:')
    parts()
    spin_check(a, 7, 43, 'L_c_rp')
    a('L_c_rok:')
    T(0)
    dot = lambda d, x, hi, c: a(f'v_dot2_f32_bf16 v{d}, v{x}, s{sSel+hi}, {c}')
    for q in range(4):
        for v in range(8): dot(X_+v, PT+4*q+v//2, v % 2, f'v{X_+v}' if q else 0)
    for h in range(4): a(f'v_cvt_pk_bf16_f32 v{XP+h}, v{X_+2*h}, v{X_+2*h+1}')
    for v in range(8): dot(X_+v, XP+v//2, v % 2, f'v{RS_+v}')
    for h in range(4): a(f'v_cvt_pk_bf16_f32 v{XP+h}, v{X_+2*h}, v{X_+2*h+1}')
    T(1)
    a(f'''s_cmp_eq_u32 s{sW}, 2
    s_cbranch_scc1 L_c_ln
    buffer_store_dwordx2 {vr(XP,2)}, v{vO}, s[16:19], s{sO} offen
    buffer_store_dwordx2 {vr(XP+2,2)}, v{vO}, s[16:19], s{sO} offen offset:16
    s_add_u32 s{sO}, s{sO}, 0x8000
    v_mov_b32 v{S1}, s{sNx}
    s_mov_b64 exec, 3
    buffer_store_dword v{S1}, v{vFa}, {WS}, s{sFOP} offen sc1
    s_mov_b64 exec, -1''')
    if tm: tdump(a, 4, 100)
    a(f'''s_add_u32 s{sS}, s{sS}, 1
    s_cmp_eq_u32 s{sS}, 64
    s_cbranch_scc1 L_c_rend
    L_c_r5:
    s_add_u32 s{sNeed}, s{sS}, 1''')
    lds_wait(a, 16, 2, sNeed, S1, 46)
    a('s_branch L_c_rf\nL_c_ln:')
    cf = cfg.get('c_f', 0)
    def nxt():
        a(f's_cmp_eq_u32 s{sS}, 63\ns_cbranch_scc0 L_c_f\nv_mov_b32 v{S1}, 0x7fffffff\nds_write_b32 v{vF}, v{S1} offset:24\ns_branch L_c_nf\nL_c_f:')
        fetch(0)
        a('L_c_nf:')
    if cf == 0: nxt()
    for h in range(4):
        dot(S1, XP+h, 2, f'v{S1}' if h else 0)
        a(f'v_dot2_f32_bf16 v{S1+1}, v{XP+h}, v{XP+h}, {f"v{S1+1}" if h else 0}')
    def halves(): a(f'''v_mov_b32 v{S1+2}, v{S1}
    v_mov_b32 v{S1+3}, v{S1+1}
    v_permlane32_swap_b32 v{S1}, v{S1+2}
    v_permlane32_swap_b32 v{S1+1}, v{S1+3}
    v_add_f32 v{S1}, v{S1}, v{S1+2}
    v_add_f32 v{S1+1}, v{S1+1}, v{S1+3}''')
    a(f'''s_lshr_b32 s6, s{sS}, 1
    s_andn2_b32 s{sTag}, 1, s6
    s_and_b32 s6, s{sS}, 1
    s_lshl_b32 s6, s6, 13
    s_add_u32 s{sA}, s6, {ST2:#x}
    s_add_u32 s{sB}, s{sA}, 4096
    s_lshl_b32 s6, s{sR}, 8
    s_add_u32 s6, s6, s{sA}''')
    halves()
    a(f'''v_bfi_b32 v{S1+1}, 1, s{sTag}, v{S1+1}
    s_mov_b32 exec_hi, 0
    buffer_store_dwordx2 {vr(S1,2)}, v{vSa}, {WS}, s6 offen
    s_cmp_lg_u32 s{sS}, 63
    s_cbranch_scc1 L_c_nl
    buffer_store_dwordx2 {vr(S1,2)}, v{vSa}, {WS}, s6 offen sc1
    L_c_nl:
    s_mov_b32 exec_hi, -1''')
    g1 = lambda i: f'buffer_load_dwordx4 {vr(G+4*i,4)}, v{vL16}, {WS}, s{sA if i < 4 else sB} offen offset:{(i%4)*1024} sc1'
    T(4)
    if cf == 3: nxt()
    if not cfg.get('c_late', 1):
        for i in range(8): a(g1(i))
    a(f's_sub_u32 s{sNeed}, s{sS}, 7')
    lds_wait(a, 8, 2, sNeed, S1, 44)
    a(f's_and_b32 s6, s{sS}, 7\ns_lshl_b32 s6, s6, 10\nv_add_u32 v{S1}, s6, v{vXw}')
    def wr16(addr, pitch):
        for v in range(8):
            a(f'ds_write_b16{"_d16_hi" if v % 2 else ""} v{addr}, v{XP+v//2} offset:{(8*(v//4) + v % 4)*pitch}')
    wr16(S1, 64)
    if cfg.get('c_late', 1):
        for i in range(8): a(g1(i))
    T(6)
    if tm: a('s_waitcnt vmcnt(0)')
    T(5)
    GT = 56
    a('s_mov_b32 s7, 0\nL_c_g:\ns_waitcnt vmcnt(0)')
    for i in range(8): a(f'v_bitop3_b32 v{GT+i}, v{G+4*i+1}, v{G+4*i+3}, s{sTag} bitop3:0x7e')
    a(f'''v_or3_b32 v{S1}, v{GT}, v{GT+1}, v{GT+2}
    v_or3_b32 v{S1+1}, v{GT+3}, v{GT+4}, v{GT+5}
    v_or3_b32 v{S1}, v{S1}, v{GT+6}, v{GT+7}
    v_bitop3_b32 v{S1}, v{S1}, v{S1+1}, 1 bitop3:0xa8
    v_cmp_ne_u32 vcc, 0, v{S1}
    s_cbranch_vccz L_c_gok0''')
    if cfg.get('c_sel', 1): again(a, [GT+i for i in range(8)], g1, 48)
    else:
        for i in range(8): a(g1(i))
    timeout_fix(a, 7, 45, 'L_c_g')
    R0 = G
    a('L_c_gok0:')
    for i in range(0, 16, 2): a(f'v_pk_add_f32 {vr(R0+i,2)}, {vr(G+i,2)}, {vr(G+16+i,2)}')
    a('L_c_gok:')
    T(2)
    if tm: a('s_mov_b32 s84, s7')
    if cf == 1: nxt()
    for n in (8, 4):
        for i in range(0, n, 2): a(f'v_pk_add_f32 {vr(R0+i,2)}, {vr(R0+i,2)}, {vr(R0+n+i,2)}')
    a(f'''v_permlane16_swap_b32 v{R0}, v{R0+2}
    v_permlane16_swap_b32 v{R0+1}, v{R0+3}
    v_pk_add_f32 {vr(S1,2)}, {vr(R0,2)}, {vr(R0+2,2)}''')
    halves()
    ln_final(a, S1, S1+1, S1+2)
    for v in range(8): dot(X_+v, XP+v//2, v % 2, f'v{S1} neg_lo:[0,0,1]')
    for h in range(4): a(f'v_cvt_pk_bf16_f32 v{XP+h}, v{X_+2*h}, v{X_+2*h+1}')
    for h in range(4): unpack(a, X_+2*h, X_+2*h+1, XP+h)
    for v in range(8): a(f'v_mul_f32 v{X_+v}, v{X_+v}, v{S1+1}')
    for h in range(4): a(f'v_cvt_pk_bf16_f32 v{XP+h}, v{X_+2*h}, v{X_+2*h+1}')
    a(f's_add_u32 s6, s{sS}, 1\nv_mov_b32 v{S1}, s6')
    wr16(vUw, UROW)
    a(f'ds_write_b32 v{vF}, v{S1}\nv_add_u32 v{vUw}, 64, v{vUw}')
    if cf == 2: nxt()
    T(3)
    if tm: tdump(a, 8, 100)
    a(f'''s_add_u32 s{sS}, s{sS}, 1
    s_cmp_lt_u32 s{sS}, 64
    s_cbranch_scc1 L_c_rloop
    L_c_rend:''')
    mark(a, cfg, 8, 16)
    a('s_waitcnt vmcnt(0)\ns_endpgm')
```

```python
from asm import *
from layout import *
NAME = 'interleave_layers__ssm_conv_s4d__memory_aug_recurrent_mem_tr__prompt_kernel'
sW, sX, sR = 3, 4, 5
WS, DBG = 's[8:11]', 's[12:15]'
KA = 64
P_U, P_LA, P_AI, P_CR, P_CI, P_LDT, P_DS, P_BX, P_M0, P_WQ, P_WK, P_WV, P_WO, P_SL, P_OUT, P_DBG, P_WS = [KA + 2*i for i in range(17)]
SPIN = 1 << 17

def srd(a, s, ptr, nbytes):
    a(f's_mov_b32 s{s}, s{ptr}\ns_mov_b32 s{s+1}, s{ptr+1}\ns_mov_b32 s{s+2}, {nbytes:#x}\ns_mov_b32 s{s+3}, 0x20000')

def spin_check(a, cnt, code, retry):
    a(f'''s_add_u32 s{cnt}, s{cnt}, 1
    s_cmp_lt_u32 s{cnt}, {SPIN}
    s_cbranch_scc1 {retry}
    s_mov_b32 s6, {code}
    s_branch L_err''')

def again(a, bad, load, s0):
    for i, r in enumerate(bad): a(f'v_and_b32 v{r}, 1, v{r}')
    for i, r in enumerate(bad): a(f'v_cmp_ne_u32 s[{s0+2*i}:{s0+2*i+1}], 0, v{r}')
    for i, r in enumerate(bad): a(f's_or_b64 exec, s[{s0+2*i}:{s0+2*i+1}], 1\n{load(i)}')
    a('s_mov_b64 exec, -1')

def bf16r(a, dst, src):
    a(f'v_cvt_pk_bf16_f32 v{dst}, v{src}, v{src}\nv_and_b32 v{dst}, 0xffff0000, v{dst}')

def ln_final(a, s1, s2, t):
    a(f'''v_mul_f32 v{s1}, 0x3b000000, v{s1}
    v_mul_f32 v{t}, v{s1}, v{s1}
    v_mul_f32 v{s2}, 0x3b000000, v{s2}
    v_sub_f32 v{s2}, v{s2}, v{t}
    v_max_f32 v{s2}, 0, v{s2}''')
    bf16r(a, s2, s2)
    a(f'v_add_f32 v{s2}, 0x3727c5ac, v{s2}')
    bf16r(a, s2, s2)
    a(f'v_sqrt_f32 v{s2}, v{s2}')
    bf16r(a, s1, s1)
    bf16r(a, s2, s2)
    a(f'v_rcp_f32 v{s2}, v{s2}')

CFG = {}
def signal_done(a, wait='vmcnt(0)', t=2):
    L = a.lab('sd')
    a(f's_waitcnt {wait}\ns_barrier')
    mark(a, CFG, 9, t)
    a(f'''s_cmp_lg_u32 s{sW}, 0
    s_cbranch_scc1 {L}
    s_mov_b64 exec, 1
    s_and_b32 s6, s{sX}, 3
    s_lshl_b32 s6, s6, 6
    v_mov_b32 v{t}, {D_DONE[0]*4}
    v_mov_b32 v{t+1}, 1
    buffer_atomic_add v{t+1}, v{t}, {DBG}, s6 offen sc1''')
    a(f'''s_mov_b64 exec, -1
    {L}:''')

def role_done(a, cfg, n):
    L = a.lab('rdn')
    if cfg.get('integ'): a(f's_lshr_b32 s6, 0x72, s{sX}\ns_bitcmp1_b32 s6, 0\ns_cbranch_scc1 {L}')
    signal_done(a, f'vmcnt({n})', 18)
    a(f'{L}:')

def wait_done(a, t0, t1, code, one=0):
    L = a.lab('wd'); Lo = a.lab('wdo')
    if one: a(f's_cmp_lg_u32 s{sW}, 0\ns_cbranch_scc1 {Lo}')
    a(f'''s_mov_b32 s7, 0
    v_mbcnt_lo_u32_b32 v{t0}, -1, 0
    v_and_b32 v{t0}, 3, v{t0}
    v_lshlrev_b32 v{t0}, 6, v{t0}
    {L}:
    buffer_load_dword v{t1}, v{t0}, {DBG}, 0 offen offset:{D_DONE[0]*4} sc1
    s_waitcnt vmcnt(0)
    v_cmp_ne_u32 vcc, 64, v{t1}
    s_cbranch_vccz {Lo}''')
    spin_check(a, 7, code, L)
    a(f'{Lo}:')
    if one: a('s_barrier')

def poll_ge(a, vaddr, soff, need, t, code, n=1, imm=0):
    L = a.lab('pl'); Lo = a.lab('plo')
    op = {1: 'dword', 2: 'dwordx2', 4: 'dwordx4', 8: 'dwordx4'}[n]
    a(f'''s_mov_b32 s7, 0
    {L}:
    buffer_load_{op} {vr(t, min(n, 4))}, v{vaddr}, {WS}, s{soff} offen offset:{imm} sc1''')
    if n == 8: a(f'buffer_load_{op} {vr(t+4, 4)}, v{vaddr}, {WS}, s{soff} offen offset:{imm+1024} sc1')
    a('s_waitcnt vmcnt(0)')
    if n == 8: a(f'v_min3_u32 v{t}, v{t}, v{t+1}, v{t+2}\nv_min3_u32 v{t+3}, v{t+3}, v{t+4}, v{t+5}\nv_min3_u32 v{t}, v{t}, v{t+6}, v{t+7}\nv_min_u32 v{t}, v{t}, v{t+3}')
    if n == 2: a(f'v_min_u32 v{t}, v{t}, v{t+1}')
    if n == 4: a(f'v_min_u32 v{t}, v{t}, v{t+1}\nv_min3_u32 v{t}, v{t}, v{t+2}, v{t+3}')
    a(f'v_cmp_gt_u32 vcc, s{need}, v{t}\ns_cbranch_vccz {Lo}')
    spin_check(a, 7, code, L)
    a(f'{Lo}:')

def mark(a, cfg, k, t, src=100):
    if not cfg.get('marks'): return
    a(f"""s_memrealtime s[100:101]
    s_waitcnt lgkmcnt(0)
    s_lshl_b32 s6, s{sX}, 5
    s_add_u32 s6, s6, s{sR}
    s_lshl_b32 s6, s6, 2
    s_add_u32 s6, s6, s{sW}
    s_lshl_b32 s6, s6, 2
    s_add_u32 s6, s6, {TIM + 0x1000*(k+1):#x}
    v_mov_b32 v{t}, s{src}
    v_mov_b32 v{t+1}, 0
    s_mov_b64 exec, 1
    buffer_store_dword v{t}, v{t+1}, {WS}, s6 offen
    s_mov_b64 exec, -1""")

def prologue(a, cfg):
    if cfg.get('memtime'): a('s_memrealtime s[98:99]')
    a(f'''s_cmp_ge_u32 s2, 256
    s_cbranch_scc1 L_end
    s_load_dwordx16 s[64:79], s[0:1], 0
    s_load_dwordx16 s[80:95], s[0:1], 64
    s_load_dwordx2 s[96:97], s[0:1], 128
    s_getreg_b32 s{sX}, hwreg(HW_REG_XCC_ID,0,4)
    v_lshrrev_b32 v1, 6, v0
    v_and_b32 v0, 63, v0
    s_and_b32 s{sX}, s{sX}, 7
    v_readfirstlane_b32 s{sW}, v1''')
    if cfg.get('xperm'):
        a(f's_lshl_b32 s{sX}, s{sX}, 2\ns_lshr_b32 s{sX}, {sum(r << 4*x for x, r in enumerate(cfg["xperm"])):#x}, s{sX}\ns_and_b32 s{sX}, s{sX}, 7')
    a('s_waitcnt lgkmcnt(0)')
    srd(a, 12, P_DBG, 256); srd(a, 8, P_WS, 0x10000000); srd(a, 16, P_U, 2048*1024)
    def PT(k):
        if cfg.get('plt'): a(f's_memrealtime s[{48+2*k}:{49+2*k}]')
    PT(0)
    a(f'''s_lshl_b32 s6, s2, 3
    s_lshl_b32 s7, s{sW}, 1
    s_add_u32 s32, s6, s7
    s_lshl_b32 s6, s32, 10
    v_lshlrev_b32 v4, 5, v0
    buffer_load_dwordx4 v[40:43], v4, s[16:19], s6 offen
    buffer_load_dwordx4 v[44:47], v4, s[16:19], s6 offen offset:16''')
    Lt = a.lab('tk')
    a(f'''s_cmp_lg_u32 s{sW}, 0
    s_cbranch_scc1 {Lt}
    s_and_b32 s6, s{sX}, 3
    s_lshl_b32 s6, s6, 6
    s_and_b32 s7, s{sX}, 4
    s_add_u32 s6, s6, s7
    s_mov_b64 exec, 1
    v_mov_b32 v2, s6
    v_mov_b32 v3, 1
    buffer_atomic_add v3, v2, {DBG}, 0 offen sc0 sc1
    s_mov_b64 exec, -1
    {Lt}:''')
    PT(1)
    Lx = a.lab('xw')
    a(f's_cmp_lg_u32 s{sW}, 0\ns_waitcnt vmcnt(1)\ns_cbranch_scc0 {Lx}\ns_waitcnt vmcnt(0)\n{Lx}:')
    PT(2)
    a(f'''v_mov_b32 v5, 0
    v_mov_b32 v6, 0
    v_mov_b32 v7, 0x3f803f80''')
    for r in range(40, 48): a(f'v_dot2c_f32_bf16 v5, v{r}, v7\nv_dot2c_f32_bf16 v6, v{r}, v{r}')
    for m in ('quad_perm:[1,0,3,2]', 'quad_perm:[2,3,0,1]', 'row_half_mirror', 'row_mirror'):
        a(f'v_add_f32_dpp v5, v5, v5 {m} row_mask:0xf bank_mask:0xf\nv_add_f32_dpp v6, v6, v6 {m} row_mask:0xf bank_mask:0xf')
    a('''v_mov_b32 v8, v5
    v_mov_b32 v9, v6
    v_permlane16_swap_b32 v5, v8
    v_permlane16_swap_b32 v6, v9
    v_add_f32 v8, v5, v8
    v_add_f32 v9, v6, v9''')
    ln_final(a, 8, 9, 10)
    X, U = 16, 32
    for k in range(8):
        a(f'v_lshlrev_b32 v{X+2*k}, 16, v{24+16+k}\nv_and_b32 v{X+2*k+1}, 0xffff0000, v{24+16+k}')
    for k in range(16): a(f'v_sub_f32 v{X+k}, v{X+k}, v8')
    for k in range(8): a(f'v_cvt_pk_bf16_f32 v{U+k}, v{X+2*k}, v{X+2*k+1}')
    for k in range(8): a(f'v_lshlrev_b32 v{X+2*k}, 16, v{U+k}\nv_and_b32 v{X+2*k+1}, 0xffff0000, v{U+k}')
    for k in range(16): a(f'v_mul_f32 v{X+k}, v{X+k}, v9')
    for k in range(8): a(f'v_cvt_pk_bf16_f32 v{U+k}, v{X+2*k}, v{X+2*k+1}')
    a(f"""s_mov_b32 s6, 0x05040100
    s_mov_b32 s7, 0x07060302
    v_and_b32 v4, 31, v0
    v_mul_u32_u24 v4, 528, v4
    v_lshrrev_b32 v5, 5, v0
    v_lshl_add_u32 v4, v5, 8, v4
    s_lshl_b32 s34, s{sW}, 2
    s_add_u32 s34, s34, 64
    v_add_u32 v4, s34, v4""")
    for part in range(2):
        b = U + 8*part
        for k in range(4): a(f'v_permlane32_swap_b32 v{b+k}, v{b+k+4}')
        for k in range(4):
            for h in range(2):
                e = 2*k + h
                a(f'v_perm_b32 v{X+8*part+e}, v{b+k+4}, v{b+k}, s{6+h}')
                a(f'ds_write_b32 v4, v{X+8*part+e} offset:{(e//4)*128 + (e % 4)*16 + 64*part}')
    Lr = a.lab('rl'); Lok = a.lab('rok'); Lw = a.lab('row'); Lw2 = a.lab('row2')
    a(f'''s_cmp_lg_u32 s{sW}, 0
    s_cbranch_scc1 {Lr}
    s_waitcnt vmcnt(0)
    v_readfirstlane_b32 s{sR}, v3
    s_cmp_lt_u32 s{sR}, 32
    s_cbranch_scc1 {Lok}''')
    a(f'''s_mov_b64 exec, 1
    v_mov_b32 v2, {D_OVF*4}
    v_mov_b32 v3, 1
    buffer_atomic_add v3, v2, {DBG}, 0 offen sc0 sc1
    s_waitcnt vmcnt(0)
    v_readfirstlane_b32 s33, v3
    s_mov_b64 exec, -1
    s_mov_b32 s7, 0
    v_lshlrev_b32 v2, 2, v0
    {Lw}:
    buffer_load_dword v3, v2, {DBG}, 0 offen sc1
    s_waitcnt vmcnt(0)
    s_mov_b32 s34, 0''')
    for i in range(8): a(f'v_readlane_b32 s{40+i}, v3, {D_TICK[i]}')
    for i in range(8): a(f's_add_u32 s34, s34, s{40+i}')
    a(f's_cmp_eq_u32 s34, 256\ns_cbranch_scc1 {Lw2}')
    spin_check(a, 7, 1, Lw)
    a(f'{Lw2}:')
    for i in range(8):
        Ln = a.lab('ovn')
        a(f'''s_min_u32 s{sR}, s{40+i}, 32
        s_sub_u32 s35, 32, s{sR}
        s_cmp_ge_u32 s33, s35
        s_cbranch_scc1 {Ln}
        s_add_u32 s{sR}, s{sR}, s33
        s_mov_b32 s{sX}, {i}
        s_branch {Lok}
        {Ln}:
        s_sub_u32 s33, s33, s35''')
    a(f'''s_mov_b32 s6, 2
    s_branch L_err
    {Lok}:
    s_lshl_b32 s6, s{sX}, 5
    s_add_u32 s6, s6, s{sR}
    v_mov_b32 v2, 0
    v_mov_b32 v3, s6
    ds_write_b32 v2, v3
    {Lr}:''')
    a(f"""v_lshrrev_b32 v4, 5, v0
    s_lshl_b32 s6, s{sW}, 1
    v_add_u32 v4, s6, v4
    v_mul_u32_u24 v4, 528, v4
    v_and_b32 v5, 31, v0
    v_lshl_add_u32 v4, v5, 4, v4
    v_lshrrev_b32 v5, 3, v0
    v_lshlrev_b32 v5, 15, v5
    v_and_b32 v6, 7, v0
    v_lshl_or_b32 v5, v6, 4, v5
    s_lshl_b32 s6, s{sW}, 18
    s_lshl_b32 s7, s2, 7
    s_add_u32 s6, s6, s7
    s_add_u32 s6, s6, {UX:#x}
    s_waitcnt lgkmcnt(0)""")
    PT(3)
    a('s_barrier')
    PT(4)
    for k in range(4): a(f'ds_read_b128 {vr(X+4*k,4)}, v4 offset:{64 + k*8*528}')
    for k in range(4): a(f's_waitcnt lgkmcnt({3-k})\nbuffer_store_dwordx4 {vr(X+4*k,4)}, v5, {WS}, s6 offen sc1\ns_add_u32 s6, s6, {1 << 20}')
    a(f'''
    v_mov_b32 v2, 0
    ds_read_b32 v3, v2
    s_waitcnt lgkmcnt(0)
    v_readfirstlane_b32 s6, v3
    s_barrier
    s_lshr_b32 s{sX}, s6, 5
    s_and_b32 s{sX}, s{sX}, 7
    s_and_b32 s{sR}, s6, 31''')
    mark(a, cfg, 0, 2); mark(a, cfg, 6, 2, 98)
    if cfg.get('plt'):
        for k in range(5): mark(a, cfg, 10+k, 2, 48+2*k)

def epilogue(a):
    a(f'''L_err:
    s_mov_b64 exec, 1
    s_lshl_b32 s7, s{sX}, 2
    s_add_u32 s7, s7, {D_ERR*4}
    v_mov_b32 v2, s7
    v_mov_b32 v3, s6
    buffer_store_dword v3, v2, {DBG}, 0 offen sc1
    s_waitcnt vmcnt(0)
    L_end:
    s_endpgm''')
```

```python
from common import *
from p import coop_weights, vL16
vRd, vFa, vZ, vFl, vBp, vBa = 1, 2, 3, 4, 5, 6
ACC, BF, PK = 16, 32, 48
sS, sLY, sKQ, sNQ, sOI0, sOP0, sFO0, sFOP, sFO, sNeed, sM0, sPend, sA, sB = range(32, 46)

def o(a, cfg):
    tm = cfg.get('o_time', 0)
    def T(slot):
        if tm: a(f's_mem{"real" if cfg.get("rt") else ""}time s[{70+2*slot}:{71+2*slot}]')
    a('L_o:')
    a(f'''s_lshr_b32 s{sLY}, s{sR}, 4
    s_bfe_u32 s{sKQ}, s{sR}, 0x20002
    s_and_b32 s{sNQ}, s{sR}, 3
    s_mul_i32 s{sOI0}, s{sLY}, {OI[1]-OI[0]:#x}
    s_add_u32 s{sOI0}, s{sOI0}, {OI[0]:#x}
    s_lshl_b32 s6, s{sKQ}, 3
    s_lshl_b32 s7, s{sW}, 1
    s_add_u32 s6, s6, s7
    s_lshl_b32 s7, s6, 13
    s_add_u32 s{sOI0}, s{sOI0}, s7
    s_lshl_b32 s6, s6, 7
    s_lshl_b32 s7, s{sLY}, 13
    s_add_u32 s6, s6, s7
    s_add_u32 s{sFO0}, s6, {FO:#x}
    s_mul_i32 s{sOP0}, s{sLY}, {OP[1]-OP[0]:#x}
    s_add_u32 s{sOP0}, s{sOP0}, {OP[0]:#x}
    s_lshl_b32 s6, s{sKQ}, 15
    s_add_u32 s{sOP0}, s{sOP0}, s6
    s_lshl_b32 s6, s{sNQ}, 13
    s_add_u32 s{sOP0}, s{sOP0}, s6
    s_lshl_b32 s6, s{sW}, 11
    s_add_u32 s{sOP0}, s{sOP0}, s6
    s_lshl_b32 s6, s{sNQ}, 6
    s_lshl_b32 s7, s{sW}, 4
    s_add_u32 s6, s6, s7
    s_lshl_b32 s7, s{sLY}, 8
    s_add_u32 s6, s6, s7
    s_add_u32 s{sFOP}, s6, {FX3:#x}
    s_lshl_b32 s{sM0}, s{sW}, 14''')
    if cfg.get('integ'): a('s_branch L_pro\nL_o2:')
    a(f'v_lshlrev_b32 v{vL16}, 4, v0')
    srd(a, 16, P_WO, 4*MB_)
    def goff(c): a(f's_lshl_b32 s61, s{sKQ}, 20\ns_lshl_b32 s62, s{sNQ}, 8\ns_add_u32 s61, s61, s62\ns_add_u32 s61, s61, {c << 17}')
    coop_weights(a, 8, lambda c, j: ar(32*c + 2*j, 2), lambda c: 16, goff,
                 lambda n: None if cfg.get('integ') else signal_done(a, f'vmcnt({n})', 18), 100, 104, 1024,
                 2, lambda j: 32*(j//4) + 8*((j//2) % 2) + 16*(j % 2))
    a(f'''v_mov_b32 v{vZ}, 0
    v_mov_b32 v{vRd}, v{vL16}
    v_bfe_u32 v{vFa}, v{vL16}, 6, 1
    v_lshlrev_b32 v{vFa}, 7, v{vFa}
    v_bfe_u32 v{vFl}, v{vL16}, 2, 4
    v_or_b32 v{vFa}, v{vFa}, v{vFl}
    v_bfe_u32 v{vBa}, v{vL16}, 2, 4
    v_and_b32 v{vBa}, 12, v{vBa}''')
    mark(a, cfg, 2, ACC)
    wait_done(a, ACC, ACC+1, 30)
    a(f's_mov_b32 s{sS}, 0\ns_mov_b32 s{sNeed}, 1\ns_mov_b32 s{sFO}, s{sFO0}')
    def dmal():
        l = [f's_sub_u32 s6, s{sNeed}, 1\ns_lshl_b32 s6, s6, 18\ns_add_u32 s{sA}, s{sOI0}, s6']
        for q in range(4):
            for k in range(4):
                l.append((f's_add_u32 m0, s{sM0}, {q*4096}\ns_add_u32 s{sB}, s{sA}, {q*4096}\n' if k == 0 else '') +
                         f'buffer_load_dwordx4 v{vL16}, {WS}, s{sB} offen offset:{k*1024} lds')
        return l + [f's_xor_b32 s{sM0}, s{sM0}, 0x10000']
    def dma():
        for x in dmal(): a(x)
    if cfg.get('cnt'): a('s_mov_b32 s99, 0')
    a('L_o_wait:')
    poll_ge(a, vFa, sFO, sNeed, vFl, 31, 1)
    dma()
    a(f'''s_mov_b32 s{sPend}, 0
    s_waitcnt vmcnt(8)
    L_o_loop:
    s_barrier''')
    T(0)
    order = [8*h + k for h in (0, 2, 4, 6, 1, 3, 5, 7) for k in range(8)]
    def rd(i): a(f'ds_read_b128 {vr(BF+4*(i%4),4)}, v{vRd} offset:{order[i]*1024}')
    def half(lo):
        for i in range(lo, lo+3): rd(i)
        if lo == 0:
            a(f'''s_add_u32 s{sNeed}, s{sS}, 2
            s_xor_b32 s{sFO}, s{sFO}, 0x1000
            buffer_load_dword v{vFl}, v{vFa}, {WS}, s{sFO} offen sc1
            buffer_load_dword v{vBp}, v{vBa}, {WS}, s{sFOP} offen sc1''')
        else:
            L = a.lab('on')
            a(f'''s_mov_b32 s{sPend}, 0
            s_cmp_eq_u32 s{sS}, 63
            s_cbranch_scc1 {L}
            v_cmp_gt_u32 vcc, s{sNeed}, v{vFl}
            s_cbranch_vccnz {L}
            s_mov_b32 s{sPend}, 1''')
            mm(lo, dmal())
            a(f's_branch L_o_h2\n{L}:')
        mm(lo, [])
    def mm(lo, extra):
        for i in range(lo, lo+32):
            a(f's_waitcnt lgkmcnt({min(2, lo+31-i)})')
            if i % 4 == 0 or not cfg.get('x_o'): a(f'v_mfma_f32_32x32x16_bf16 {vr(ACC,16)}, {ar(4*order[i],4)}, {vr(BF+4*(i%4),4)}, {"0" if i == 0 else vr(ACC,16)}')
            if i + 3 < lo + 32: rd(i+3)
            if extra and (i % 2 == 0 or i - lo < 4): a(extra.pop(0))
        assert not extra
    half(0)
    T(1)
    a('s_waitcnt vmcnt(0)\ns_barrier')
    T(2)
    half(32)
    a('L_o_h2:')
    T(3)
    a(f'''s_sub_u32 s{sB}, s{sS}, 3
    v_cmp_gt_i32 vcc, s{sB}, v{vBp}
    s_cbranch_vccz L_o_free
    s_mov_b32 s7, 0
    {'s_add_u32 s99, s99, 1' if cfg.get('cnt') else ''}
    L_o_bp:
    buffer_load_dword v{vBp}, v{vBa}, {WS}, s{sFOP} offen sc1
    s_waitcnt vmcnt(0)
    v_cmp_gt_i32 vcc, s{sB}, v{vBp}
    s_cbranch_vccz L_o_free''')
    spin_check(a, 7, 32, 'L_o_bp')
    a(f'''L_o_free:
    s_and_b32 s6, s{sS}, 3
    s_lshl_b32 s6, s6, 17
    s_add_u32 s{sA}, s{sOP0}, s6
    s_lshr_b32 s6, s{sS}, 2
    s_andn2_b32 s{sB}, 1, s6
    s_add_u32 s{sS}, s{sS}, 1
    v_xor_b32 v{vRd}, 0x10000, v{vRd}''')
    for h in range(2):
        for r in range(4): a(f'v_cvt_pk_bf16_f32 v{PK+4*h+r}, v{ACC+8*h+2*r}, v{ACC+8*h+2*r+1}')
        a(f'v_bfi_b32 v{PK+4*h}, 1, s{sB}, v{PK+4*h}')
        a(f'buffer_store_dwordx4 {vr(PK+4*h,4)}, v{vL16}, {WS}, s{sA} offen offset:{h*1024} sc1')
    if tm:
        a(f'''s_waitcnt lgkmcnt(0)
        s_lshl_b32 s6, s{sX}, 5
        s_add_u32 s6, s6, s{sR}
        s_lshl_b32 s6, s6, 2
        s_add_u32 s6, s6, s{sW}
        s_lshl_b32 s6, s6, 6
        s_add_u32 s6, s6, s{sS}
        s_sub_u32 s6, s6, 1
        s_lshl_b32 s6, s6, 6
        s_add_u32 s6, s6, {160*MB_}''')
        for k in range(4): a(f'v_mov_b32 v{60+k}, s{70+2*k}')
        a(f's_mov_b64 exec, 1\nbuffer_store_dwordx4 v[60:63], v{vZ}, {WS}, s6 offen\ns_mov_b64 exec, -1')
    a(f'''s_cmp_eq_u32 s{sPend}, 0
    s_waitcnt vmcnt({3 if tm else 2})
    s_cbranch_scc0 L_o_loop
    s_cmp_lt_u32 s{sS}, 64
    s_cbranch_scc1 L_o_wait''')
    if cfg.get('cnt'): mark(a, cfg, 10, 16, 99)
    a('''s_waitcnt vmcnt(0)
    s_endpgm''')
```

```python
from common import *
L_X, L_PK, PKX, L_T, L_RS, L_SP = 0, 0x8000, 0x18000, 0xE000, 0xF200, 0xF400
GQ = 1088
vL16, vXr, vKx, vQx, vVx, vTw, vTr, vMv, vRs, vRw, vONE, vPM, vCS, vMN, vMK = 0, 1, 2, 3, 4, 5, 6, 7, 8, 9, 10, 12, 16, 20, 24
AQ, AK, AV, XF, ST, RR, vPw, vOs, vL4, vFX = 32, 48, 64, 80, 92, 96, 112, 113, 114, 115
KMD, vSr, vSp = 116, 14, 15
WV = 128
sI, sSeg, sC, sLY, sH, sRep = 32, 33, 34, 35, 36, 37
sXT0, sKV0, sKM0, sOI0, sFKV, sFO, sFX, sXT, sKV, sKM, sOI, sNeed, sTag, sVal, sPre, sM0 = range(38, 54)

def wreg(m, r, n): return ar(128*m + r, n) if m < 2 else vr(WV + r, n)

def coop_weights(a, nch, dst, srdof, goff, done_cb, vG, vR, rowb, hish=3, rowof=lambda j: 16*(j//2) + 4*(j % 2), post=lambda c: None):
    a(f'''v_lshrrev_b32 v{vR}, 4, v{vL16}
    v_lshrrev_b32 v{vG}, 8, v{vL16}
    v_lshlrev_b32 v{vR+1}, 2, v{vG}
    v_and_b32 v{vR}, 15, v{vR}
    v_xor_b32 v{vR}, v{vR}, v{vR+1}
    v_mul_u32_u24 v{vG}, {rowb}, v{vG}
    v_lshl_add_u32 v{vG}, v{vR}, 4, v{vG}''')
    a(f'''v_bfe_u32 v{vR}, v{vL16}, 6, 2
    v_lshlrev_b32 v{vR+1}, 2, v{vR}
    v_bfe_u32 v{vR+2}, v{vL16}, 8, 1
    v_lshlrev_b32 v{vR+2}, 1, v{vR+2}
    v_bfe_u32 v{vR+3}, v{vL16}, 5, 1
    v_or_b32 v{vR+2}, v{vR+2}, v{vR+3}
    s_lshl_b32 s6, s{sW}, 2
    v_or_b32 v{vR+2}, s6, v{vR+2}
    v_xor_b32 v{vR+2}, v{vR+2}, v{vR+1}
    v_lshlrev_b32 v{vR+2}, 4, v{vR+2}
    v_bfe_u32 v{vR+3}, v{vL16}, 4, 1
    v_lshl_or_b32 v{vR+2}, v{vR+3}, 3, v{vR+2}
    v_bfe_u32 v{vR+3}, v{vL16}, 9, 1
    v_lshl_or_b32 v{vR}, v{vR+3}, {hish}, v{vR}
    v_lshl_or_b32 v{vR}, v{vR}, 8, v{vR+2}
    v_add_u32 v{vR+1}, 0x10000, v{vR}
    s_lshl_b32 s60, s{sW}, 13
    s_mul_i32 s63, s{sW}, {32*rowb}''')
    def issue(c):
        goff(c)
        a('s_add_u32 s61, s61, s63')
        for i in range(8):
            a(f'''s_add_u32 m0, s60, {(c % 4)*32768 + i*1024}
            s_add_u32 s62, s61, {i*4*rowb}
            buffer_load_dwordx4 v{vG}, s[{srdof(c)}:{srdof(c)+3}], s62 offen lds''')
    done_cb(0)
    for c in range(3): issue(c)
    for c in range(nch):
        a(f's_waitcnt vmcnt({8*min(2, nch-1-c)})\ns_barrier')
        if c + 3 < nch: issue(c + 3)
        b = c % 4
        for j in range(16):
            a(f'ds_read_b64_tr_b16 {dst(c, j)}, v{vR + b//2} offset:{(b % 2)*32768 + rowof(j)*256}')
        a('s_waitcnt lgkmcnt(0)')
        post(c)
    a('s_barrier')

def p(a, cfg):
    ring = cfg.get('ring', 3); tm = cfg.get('p_time', 0)
    def T(slot):
        if tm: a(f's_mem{"real" if cfg.get("rt") else ""}time s[{70+2*slot}:{71+2*slot}]')
    a('L_p:')
    def sel(dst, pair): a(f's_mul_i32 s{dst}, s{sLY}, {pair[1]-pair[0]:#x}\ns_add_u32 s{dst}, s{dst}, {pair[0]:#x}')
    a(f'''s_sub_u32 s{sLY}, s{sX}, 2
    s_lshr_b32 s{sLY}, s{sLY}, 1
    s_and_b32 s6, s{sX}, 1
    s_lshl_b32 s6, s6, 4
    s_and_b32 s{sH}, s{sR}, 15
    s_add_u32 s{sH}, s{sH}, s6
    s_lshr_b32 s{sRep}, s{sR}, 4''')
    sel(sXT0, XT); sel(sKV0, KVX); sel(sKM0, KVM); sel(sOI0, OI); sel(sFX, (FX1, FX3))
    a(f'''s_lshl_b32 s6, s{sW}, 13
    s_add_u32 s{sXT0}, s{sXT0}, s6
    s_add_u32 s{sM0}, s6, {L_X}
    s_lshl_b32 s6, s{sH}, 14
    s_lshl_b32 s7, s{sW}, 11
    s_add_u32 s{sKV0}, s{sKV0}, s6
    s_add_u32 s{sKV0}, s{sKV0}, s7
    s_lshl_b32 s6, s{sH}, 12
    s_lshl_b32 s7, s{sW}, 10
    s_add_u32 s{sKM0}, s{sKM0}, s6
    s_add_u32 s{sKM0}, s{sKM0}, s7
    s_lshl_b32 s6, s{sH}, 13
    s_lshr_b32 s7, s{sW}, 1
    s_lshl_b32 s7, s7, 12
    s_add_u32 s{sOI0}, s{sOI0}, s6
    s_add_u32 s{sOI0}, s{sOI0}, s7
    s_lshl_b32 s6, s{sLY}, 13
    s_lshl_b32 s7, s{sRep}, 12
    s_add_u32 s6, s6, s7
    s_lshl_b32 s7, s{sH}, 7
    s_add_u32 s6, s6, s7
    s_lshl_b32 s7, s{sW}, 2
    s_add_u32 s6, s6, s7
    s_add_u32 s{sFO}, s6, {FO:#x}
    s_mov_b32 s{sC}, 0x3e0293ee
    v_mov_b32 v{vPM}, 0
    v_mov_b32 v{vPM+1}, 0
    v_mov_b32 v{vPM+2}, 0
    v_mov_b32 v{vPM+3}, 0
    v_lshlrev_b32 v16, 4, v0
    s_lshl_b32 s6, s{sRep}, 19
    s_add_u32 s6, s6, s{sKV0}
    s_mov_b64 exec, 1
    buffer_store_dword v{vPM}, v{vPM}, {WS}, s{sFO} offen sc1
    s_mov_b64 exec, -1''')
    for k in range(4):
        for h in range(2): a(f'buffer_store_dwordx4 {vr(vPM,4)}, v16, {WS}, s6 offen offset:{h*1024} sc1')
        if k < 3: a(f's_add_u32 s6, s6, {0x2000 if k != 1 else (2 << 19) - 0x2000}')
    if cfg.get('integ'):
        a(f's_cmp_ge_u32 s{sX}, 4\ns_cbranch_scc1 L_pro\nL_p2:\nv_mov_b32 v{vPM}, 0\nv_mov_b32 v{vPM+1}, 0')
    a(f'v_lshlrev_b32 v{vL16}, 4, v0')
    srd(a, 16, P_WQ, 4*MB_); srd(a, 20, P_WK, 4*MB_); srd(a, 24, P_WV, 4*MB_)
    def goff(c): a(f's_lshl_b32 s61, s{sH}, 8\ns_add_u32 s61, s61, {(c % 4) << 20}')
    for r in range(4): a(f'v_mov_b32 v{XF+r}, 0x3f803f80')
    def colsum(c):
        m = c // 4; acc = AQ + 16*m
        for ks in range(8*(c % 4), 8*(c % 4) + 8):
            a(f'v_mfma_f32_32x32x16_bf16 {vr(acc,16)}, {vr(XF,4)}, {wreg(m,4*ks,4)}, {"0" if ks == 0 else vr(acc,16)}')
    coop_weights(a, 12, lambda c, j: wreg(c//4, (c % 4)*32 + 2*j, 2), lambda c: 16 + 4*(c//4), goff,
                 lambda n: role_done(a, cfg, n), 100, 104, 8192, post=colsum)
    mark(a, cfg, 2, 16)
    a(f'''v_bfe_u32 v16, v{vL16}, 4, 4
    v_lshrrev_b32 v17, 8, v{vL16}
    v_lshrrev_b32 v{vL4}, 2, v{vL16}
    v_bfe_u32 v18, v{vL16}, 6, 2
    v_lshrrev_b32 v19, 9, v{vL16}
    v_lshl_or_b32 v18, v19, 3, v18
    v_lshlrev_b32 v18, 6, v18
    v_and_b32 v20, 1, v17
    v_lshl_or_b32 v18, v20, 5, v18
    v_and_b32 v20, 3, v16
    v_lshl_or_b32 v{vXr}, v20, 3, v18
    v_and_b32 v18, 7, v16
    v_lshrrev_b32 v20, 3, v16
    v_lshl_or_b32 v18, v20, 4, v18
    v_lshlrev_b32 v18, 4, v18
    v_lshl_add_u32 v18, v17, 9, v18
    v_add_u32 v{vKx}, {(L_PK ^ PKX) + 8192}, v18
    s_and_b32 s6, s{sW}, 1
    s_lshl_b32 s6, s6, 8
    v_lshlrev_b32 v18, 4, v16
    v_lshl_or_b32 v18, v17, 9, v18
    v_add_u32 v{vOs}, s6, v18
    v_add_u32 v{vQx}, {L_PK ^ PKX}, v{vOs}
    s_lshr_b32 s7, s{sW}, 1
    s_lshl_b32 s6, s7, 12
    s_add_u32 s6, s6, {(L_PK ^ PKX) + 16384}
    v_add_u32 v{vVx}, s6, v18
    s_lshl_b32 s6, s{sW}, 11
    s_add_u32 s6, s6, {L_PK}
    v_add_u32 v{vPw}, s6, v{vL16}
    v_mul_u32_u24 v18, {GQ}, v17
    v_lshl_add_u32 v18, v16, 3, v18
    s_lshl_b32 s6, s{sW}, 8
    s_add_u32 s6, s6, {L_T}
    v_add_u32 v{vTw}, s6, v18
    s_lshl_b32 s6, s7, 9
    s_add_u32 s6, s6, {L_T}
    v_add_u32 v{vMv}, s6, v18
    v_and_b32 v18, 3, v16
    v_mul_u32_u24 v18, {GQ}, v18
    v_bfe_u32 v20, v{vL16}, 6, 3
    v_lshl_add_u32 v18, v20, 3, v18
    v_lshl_add_u32 v18, v19, 7, v18
    v_add_u32 v{vTr}, {L_T}, v18
    s_lshl_b32 s6, s{sW}, 7
    s_add_u32 s6, s6, {L_RS}
    v_lshlrev_b32 v18, 4, v19
    v_add_u32 v{vRs}, s6, v18
    v_and_b32 v18, 0x7c, v{vL4}
    v_add_u32 v{vRw}, s6, v18
    v_lshlrev_b32 v18, 1, v18
    v_add_u32 v{vSp}, {L_SP}, v18
    s_lshl_b32 s6, s{sW}, 13
    v_add_u32 v{vSr}, s6, v{vXr}
    v_mov_b32 v{vONE}, 0x3f803f80
    v_mov_b32 v{vONE+1}, 0x3f803f80''')
    a(f'''s_and_b32 s6, s{sW}, 1
    s_lshl_b32 s6, s6, 4
    v_add_u32 v16, s6, v16
    v_lshlrev_b32 v18, 4, v19
    v_and_b32 v20, 1, v17
    v_lshl_or_b32 v18, v20, 2, v18
    v_sub_u32 v16, v16, v18
    v_mov_b32 v17, 0xf149f2ca''')
    for T_ in range(2):
        for r in range(4): a(f'v_cmp_gt_i32 vcc, {8*T_+r}, v16\nv_cndmask_b32 v{vMK+4*T_+r}, 0, v17, vcc')
    a(f'v_cmp_gt_u32 vcc, 512, v{vL16}')
    for m in range(3):
        acc = AQ + 16*m
        a(f'''v_cvt_pk_bf16_f32 v{acc+1}, v{acc}, v{acc}
        v_and_b32 v{acc+1}, 0xffff0000, v{acc+1}
        v_sub_f32 v{acc}, v{acc}, v{acc+1}
        v_cvt_pk_bf16_f32 v{acc}, v{acc}, v{acc+1}
        v_cndmask_b32 v{vCS+m}, 0, v{acc}, vcc''')
    a(f'v_mov_b32 v{vCS+3}, 0\nv_mov_b32 v{vMN+1}, 0\nv_mov_b32 v{vMN+2}, 0')
    wait_done(a, ST, ST+1, 20)
    mark(a, cfg, 3, ST)
    a(f's_mov_b32 s{sI}, 0\ns_mov_b32 s{sPre}, 0\ns_mov_b32 s{sSeg}, s{sRep}\ns_add_u32 s{sNeed}, s{sSeg}, 1')
    Ls = a.lab('p1')
    a(f's_cmp_lg_u32 s{sLY}, 0\ns_cbranch_scc1 {Ls}')
    poll_ge(a, vL16, sFX, sNeed, AQ, 21, 8)
    a(f'{Ls}:')
    mark(a, cfg, 4, ST)
    def xdma():
        a(f's_sub_u32 s6, s{sNeed}, 1\ns_lshl_b32 s6, s6, 15\ns_add_u32 s{sXT}, s{sXT0}, s6\ns_mov_b32 m0, s{sM0}\ns_add_u32 s6, s{sXT}, 4096')
        for k in range(4): a(f'buffer_load_dwordx4 v{vL16}, {WS}, s{sXT} offen offset:{k*1024} lds')
        a(f's_add_u32 m0, s{sM0}, 4096')
        for k in range(4): a(f'buffer_load_dwordx4 v{vL16}, {WS}, s6 offen offset:{k*1024} lds')
    if cfg.get('cnt'): a('s_mov_b32 s99, 0')
    a('L_p_xwait:')
    if cfg.get('cnt'): a('s_add_u32 s99, s99, 1')
    poll_ge(a, vL4, sFX, sNeed, ST, 22, 1)
    xdma()
    a('s_waitcnt vmcnt(0)\nL_p_loop:')
    a(f"""s_barrier
    s_and_b32 s6, s{sSeg}, {ring}
    s_lshl_b32 s6, s6, 19
    s_add_u32 s{sKV}, s{sKV0}, s6
    s_lshr_b32 s6, s{sSeg}, 2
    s_andn2_b32 s{sFKV}, 1, s6
    s_add_u32 s{sNeed}, s{sSeg}, 3
    s_lshl_b32 s7, s{sW}, 8""")
    T(0)
    qd = []
    def ds(x, tag): a(x); qd.append(tag)
    def need(tag):
        last = max([k for k, x in enumerate(qd) if x == tag], default=-1)
        if last >= 0:
            a(f's_waitcnt lgkmcnt({len(qd)-1-last})'); del qd[:last+1]
    def xr(ks):
        for h in range(2): ds(f'ds_read_b64_tr_b16 {vr(XF+4*(ks%3)+2*h,2)}, v{vXr} offset:{L_X + ks*1024 + h*256}', f'x{ks}')
    SF, U = RR, RR+8
    def sr_(k):
        for h in range(2): ds(f'ds_read_b64_tr_b16 {vr(SF+4*(k%2)+2*h,2)}, v{vSr} offset:{L_X + k*1024 + h*256}', f's{k}')
    xr(0); xr(1); sr_(0)
    a(f'v_mov_b32 v{ST}, 0\nv_mov_b32 v{ST+1}, 0\nv_add_u32 v{U+4}, s7, v{vSp}')
    fill = {ks: [] for ks in range(32)}
    for k in range(8):
        ops = []
        for r in range(4):
            f = SF + 4*(k % 2) + r; u = U + 2*(r % 2)
            ops += [f'v_lshlrev_b32 v{u}, 16, v{f}', f'v_and_b32 v{u+1}, 0xffff0000, v{f}', f'v_add_f32 v{ST}, v{ST}, v{u}', f'v_fmac_f32 v{ST+1}, v{u}, v{u}',
                    f'v_add_f32 v{ST}, v{ST}, v{u+1}', f'v_fmac_f32 v{ST+1}, v{u+1}, v{u+1}']
        fill[3*k].append(('need', f's{k}'))
        if k < 7: fill[3*k].append(('sr', k+1))
        for j in range(3): fill[3*k+j] += ops[8*j:8*j+8]
    fill[24] = [f'v_mov_b32 v{ST+2}, v{ST}', f'v_mov_b32 v{ST+3}, v{ST+1}', f'v_permlane32_swap_b32 v{ST}, v{ST+2}', f'v_permlane32_swap_b32 v{ST+1}, v{ST+3}',
                f'v_add_f32 v{ST}, v{ST}, v{ST+2}', f'v_add_f32 v{ST+1}, v{ST+1}, v{ST+3}', ('ds', f'ds_write_b64 v{U+4}, {vr(ST,2)}', 'w')]
    fill[25] = [('nop',), ('need', 'w'), 's_barrier'] + [('ds', f'ds_read_b64 {vr(SF+2*k,2)}, v{vSp} offset:{256*k}', 'r') for k in range(4)]
    b = Asm()
    b(f"""v_add_f32 v{ST}, v{SF}, v{SF+2}
    v_add_f32 v{ST+1}, v{SF+1}, v{SF+3}
    v_add_f32 v{ST+2}, v{SF+4}, v{SF+6}
    v_add_f32 v{ST+3}, v{SF+5}, v{SF+7}
    v_add_f32 v{ST}, v{ST}, v{ST+2}
    v_add_f32 v{ST+1}, v{ST+1}, v{ST+3}""")
    ln_final(b, ST, ST+1, ST+2)
    b(f"""v_xor_b32 v{ST}, 0x80000000, v{ST}
    v_lshrrev_b32 v{ST+2}, 16, v{ST}
    v_or_b32 v{vMN}, v{ST}, v{ST+2}
    v_or_b32 v{vMN+3}, v{ST}, v{ST+2}
    v_mov_b32 v{ST}, v{ST+1}""")
    ops = [('need', 'r')] + b.lines + [('ds', f'ds_write_b32 v{vRw}, v{ST+1}', 'w2')]
    for j in range(4): fill[27+j] = ops[8*j:8*j+8]
    assert len(ops) <= 32
    fill[31] = [('ds', f'ds_read_b128 {vr(RR+4*q,4)}, v{vRs} offset:{32*q}', 'rr') for q in range(4)]
    def F(lst):
        for x in lst:
            if isinstance(x, str): a(x)
            elif x[0] == 'need': need(x[1])
            elif x[0] == 'sr': sr_(x[1])
            elif x[0] == 'ds': ds(x[1], x[2])
    TM = 126
    oflag = f's_mov_b64 exec, 1\nbuffer_store_dword v{TM}, v{vPM+1}, {WS}, s{sFO} offen sc1\ns_mov_b64 exec, -1'
    for ks in range(32):
        f = XF + 4*(ks % 3); c = lambda r: '0' if ks == 0 else vr(r, 16)
        d = fill[ks]
        if ks == cfg.get('p_def', 5):
            a(f's_cmp_eq_u32 s{sPre}, 2\ns_cbranch_scc0 L_p_nof\ns_waitcnt vmcnt(0)\n{oflag}\nL_p_nof:')
        need(f'x{ks}')
        a(f'v_mfma_f32_32x32x16_bf16 {vr(AK,16)}, {wreg(1,4*ks,4)}, {vr(f,4)}, {c(AK)}')
        if ks + 2 < 32: xr(ks+2)
        n1 = 1 if len(d) < 10 else 3
        F(d[:n1])
        if ks == 0 or not cfg.get('x_p'): a(f'v_mfma_f32_32x32x16_bf16 {vr(AV,16)}, {vr(f,4)}, {wreg(2,4*ks,4)}, {c(AV)}')
        F(d[n1:n1+4])
        if ks == 0 or not cfg.get('x_p'): a(f'v_mfma_f32_32x32x16_bf16 {vr(AQ,16)}, {wreg(0,4*ks,4)}, {vr(f,4)}, {c(AQ)}')
        F(d[n1+4:])
    T(1)
    kmaddr = f'''s_sub_u32 s{sVal}, s{sSeg}, 2
    s_and_b32 s6, s{sVal}, {ring}
    s_lshl_b32 s6, s6, 17
    s_add_u32 s{sKM}, s{sKM0}, s6
    s_lshr_b32 s6, s{sVal}, 2
    s_andn2_b32 s{sTag}, 1, s6
    s_lshl_b32 s6, s{sVal}, 18
    s_add_u32 s{sOI}, s{sOI0}, s6
    s_add_u32 s{sVal}, s{sVal}, 1
    buffer_load_dwordx4 {vr(KMD,4)}, v{vL16}, {WS}, s{sKM} offen sc1'''
    a(kmaddr)
    a(f'buffer_load_dword v{vFX}, v{vL4}, {WS}, s{sFX} offen sc1')
    a(f"""v_mfma_f32_32x32x8_bf16 {vr(AK,16)}, {vr(vCS,2)}, {vr(vMN+2,2)}, {vr(AK,16)}
    v_mfma_f32_32x32x8_bf16 {vr(AV,16)}, {vr(vMN,2)}, {vr(vCS+2,2)}, {vr(AV,16)}
    v_mfma_f32_32x32x8_bf16 {vr(AQ,16)}, {vr(vCS,2)}, {vr(vMN,2)}, {vr(AQ,16)}""")
    def fin(acc, sc, goff_, loff):
        for r in range(0, 16, 2):
            a(f'v_pk_mul_f32 {vr(acc+r,2)}, {vr(acc+r,2)}, {sc(r)}')
        for r in range(8): a(f'v_cvt_pk_bf16_f32 v{acc+r}, v{acc+2*r}, v{acc+2*r+1}')
        for h in range(2):
            if goff_ is not None: a(f'v_bfi_b32 v{acc+4*h}, 1, s{sFKV}, v{acc+4*h}')
        for h in range(2):
            if goff_ is not None: a(f'buffer_store_dwordx4 {vr(acc+4*h,4)}, v{vL16}, {WS}, s{goff_} offen offset:{h*1024} sc1')
            a(f'ds_write_b128 v{vPw}, {vr(acc+4*h,4)} offset:{loff + h*1024}')
    a(f's_add_u32 s7, s{sKV}, 0x2000')
    fin(AK, lambda r: vr(ST,2), sKV, 8192)
    a('s_waitcnt lgkmcnt(2)')
    fin(AV, lambda r: vr(RR+r,2), 7, 16384)
    fin(AQ, lambda r: vr(ST,2), None, 0)
    T(2)
    a(f's_cmp_eq_u32 s{sI}, 0\ns_cbranch_scc1 L_p_first')
    a('L_p_att:')
    KF, QF, VF, S_ = 32, 64, 80, 96
    MT, MV, O_, PX, m_, t_, TM = 32, 48, 56, 120, 124, 125, 126
    for ks in range(4):
        a(f'ds_read_b128 {vr(QF+4*ks,4)}, v{vQx} offset:{ks*2048}')
        for T_ in range(2): a(f'ds_read_b128 {vr(KF+16*T_+4*ks,4)}, v{vKx} offset:{ks*2048+T_*128}')
    for ks in range(4):
        a(f's_waitcnt lgkmcnt({9-3*ks})')
        for T_ in range(2):
            a(f'v_mfma_f32_16x16x32_bf16 {vr(S_+4*T_,4)}, {vr(KF+16*T_+4*ks,4)}, {vr(QF+4*ks,4)}, {vr(vMK+4*T_,4) if ks == 0 else vr(S_+4*T_,4)}')
    for u in range(2):
        for t in range(2): a(f'ds_read_b128 {vr(VF+8*u+4*t,4)}, v{vVx} offset:{u*2048+t*256}')
    a(f'''s_mov_b32 s7, 0
    s_waitcnt vmcnt(4)
    L_p_km:
    v_bitop3_b32 v{TM}, v{KMD}, s{sTag}, 1 bitop3:0x28
    v_cmp_ne_u32 vcc, 0, v{TM}
    s_cbranch_vccz L_p_kmok
    buffer_load_dwordx4 {vr(KMD,4)}, v{vL16}, {WS}, s{sKM} offen sc1''')
    a(f'buffer_load_dword v{vFX}, v{vL4}, {WS}, s{sFX} offen sc1\ns_waitcnt vmcnt(0)')
    spin_check(a, 7, 23, 'L_p_km')
    a(f'''L_p_kmok:
    ds_write_b64 v{vTw}, {vr(KMD,2)}
    ds_write_b64 v{vTw}, {vr(KMD+2,2)} offset:128
    v_max3_f32 v{m_}, v{S_}, v{S_+1}, v{S_+2}
    v_max3_f32 v{t_}, v{S_+4}, v{S_+5}, v{S_+6}
    v_max3_f32 v{m_}, v{m_}, v{S_+3}, v{S_+7}
    s_waitcnt lgkmcnt(0)
    s_barrier''')
    T(3)
    for ks in range(4):
        for sub in range(2): a(f'ds_read_b64_tr_b16 {vr(MT+4*ks+2*sub,2)}, v{vTr} offset:{ks*256+sub*64}')
    for k in range(4): a(f'ds_read_b64 {vr(MV+2*k,2)}, v{vMv} offset:{k*128}')
    def tryx(again=0):
        L = a.lab('nx'); L2 = a.lab('nx')
        a(f'''s_mov_b32 s{sPre}, 0
        s_cmp_ge_u32 s{sI}, 31
        s_cbranch_scc1 {L}
        v_cmp_gt_u32 vcc, s{sNeed}, v{vFX}
        s_cbranch_vccnz {L2 if again else L}
        s_mov_b32 s{sPre}, 1''')
        xdma()
        if again: a(f's_branch {L}\n{L2}:\nbuffer_load_dword v{vFX}, v{vL4}, {WS}, s{sFX} offen sc1')
        a(f'{L}:')
    p2 = 1
    tryx(p2)
    for ks in range(4):
        a(f's_waitcnt lgkmcnt({10-2*ks})')
        a(f'v_mfma_f32_16x16x32_bf16 {vr(S_+8,4)}, {vr(MT+4*ks,4)}, {vr(QF+4*ks,4)}, {"0" if ks == 0 else vr(S_+8,4)}')
    sv = [S_+i for i in range(8)] + [S_+10, S_+11]
    a(f'''v_max_f32 v{m_}, v{m_}, v{t_}
    v_max3_f32 v{m_}, v{m_}, v{sv[8]}, v{sv[9]}
    v_mov_b32 v{t_}, v{m_}
    v_permlane32_swap_b32 v{m_}, v{t_}
    v_max_f32 v{m_}, v{m_}, v{t_}
    v_max_f32 v{t_}, v{m_}, v{t_}
    v_permlane16_swap_b32 v{m_}, v{t_}
    v_max_f32 v{m_}, v{m_}, v{t_}
    v_mul_f32 v{m_}, s{sC}, v{m_}''')
    for r in [sv[8], sv[9]] + sv[:8]: a(f'v_fma_f32 v{r}, v{r}, s{sC}, -v{m_}')
    for r in (sv[8], sv[9]): a(f'v_exp_f32 v{r}, v{r}')
    SUM = S_ + 12
    a(f'v_exp_f32 v{sv[0]}, v{sv[0]}\nv_cvt_pk_bf16_f32 v{vPM}, v{sv[8]}, v{sv[9]}\nv_exp_f32 v{sv[1]}, v{sv[1]}\ns_waitcnt lgkmcnt(0)')
    a(f'v_mfma_f32_16x16x16_bf16 {vr(SUM,4)}, {vr(vONE,2)}, {vr(vPM,2)}, 0')
    for k in range(4):
        a(f'v_mfma_f32_16x16x16_bf16 {vr(O_+4*k,4)}, {vr(MV+2*k,2)}, {vr(vPM,2)}, 0')
        if k < 3: a(f'v_exp_f32 v{sv[2+2*k]}, v{sv[2+2*k]}\nv_exp_f32 v{sv[3+2*k]}, v{sv[3+2*k]}')
    for k in range(4): a(f'v_cvt_pk_bf16_f32 v{PX+k}, v{sv[2*k]}, v{sv[2*k+1]}')
    for h in range(2): a(f'v_mfma_f32_16x16x16_bf16 {vr(SUM,4)}, {vr(vONE,2)}, {vr(PX+2*h,2)}, {vr(SUM,4)}')
    for k in range(4): a(f'v_mfma_f32_16x16x32_bf16 {vr(O_+4*k,4)}, {vr(VF+4*k,4)}, {vr(PX,4)}, {vr(O_+4*k,4)}')
    a(f'v_rcp_f32 v{SUM}, v{SUM}\nv_mov_b32 v{TM}, s{sVal}')
    for u in range(2):
        for r in range(0, 8, 2): a(f'v_pk_mul_f32 {vr(O_+8*u+r,2)}, {vr(O_+8*u+r,2)}, {vr(SUM,2)} op_sel_hi:[1,0]')
        for r in range(4): a(f'v_cvt_pk_bf16_f32 v{O_+8*u+r}, v{O_+8*u+2*r}, v{O_+8*u+2*r+1}')
        a(f'buffer_store_dwordx4 {vr(O_+8*u,4)}, v{vOs}, {WS}, s{sOI} offen offset:{u*2048} sc1')
    if p2:
        a(f'''s_cmp_ge_u32 s{sI}, 31
        s_cbranch_scc1 L_p_of
        s_cmp_lg_u32 s{sPre}, 0
        s_cbranch_scc1 {'L_p_of3' if cfg.get('p_def', 1) else 'L_p_of'}
        s_waitcnt vmcnt(2)
        v_cmp_gt_u32 vcc, s{sNeed}, v{vFX}
        s_cbranch_vccnz L_p_of
        s_mov_b32 s{sPre}, 1''')
        xdma()
        a(f's_waitcnt vmcnt(8)\n{oflag}\ns_waitcnt vmcnt(1)\ns_branch L_p_of2')
        a(f'L_p_of3:\ns_mov_b32 s{sPre}, 2\ns_waitcnt vmcnt(2)\ns_branch L_p_of2')
    a(f'L_p_of:\ns_waitcnt vmcnt(0)\n{oflag}\nL_p_of2:')
    T(4)
    a('L_p_next:')
    for r in (vKx, vQx, vVx, vPw): a(f'v_xor_b32 v{r}, {PKX:#x}, v{r}')
    if tm:
        a(f'''s_waitcnt lgkmcnt(0)
        s_lshl_b32 s6, s{sX}, 5
        s_add_u32 s6, s6, s{sR}
        s_lshl_b32 s6, s6, 2
        s_add_u32 s6, s6, s{sW}
        s_lshl_b32 s6, s6, 6
        s_add_u32 s6, s6, s{sI}
        s_lshl_b32 s6, s6, 6
        s_add_u32 s6, s6, {160*MB_}''')
        for k in range(8): a(f'v_mov_b32 v{AQ+k}, s{70+2*k}')
        a(f'''s_mov_b64 exec, 1
        buffer_store_dwordx4 {vr(AQ,4)}, v{vPM+1}, {WS}, s6 offen
        buffer_store_dwordx4 {vr(AQ+4,4)}, v{vPM+1}, {WS}, s6 offen offset:16
        s_mov_b64 exec, -1''')
    a(f'''s_add_u32 s{sI}, s{sI}, 1
    s_add_u32 s{sSeg}, s{sSeg}, 2
    s_cmp_gt_u32 s{sI}, 32
    s_cbranch_scc1 L_p_end
    s_cmp_eq_u32 s{sI}, 32
    s_cbranch_scc1 L_p_tail
    s_cmp_eq_u32 s{sPre}, 0
    s_cbranch_scc1 L_p_xwait
    s_branch L_p_loop
    L_p_tail:''')
    a(kmaddr)
    a(f'''s_waitcnt vmcnt(0) lgkmcnt(0)
    s_barrier
    s_branch L_p_att
    L_p_first:''')
    mark(a, cfg, 7, KMD)
    a(f's_waitcnt vmcnt(0) lgkmcnt(0)\ns_barrier')
    tryx()
    a(f's_cmp_lg_u32 s{sLY}, 0\ns_cbranch_scc1 L_p_f2\ns_mov_b32 s{sVal}, 127')
    poll_ge(a, vL16, sFX, sVal, AQ, 24, 8)
    a('''L_p_f2:
    s_waitcnt vmcnt(0)
    s_branch L_p_next
    L_p_end:''')
    if cfg.get('cnt'): mark(a, cfg, 10, 16, 99)
    a('''s_waitcnt vmcnt(0)
    s_endpgm''')
```

```python
from common import *
from c import unpack, UROW
L_PA, L_FF, L_RT, L_UR, L_XR = 0, 8192, 25600, 44032, 60544
FROW = 4352
sCh, sK0, sT0, sT1 = 60, 61, 62, 63
LOG2E_HI, LOG2E_LO, LN2 = 0x3fb8aa3b, 0x32a57060, 0x3f317218

def exp_bf16(a, r, t):
    a(f'''v_mul_f32 v{t}, {LOG2E_HI:#x}, v{r}
    v_mov_b32 v{t+1}, {LOG2E_HI:#x}
    v_fma_f32 v{t+1}, v{r}, v{t+1}, -v{t}
    v_fmac_f32 v{t+1}, {LOG2E_LO:#x}, v{r}
    v_exp_f32 v{t}, v{t}
    v_mul_f32 v{t+1}, {LN2:#x}, v{t+1}
    v_fma_f32 v{r}, v{t}, v{t+1}, v{t}''')
    bf16r(a, r, r)

def pro(a, cfg):
    tm = cfg.get('pro_time', 0)
    def T(slot):
        if tm: a(f's_memrealtime s[{40+2*slot}:{41+2*slot}]')
    vZ, vL16, vPa = 1, 2, 3
    POS, PR, XD, SD, GA, DV = 4, 8, 200, 216, 160, 232
    a('L_pro:')
    T(0)
    if tm: a('s_memtime s[56:57]')
    a(f'''s_max_u32 s6, s{sX}, 3
    s_sub_u32 s6, s6, 3
    s_lshl_b32 s6, s6, 5
    s_add_u32 s6, s6, s{sR}
    s_lshl_b32 s{sT0}, s6, 15
    s_lshl_b32 s6, s6, 2
    s_add_u32 s{sCh}, s6, s{sW}
    s_lshl_b32 s6, s{sCh}, 2
    s_add_u32 s6, s6, {FX1:#x}
    v_mov_b32 v{vZ}, 0
    v_lshlrev_b32 v{vL16}, 4, v0
    s_mov_b64 exec, 1
    buffer_store_dword v{vZ}, v{vZ}, {WS}, s6 offen sc1
    s_mov_b64 exec, -1
    v_lshlrev_b32 v16, 2, v0
    s_lshl_b32 s6, s{sCh}, 8
    s_lshl_b32 s7, s{sCh}, 1''')
    for k, ptr in enumerate((P_LA, P_AI, P_CR, P_CI)):
        srd(a, 16 + 4*k, ptr, 512*256)
        a(f'buffer_load_dword v{20+k}, v16, s[{16+4*k}:{19+4*k}], s6 offen')
    srd(a, 16, P_LDT, 1024); a(f'buffer_load_ushort v24, v{vZ}, s[16:19], s7 offen')
    srd(a, 20, P_DS, 1024); a(f'buffer_load_ushort v{DV}, v{vZ}, s[20:23], s7 offen')
    signal_done(a, 'vmcnt(6)', 18)
    a(f'''v_and_b32 v16, 15, v0
    v_and_b32 v17, 7, v16
    v_lshrrev_b32 v18, 3, v16
    v_lshl_add_u32 v19, v18, 7, v17
    v_add_u32 v19, 1, v19
    v_cvt_f32_u32 v{POS}, v19
    v_and_b32 v19, 3, v16
    v_lshrrev_b32 v25, 2, v16
    v_lshlrev_b32 v25, 6, v25
    v_add_u32 v19, v19, v25
    v_lshlrev_b32 v19, 1, v19
    v_add_u32 v19, 258, v19
    v_cmp_gt_u32 vcc, 8, v16
    v_cndmask_b32 v19, 0, v19, vcc
    v_cvt_f32_u32 v{POS+1}, v19
    v_and_b32 v19, 1, v16
    v_lshrrev_b32 v25, 1, v17
    v_lshlrev_b32 v25, 7, v25
    v_lshl_add_u32 v19, v19, 2, v25
    v_add_u32 v19, 516, v19
    v_lshlrev_b32 v25, 7, v17
    v_add_u32 v25, 1032, v25
    v_cndmask_b32 v19, v25, v19, vcc
    v_cvt_f32_u32 v{POS+2}, v19
    v_lshlrev_b32 v19, 3, v16
    v_cvt_f32_u32 v{POS+3}, v19
    v_lshrrev_b32 v19, 4, v0
    s_lshl_b32 s6, s{sW}, 11
    v_lshl_add_u32 v{vPa}, v19, 6, s6''')
    a(f'''v_lshlrev_b32 v16, 4, v0
    v_cvt_f32_u32 v16, v16
    s_mul_i32 s{sT1}, s{sW}, {FROW}
    s_add_u32 s{sT1}, s{sT1}, {L_FF}''')
    import struct
    fb = lambda x: struct.unpack('<I', struct.pack('<f', x))[0]
    for m in range(4):
        for i in range(0, 8, 2):
            g0 = GA + 8*m + i
            a(f'''v_sub_f32 v17, {fb(2.0*(2048-512*m-i)):#x}, v16
            v_sub_f32 v18, {fb(2.0*(2048-512*m-i-1)):#x}, v16
            v_cvt_pk_bf16_f32 v17, v17, v18''')
            unpack(a, g0, g0+1, 17)
            a(f'v_cvt_u32_f32 v{g0}, v{g0}\nv_cvt_u32_f32 v{g0+1}, v{g0+1}\nv_add_u32 v{g0}, s{sT1}, v{g0}\nv_add_u32 v{g0+1}, s{sT1}, v{g0+1}')
    a('s_waitcnt vmcnt(1)\nv_lshlrev_b32 v24, 16, v24')
    exp_bf16(a, 24, 26)
    for k in range(4): unpack(a, 32+k, 36+k, 20+k)
    a('v_max3_f32 v28, |v34|, |v35|, |v38|\nv_max_f32 v28, |v39|, v28')
    for m in ('quad_perm:[1,0,3,2]', 'quad_perm:[2,3,0,1]', 'row_half_mirror', 'row_mirror'):
        a(f'v_max_f32_dpp v28, v28, v28 {m} row_mask:0xf bank_mask:0xf')
    a("""v_mov_b32 v29, v28
    v_permlane16_swap_b32 v28, v29
    v_max_f32 v28, v28, v29
    v_mov_b32 v29, v28
    v_permlane32_swap_b32 v28, v29
    v_max_f32 v28, v28, v29
    v_frexp_exp_i32_f32 v28, v28
    v_sub_u32 v29, 0, v28""")
    for b in (32, 36):
        exp_bf16(a, b, 26)
        a(f'''v_mul_f32 v{b}, v{b}, v24
        v_mul_f32 v{b+1}, v{b+1}, v24
        v_ldexp_f32 v{b+2}, v{b+2}, v29
        v_ldexp_f32 v{b+3}, v{b+3}, v29
        v_mul_f32 v{b}, {LOG2E_HI | 0x80000000:#x}, v{b}
        v_mul_f32 v{b+1}, 0x3e22f983, v{b+1}''')
    a(f'v_add_f32 v24, v24, v24\nv_ldexp_f32 v{DV+1}, v24, v28')
    a(f'''s_lshl_b32 s6, s{sW}, 11
    v_lshl_add_u32 v16, v0, 5, s6
    ds_write_b128 v16, v[32:35] offset:{L_PA}
    ds_write_b128 v16, v[36:39] offset:{L_PA+16}
    ds_read_b128 {vr(PR,4)}, v{vPa} offset:{L_PA}''')
    T(1)
    OPS, E_, CS, KD = 16, 32, 40, 48
    for r in range(12): a(f'v_mov_b32 v{KD+r}, 0')
    for r in range(16): a(f'v_mov_b32 v{OPS+r}, 0')
    mf = [f'v_mfma_f32_16x16x32_f16 {vr(KD+4*t,4)}, {vr(OPS+4*t,4)}, {vr(OPS+12,4)}, {vr(KD+4*t,4)}' for t in range(3)]
    def step(qq):
        p = PR + 4*(qq % 2)
        a(f's_waitcnt lgkmcnt(0)\nds_read_b128 {vr(PR+4*(1-qq%2),4)}, v{vPa} offset:{L_PA + (16*(qq+1) if qq < 3 else 256)}')
        o = (3, 0, 1, 2)
        for i, k in enumerate(o):
            if qq == 0 and i < 3: a(mf[i])
            h = k % 2
            a(f'v_pk_mul_f32 {vr(E_+2*k,2)}, {vr(p,2)}, {vr(POS+k-h,2)} op_sel:[0,{h}] op_sel_hi:[1,{h}]')
        for k in o: a(f'v_fract_f32 v{E_+2*k+1}, v{E_+2*k+1}')
        for k in o: a(f'v_exp_f32 v{E_+2*k}, v{E_+2*k}\nv_cos_f32 v{CS+2*k}, v{E_+2*k+1}\nv_sin_f32 v{CS+2*k+1}, v{E_+2*k+1}')
        for k in o: a(f'v_pk_mul_f32 {vr(CS+2*k,2)}, {vr(CS+2*k,2)}, {vr(E_+2*k,2)} op_sel_hi:[1,0]')
        a(f'v_pk_mul_f32 {vr(E_,2)}, {vr(CS+6,2)}, {vr(p+2,2)} op_sel_hi:[1,0] neg_hi:[1,0]')
        a(f'v_cvt_pk_f16_f32 v{OPS+qq}, v{CS}, v{CS+1}')
        a(f'v_pk_fma_f32 {vr(E_,2)}, {vr(CS+6,2)}, {vr(p+2,2)}, {vr(E_,2)} op_sel:[1,1,0] op_sel_hi:[0,1,1] neg_lo:[1,0,0] neg_hi:[1,0,0]')
        for k in (1, 2): a(f'v_cvt_pk_f16_f32 v{OPS+4*k+qq}, v{CS+2*k}, v{CS+2*k+1}')
        a(f'v_cvt_pk_f16_f32 v{OPS+12+qq}, v{E_}, v{E_+1}')
    for quarter in range(4):
        L = a.lab('kg')
        a(f's_mov_b32 s6, 2\n{L}:')
        for qq in range(4): step(qq)
        a(f'v_add_u32 v{vPa}, 256, v{vPa}\ns_sub_u32 s6, s6, 1\ns_cmp_lg_u32 s6, 0\ns_cbranch_scc1 {L}')
        if quarter == 1 and tm == 2: T(3)
        if quarter == cfg.get('pro_q', 2):
            wait_done(a, SD, SD+1, 50, 1)
            mark(a, cfg, 5, SD)
            if tm == 2: T(4)
            a(f's_lshl_b32 s6, s{sW}, 13\ns_add_u32 s6, s6, s{sT0}\ns_add_u32 s6, s6, {UX:#x}\ns_lshl_b32 s7, s{sW}, 10\nv_lshlrev_b32 v{SD}, 7, v0')
            for c in range(8):
                a(f's_add_u32 m0, s7, {L_UR + c*UROW + 32 if c < 4 else L_XR + (c-4)*4096}\nbuffer_load_dwordx4 v{SD}, {WS}, s6 offen lds\ns_add_u32 s6, s6, 16')
    for x in mf: a(x)
    T(2)
    a('s_waitcnt lgkmcnt(0)')
    if tm == 1: T(3)
    for r in range(12): a(f'v_mul_f32 v{KD+r}, v{KD+r}, v{DV+1}')
    a(f'''v_readlane_b32 s{sK0}, v{KD+4}, 32
    v_lshrrev_b32 v16, 4, v0
    v_and_b32 v17, 15, v0
    v_lshlrev_b32 v17, 4, v17
    v_add_u32 v17, s{sT1}, v17
    v_lshrrev_b32 v18, 1, v16
    v_and_b32 v19, 1, v16
    v_lshlrev_b32 v20, 8, v18
    v_lshl_add_u32 v20, v19, 3, v20
    v_add3_u32 v20, v20, v17, 2
    v_lshlrev_b32 v21, 8, v19
    v_add_u32 v21, 516, v21
    v_cmp_eq_u32 vcc, 0, v18
    v_cndmask_b32 v21, 0, v21, vcc
    v_cndmask_b32 v22, 0, 4, vcc
    v_add_u32 v21, v21, v17
    v_lshlrev_b32 v23, 9, v19
    v_add_u32 v23, 1032, v23
    v_lshlrev_b32 v24, 10, v19
    v_add_u32 v24, 2064, v24
    v_cndmask_b32 v23, v24, v23, vcc
    v_add_u32 v23, v23, v17
    v_mov_b32 v24, 0x100
    v_cndmask_b32 v24, v24, 8, vcc
    v_mov_b32 v25, 0x200
    v_cndmask_b32 v25, v25, v24, vcc
    v_mov_b32 v26, 0x100
    v_cndmask_b32 v25, v25, v26, vcc''')
    for t in range(3):
        for h in range(2): a(f'v_cvt_pk_bf16_f32 v{32+2*t+h}, v{KD+4*t+2*h}, v{KD+4*t+2*h+1}')
    W = lambda r: f'ds_write_b16{"_d16_hi" if r % 2 else ""}'
    for r in range(4):
        a(f'{W(r)} v21, v{34+r//2}')
        if r < 3: a('v_add_u32 v21, v21, v22')
    for r in range(4): a(f'{W(r)} v20, v{32+r//2} offset:{2*r}')
    a(f'''{W(0)} v23, v36
    v_add_u32 v26, v23, v24
    v_add_u32 v23, v23, v25
    {W(1)} v26, v36
    {W(2)} v23, v37
    v_add_u32 v23, v23, v24
    {W(3)} v23, v37''')
    for k in range(32): a(f'ds_read_u16 v{GA+k}, v{GA+k}')
    a(f'''s_mul_i32 s6, s{sW}, {KT_ROW}
    s_add_u32 s6, s6, {L_RT}
    v_add_u32 v16, s6, v{vL16}
    s_mul_i32 s7, s{sCh}, {KT_ROW}
    s_add_u32 s7, s7, {KT:#x}
    v_mov_b32 v21, 0
    v_mov_b32 v22, 0
    v_mov_b32 v23, 0
    v_mov_b32 v20, s{sK0}
    v_cmp_eq_u32 vcc, 30, v0
    v_cndmask_b32 v20, 0, v20, vcc
    s_mul_i32 s{sT0}, s{sW}, {UROW}
    s_add_u32 s{sT0}, s{sT0}, {L_UR}
    v_and_b32 v24, 16, v{vL16}
    v_add_u32 v24, s{sT0}, v24
    v_mov_b32 v28, 0
    v_mov_b32 v29, 0
    v_mov_b32 v30, 0
    v_mov_b32 v31, 0''')
    for m in range(4):
        a(f's_waitcnt lgkmcnt({min(15, 24 - 8*m + m)})' if m else 's_waitcnt lgkmcnt(15)')
        if m == 1: a('s_waitcnt lgkmcnt(15)')
        for d in range(4): a(f'v_lshl_or_b32 v{GA+8*m+d}, v{GA+8*m+2*d+1}, 16, v{GA+8*m+2*d}')
        a(f'ds_write_b128 v16, {vr(GA+8*m,4)} offset:{m*1024}')
        a(f'buffer_store_dwordx4 {vr(GA+8*m,4)}, v{vL16}, {WS}, s7 offen offset:{m*1024} sc1')
    a(f'''s_add_u32 s7, s7, 4096
    ds_write_b128 v24, v[28:31]
    s_mov_b32 exec_hi, 0
    ds_write_b128 v16, v[20:23] offset:4096
    buffer_store_dwordx4 v[20:23], v{vL16}, {WS}, s7 offen sc1
    s_mov_b32 exec_hi, -1''')
    vKa, vUa, vSh, vUr, vXr, vO = 4, 5, 6, 7, 8, 9
    RW, KB, TF, PT = 10, 32, 22, 44
    a(f'''v_and_b32 v16, 15, v0
    v_lshrrev_b32 v17, 4, v0
    v_lshlrev_b32 v18, 5, v16
    s_add_u32 s6, s6, 480
    v_sub_u32 v18, s6, v18
    v_lshl_add_u32 v{vKa}, v17, 4, v18
    v_lshlrev_b32 v18, 1, v16
    v_lshl_add_u32 v18, v17, 4, v18
    v_and_b32 v{vSh}, 2, v18
    v_and_b32 v18, -4, v18
    v_add_u32 v{vUa}, s{sT0}, v18
    v_lshlrev_b32 v18, 5, v16
    v_lshl_add_u32 v18, v17, 3, v18
    v_add3_u32 v{vUr}, v18, s{sT0}, 32
    s_lshl_b32 s7, s{sW}, 12
    s_add_u32 s7, s7, {L_XR}
    v_add_u32 v{vXr}, s7, v18
    v_lshrrev_b32 v18, 1, v16
    v_lshlrev_b32 v18, 15, v18
    v_and_b32 v19, 1, v16
    v_lshl_or_b32 v18, v19, 5, v18
    v_lshl_or_b32 v{vO}, v17, 3, v18
    v_lshlrev_b32 v31, 16, v{DV}
    v_add_u32 v60, 1024, v{vUa}
    v_add_u32 v61, 2048, v{vUa}
    v_add_u32 v62, 3072, v{vUa}
    s_lshl_b32 s{sT0}, s{sCh}, 6
    s_add_u32 s{sT0}, s{sT0}, {XT[0]:#x}
    s_waitcnt vmcnt(5) lgkmcnt(0)
    s_barrier''')
    if tm == 1: T(4)
    vD = 31
    qd = []
    def ds(x, tag): a(x); qd.append(tag)
    def need(tag):
        last = max([k for k, x in enumerate(qd) if x == tag], default=-1)
        if last >= 0:
            a(f's_waitcnt lgkmcnt({min(15, len(qd)-1-last)})'); del qd[:last+1]
    def uf(s): return vr(64+4*s, 4) if s < 48 else (ar(64+4*(s-48), 4) if s < 56 else vr(TF+4*(s % 2), 4))
    nraw = [0]; slot = {}
    def uread(s):
        r = (10, 16, 32, 38, 44)[nraw[0] % 5]; nraw[0] += 1; slot[s] = r
        ad = (vUa, 60, 61, 62)[s//16]; o = 16*(s % 16)
        ds(f'ds_read2_b32 {vr(r,2)}, v{ad} offset0:{o} offset1:{o+1}', f'u{s}')
        ds(f'ds_read2_b32 {vr(r+2,2)}, v{ad} offset0:{o+2} offset1:{o+3}', f'u{s}')
        ds(f'ds_read_b32 v{r+4}, v{ad} offset:{4*o+16}', f'u{s}')
    def ubuild(s):
        need(f'u{s}'); r = slot[s]
        dst = 64+4*s if s < 48 else (56 if s < 56 else TF+4*(s % 2))
        for d in range(4): a(f'v_alignbyte_b32 v{dst+d}, v{r+d+1}, v{r+d}, v{vSh}')
        if 48 <= s < 56:
            for d in range(4): a(f'v_accvgpr_write_b32 a{64+4*(s-48)+d}, v{dst+d}')
    dlv = list(range(-7, 1)) + list(range(-7, 57))
    def kread(v): ds(f'ds_read_b128 {ar(KB+4*(v % 4),4)}, v{vKa} offset:{3584 - 64*dlv[v]}', f'k{v}')
    def post(T_):
        Y, U4, D4, X4_, UU, X2 = (PT, PT+4, PT+8, 32, 36, 38) if T_ else (96, 128, 160, 192, 224, 226)
        l = [('ds', f'ds_read_b64 {vr(UU,2)}, v{vUr} offset:{512*T_}', f'p{T_}'), ('ds', f'ds_read_b64 {vr(X2,2)}, v{vXr} offset:{512*T_}', f'p{T_}')]
        l += [f'v_accvgpr_read_b32 v{Y+r}, a{4*T_+r}' for r in range(4)]
        l += [('need', f'p{T_}')]
        b = Asm()
        for h in range(2): unpack(b, U4+2*h, U4+2*h+1, UU+h)
        for h in range(2): unpack(b, X4_+2*h, X4_+2*h+1, X2+h)
        for r in range(4): b(f'v_mul_f32 v{D4+r}, v{U4+r}, v{vD}')
        for r in range(4): b(f'v_fmac_f32 v{Y+r}, s{sK0}, v{U4+r}')
        for h in range(2): b(f'v_cvt_pk_bf16_f32 v{UU+h}, v{D4+2*h}, v{D4+2*h+1}')
        for h in range(2): unpack(b, D4+2*h, D4+2*h+1, UU+h)
        def rnd():
            for h in range(2): b(f'v_cvt_pk_bf16_f32 v{UU+h}, v{Y+2*h}, v{Y+2*h+1}')
        rnd()
        for add in (D4, X4_):
            for h in range(2): unpack(b, Y+2*h, Y+2*h+1, UU+h)
            for r in range(4): b(f'v_add_f32 v{Y+r}, v{Y+r}, v{add+r}')
            rnd()
        b(f's_add_u32 s6, s{sT0}, {T_ << 18}')
        b(f'buffer_store_dwordx2 {vr(UU,2)}, v{vO}, {WS}, s6 offen sc1')
        return l + b.lines
    seq = [(v, dl, T_) for v, dl in enumerate(dlv) for T_ in (range(7, 0, -1) if v >= 8 else (0,)) if 0 <= 8*T_ - dl]
    first = [8*T_ - dl for v, dl, T_ in seq[:64]]
    assert sorted(first) == list(range(64))
    for v in range(3): kread(v)
    for k in range(5): uread(first[k])
    ubuild(first[0])
    fill = []; seen = set()
    def run(l):
        for x in l:
            if isinstance(x, str): a(x)
            elif x[0] == 'ds': ds(x[1], x[2])
            else: need(x[1])
    def flag(r, val): a(f'''s_lshl_b32 s6, s{sCh}, 2
        s_add_u32 s6, s6, {FX1:#x}
        v_mov_b32 v{r}, {val}
        s_waitcnt vmcnt(0)
        s_mov_b64 exec, 1
        buffer_store_dword v{r}, v{vZ}, {WS}, s6 offen sc1
        s_mov_b64 exec, -1''')
    for i, (v, dl, T_) in enumerate(seq):
        s = 8*T_ - dl
        newd = i == 0 or seq[i-1][0] != v
        if i < 63:
            ubuild(first[i+1])
        if newd: need(f'k{v}')
        acc = ar(4*T_, 4)
        a(f'v_mfma_f32_16x16x32_bf16 {acc}, {uf(s)}, {ar(KB+4*(v % 4),4)}, {acc if T_ in seen else "0"}')
        seen.add(T_)
        if i + 5 < 64: uread(first[i+5])
        if newd and v + 3 < len(dlv): kread(v + 3)
        if newd and dl > 1 and dl % 8 == 1: fill += post((dl-1)//8)
        if i == 8: run(post(0))
        if i == cfg.get('pro_f', 22): flag(226, 8)
        if i == 64: T(7)
        if i >= 64:
            n = 0
            while fill and n < 2:
                x = fill.pop(0)
                if isinstance(x, str): a(x); n += 1
                elif x[0] == 'ds': ds(x[1], x[2])
                else: need(x[1])
    T(5)
    run(fill + post(7))
    flag(16, 127)
    T(6)
    mark(a, cfg, 1, 16)
    if tm:
        a('s_memtime s[58:59]\ns_waitcnt lgkmcnt(0)\ns_sub_u32 s58, s58, s56\nv_mov_b32 v24, s58')
        a(f's_waitcnt lgkmcnt(0)\ns_lshl_b32 s6, s{sCh}, 6\ns_add_u32 s6, s6, {160*MB_}')
        for k in range(8): a(f's_sub_u32 s{40+2*k}, s{40+2*k}, s98\nv_mov_b32 v{16+k}, s{40+2*k}')
        a(f's_mov_b64 exec, 1\nbuffer_store_dwordx4 v[16:19], v{vZ}, {WS}, s6 offen\nbuffer_store_dwordx4 v[20:23], v{vZ}, {WS}, s6 offen offset:16\nbuffer_store_dword v24, v{vZ}, {WS}, s6 offen offset:32\ns_mov_b64 exec, -1')
    a('s_barrier')
```

```python
from common import *
L_SH, L_KB, L_VB, L_QK, L_OB, L_WO = 0, 8192, 16384, 24576, 28928, 32768
GQ, RS = 1088, 288
vIdx, vL16, vQKw, vXr, vKx, vOw, vOr, vWo, vPst, vVx, vONE, vPM = 0, 1, 2, 3, 4, 5, 6, 7, 8, 9, 10, 12
vT, MA, KX, QK, VA, VC, SA = 16, 20, 52, 84, 100, 108, 116
WV = 128
sStep, sTag, sC = 32, 33, 34
sKV0, sKM0, sFKM, sFKV0, sPB0, sPB1, sPR0, sPR1, sMst, sMld = 35, 36, 37, 38, 39, 40, 41, 42, 43, 44
sA1, sA2, sA3, sSh0, sNeed, sKV, sFKV, sKM, sM0K = 45, 46, 47, 48, 49, 50, 51, 52, 53
sLo, sVal = 54, 56
LY = 58
sKD, sTKM = 37, 59

def wfrag(m, t, ct):
    o = (t*2 + ct)*8
    return ar(o, 8) if m == 0 else (ar(128+o, 8) if m == 1 else vr(WV+o, 8))
def wpair(m, r):
    return ar(r, 2) if m == 0 else (ar(128+r, 2) if m == 1 else vr(WV+r, 2))

def timeout_fix(a, cnt, code, retry):
    L = a.lab('tf')
    a(f'''s_and_b32 s6, s{cnt}, 31
    s_cmp_lg_u32 s6, 31
    s_cbranch_scc1 {L}
    buffer_wbl2 sc1
    s_waitcnt vmcnt(0)
    buffer_inv sc1
    s_waitcnt vmcnt(0)
    {L}:''')
    spin_check(a, cnt, code, retry)

def load_weights(a, cfg, done_cb):
    vG, vH0, vH1, vR0, vRo, vt, vWw = 116, 118, 119, 120, 124, 126, 127
    done_cb(0)
    a(f'''v_bfe_u32 v16, v0, 4, 1
    v_lshrrev_b32 v17, 5, v0
    v_lshl_or_b32 v18, v17, 5, v16
    s_and_b32 s6, s{sW}, 1
    s_lshr_b32 s7, s{sW}, 1
    s_lshl_b32 s60, s6, 4
    s_lshl_b32 s7, s7, 6
    s_add_u32 s7, s7, s60
    v_add_u32 v18, s7, v18
    v_lshlrev_b32 v18, 13, v18
    v_lshrrev_b32 v19, 4, v0
    s_lshl_b32 s6, s6, 2
    v_or_b32 v19, s6, v19
    v_lshlrev_b32 v19, 1, v19
    v_and_b32 v{vG}, 15, v0
    v_xor_b32 v19, v19, v{vG}
    v_lshl_or_b32 v{vG}, v19, 4, v18''')
    a(f'''v_bfe_u32 v18, v0, 2, 2
    v_lshl_or_b32 v19, v16, 2, v18
    v_lshl_or_b32 v18, v17, 3, v18
    v_lshl_or_b32 v18, v16, 5, v18
    v_lshlrev_b32 v18, 8, v18
    s_lshl_b32 s6, s{sW}, 1
    v_xor_b32 v19, s6, v19
    v_lshl_or_b32 v18, v19, 5, v18
    v_and_b32 v19, 3, v0
    v_lshl_or_b32 v18, v19, 3, v18
    v_add_u32 v{vR0}, {L_WO}, v18
    v_xor_b32 v{vR0+1}, 32, v{vR0}
    v_add_u32 v{vR0+2}, 0x10000, v{vR0}
    v_add_u32 v{vR0+3}, 0x10000, v{vR0+1}''')
    a(f'''v_lshrrev_b32 v16, 4, v0
    v_and_b32 v17, 15, v0
    v_lshlrev_b32 v18, 1, v16
    v_xor_b32 v17, v17, v18
    v_lshlrev_b32 v17, 4, v17
    v_lshl_or_b32 v{vH0}, v16, 10, v17
    v_xor_b32 v{vH1}, 0x80, v{vH0}
    s_lshl_b32 s60, s{sW}, 13
    s_add_u32 s60, s60, {L_WO}
    v_bfe_u32 v17, v0, 2, 2
    v_bfe_u32 v18, v0, 4, 1
    v_lshl_or_b32 v18, v18, 2, v17
    v_lshl_or_b32 v17, v16, 3, v17
    v_lshlrev_b32 v17, 8, v17
    v_lshl_or_b32 v17, v18, 5, v17
    v_lshl_or_b32 v17, v19, 3, v17
    v_add_u32 v{vRo}, s60, v17
    v_add_u32 v{vWw}, s60, v{vL16}
    s_lshl_b32 s63, s{sR}, 8''')
    def issue(c):
        m, j = c // 4, c % 4
        if m < 3: a(f's_add_u32 s61, s63, {j << 20}')
        else: a(f's_lshl_b32 s61, s{sR}, 17\ns_lshl_b32 s62, s{sW}, 15\ns_add_u32 s61, s61, s62\ns_add_u32 s61, s61, {j*256}')
        for i in range(8):
            c0, v = (i*2*8192, vG) if m < 3 else (i*4096, vH1 if (i//2) % 2 else vH0)
            a(f'''s_add_u32 m0, s60, {j*32768 + i*1024}
            s_add_u32 s62, s61, {c0}
            buffer_load_dwordx4 v{v}, s[{16+4*m}:{19+4*m}], s62 offen lds''')
    for c in range(3): issue(c)
    for c in range(16):
        m, b = c // 4, c % 4
        a(f's_waitcnt vmcnt({8*min(2, 15-c)})')
        if c <= 12: a('s_barrier')
        if c + 3 < 16: issue(c + 3)
        if m < 3:
            Le = a.lab('lw'); Ls = [a.lab('lv') for _ in range(4)]
            for w in range(1, 4): a(f's_cmp_eq_u32 s{sW}, {w}\ns_cbranch_scc1 {Ls[w]}')
            for w in range(4):
                a(f'{Ls[w]}:')
                j = (b - w) & 3
                for kbi in range(2):
                    for ct in range(2):
                        for hf in range(2):
                            for rp in range(2):
                                r = ((2*j + kbi)*2 + ct)*8 + 4*hf + 2*rp
                                a(f'ds_read_b64_tr_b16 {wpair(m, r)}, v{vR0 + ct + 2*(b//2)} offset:{(b % 2)*32768 + (4*rp + 16*hf + 64*kbi)*256}')
                if w < 3: a(f's_branch {Le}')
            a(f'{Le}:\ns_waitcnt lgkmcnt(0)')
        else:
            for ct in range(8):
                a(f'v_xor_b32 v{vt}, {ct*32}, v{vRo}')
                for rp in range(2):
                    a(f'ds_read_b64_tr_b16 {vr(MA + 4*ct + 2*rp, 2)}, v{vt} offset:{rp*1024}')
            a('s_waitcnt lgkmcnt(0)')
            for ct in range(8):
                a(f'ds_write_b128 v{vWw}, {vr(MA + 4*ct, 4)} offset:{ct*1024}')
            a(f's_waitcnt lgkmcnt(0)\nv_add_u32 v{vRo}, 0x8000, v{vRo}\nv_add_u32 v{vWw}, 0x8000, v{vWw}')

def kv_addr(a, ring):
    a(f'''s_add_u32 s6, s{sStep}, 1
    s_and_b32 s6, s6, {ring}
    s_lshl_b32 s6, s6, 19
    s_add_u32 s{sKV}, s{sKV0}, s6
    s_add_u32 s{sFKV}, s{sKV}, 0x2000''')

def rec(a, cfg):
    ring = cfg.get('ring', 3); bar = cfg.get('rec_bar', 1); tm = cfg.get('rec_time', 0)
    def T(slot):
        if tm: a(f's_mem{"real" if cfg.get("rt") else ""}time s[{70+2*slot}:{71+2*slot}]')
    a('L_rec:')
    def sel(dst, pair):
        a(f's_cmp_eq_u32 s{LY}, 0\ns_cselect_b32 s{dst}, {pair[0]:#x}, {pair[1]:#x}' if False else
          f's_mul_i32 s{dst}, s{LY}, {pair[1]-pair[0]:#x}\ns_add_u32 s{dst}, s{dst}, {pair[0]:#x}')
    a(f's_and_b32 s{LY}, s{sX}, 1')
    sel(sKV0, KVX); sel(sKM0, KVM); sel(sPB0, PBUF); sel(sMld, MBUF)
    a(f'''s_lshl_b32 s6, s{sR}, 14
    s_lshl_b32 s7, s{sW}, 11
    s_add_u32 s{sKV0}, s{sKV0}, s6
    s_add_u32 s{sKV0}, s{sKV0}, s7
    s_mov_b32 s{sSh0}, s7
    s_lshl_b32 s6, s{sR}, 8
    s_add_u32 s{sMst}, s{sMld}, s6
    s_add_u32 s{sMld}, s{sMld}, s7
    s_lshl_b32 s7, s{sR}, 13
    s_add_u32 s{sPR0}, s{sPB0}, s7
    s_add_u32 s{sPR1}, s{sPR0}, 4096
    s_add_u32 s{sPB0}, s{sPB0}, s6
    s_add_u32 s{sPB1}, s{sPB0}, 32768
    s_lshl_b32 s7, s{sR}, 12
    s_add_u32 s{sKM0}, s{sKM0}, s7
    s_lshl_b32 s7, s{sW}, 10
    s_add_u32 s{sKM0}, s{sKM0}, s7
    s_add_u32 s{sM0K}, s{sSh0}, {L_KB}
    s_add_u32 s{sKD}, s{sSh0}, {L_VB}
    s_lshl_b32 s6, s{LY}, 13
    s_lshl_b32 s7, s{sR}, 7
    s_add_u32 s{sFKV0}, s6, s7
    s_add_u32 s{sFKV0}, s{sFKV0}, {FKV:#x}
    s_mov_b32 s{sLo}, 0x00ff00ff
    s_mov_b32 s{sLo+1}, 0x00ff00ff
    s_mov_b32 s{sVal}, 0x33333333
    s_mov_b32 s{sVal+1}, 0x33333333
    s_mov_b32 s{sC}, 0x3e0293ee''')
    for k, s in ((1, sA1), (2, sA2), (3, sA3)):
        a(f's_add_u32 s6, s{sW}, {k}\ns_and_b32 s6, s6, 3\ns_lshl_b32 s{s}, s6, 11')
    lanec = (f'''v_and_b32 v16, 15, v0
    v_lshrrev_b32 v17, 4, v0
    v_lshlrev_b32 v{vL16}, 4, v0
    s_lshl_b32 s6, s{sW}, 8
    s_add_u32 s6, s6, {L_QK}
    v_mul_u32_u24 v18, {GQ}, v17
    v_lshl_add_u32 v18, v16, 3, v18
    v_add_u32 v{vQKw}, s6, v18
    v_and_b32 v18, 3, v0
    v_mul_u32_u24 v18, {GQ}, v18
    v_bfe_u32 v19, v0, 2, 3
    v_lshl_add_u32 v18, v19, 3, v18
    v_lshrrev_b32 v19, 5, v0
    v_lshl_add_u32 v18, v19, 7, v18
    v_add_u32 v{vXr}, {L_QK}, v18
    v_and_b32 v18, 7, v0
    v_bfe_u32 v19, v0, 3, 1
    v_lshl_or_b32 v18, v19, 4, v18
    v_lshlrev_b32 v18, 4, v18
    v_lshl_add_u32 v18, v17, 9, v18
    v_add_u32 v{vKx}, {L_KB}, v18
    v_lshrrev_b32 v18, 2, v16
    v_and_b32 v19, 1, v0
    v_lshl_or_b32 v18, v18, 1, v19
    v_mul_u32_u24 v18, {RS}, v18
    v_lshl_add_u32 v18, v17, 2, v18
    s_lshl_b32 s6, s{sW}, 6
    s_add_u32 s6, s6, {L_OB}
    v_add_u32 v{vOw}, s6, v18
    v_lshrrev_b32 v18, 1, v16
    v_mul_u32_u24 v18, {RS}, v18
    v_lshl_add_u32 v18, v17, 5, v18
    v_lshl_add_u32 v18, v19, 4, v18
    v_add_u32 v{vOr}, {L_OB}, v18
    s_lshl_b32 s6, s{sW}, 15
    s_add_u32 s6, s6, {L_WO}
    v_add_u32 v{vWo}, s6, v{vL16}
    v_lshrrev_b32 v18, 2, v16
    v_lshlrev_b32 v18, 13, v18
    v_and_b32 v19, 3, v0
    v_lshl_or_b32 v19, v17, 2, v19
    v_lshl_or_b32 v18, v19, 4, v18
    s_lshl_b32 s6, s{sW}, 16
    v_add_u32 v{vPst}, s6, v18
    v_lshlrev_b32 v18, 4, v16
    v_lshl_or_b32 v18, v17, 9, v18
    v_add_u32 v{vVx}, s{sKD}, v18
    v_mov_b32 v{vONE}, 0x3f803f80
    v_mov_b32 v{vONE+1}, 0x3f803f80
    ''' + '\n'.join(f'v_mov_b32 v{vPM+r}, 0' for r in range(4)))
    a(lanec)
    a(f"""buffer_store_dwordx4 {vr(vPM,4)}, v{vPst}, {WS}, s{sPB0} offen sc1
    buffer_store_dwordx4 {vr(vPM,4)}, v{vPst}, {WS}, s{sPB1} offen sc1""")
    for k in range(4): a(f's_add_u32 s6, s{sKM0}, {k << 17}\nbuffer_store_dwordx4 {vr(vPM,4)}, v{vL16}, {WS}, s6 offen sc1')
    a(f"""s_mov_b64 exec, 0xffff
    buffer_store_dwordx4 {vr(vPM,4)}, v{vL16}, {WS}, s{sMst} offen sc1
    s_mov_b64 exec, -1""")
    if cfg.get('integ'):
        a(f's_cmp_eq_u32 s{sX}, 1\ns_cbranch_scc1 L_pro\ns_branch L_rec3\nL_rec2:')
        a(lanec)
        a('L_rec3:')
    srd(a, 16, P_WQ, 4*MB_); srd(a, 20, P_WK, 4*MB_); srd(a, 24, P_WV, 4*MB_); srd(a, 28, P_WO, 4*MB_)
    load_weights(a, cfg, lambda n: role_done(a, cfg, n))
    mark(a, cfg, 2, 16)
    srd(a, 16, P_M0, 8192)
    a(f"""v_and_b32 v16, 15, v0
    v_lshrrev_b32 v17, 1, v16
    v_lshlrev_b32 v17, 10, v17
    v_and_b32 v18, 1, v0
    v_lshl_or_b32 v17, v18, 6, v17
    v_lshrrev_b32 v19, 4, v0
    v_lshl_or_b32 v17, v19, 3, v17
    s_lshl_b32 s6, s{sW}, 8""")
    for k, off in enumerate((0, 32, 128, 160)):
        a(f'buffer_load_dwordx2 {vr(MA+2*k, 2)}, v17, s[16:19], s6 offen offset:{off}')
    a(f"""v_mov_b32 v19, 0x4444
    v_mov_b32 v16, 0xeeee
    v_cmp_eq_u32 vcc, 0, v18
    v_cndmask_b32 v{vIdx}, v16, v19, vcc""")
    wait_done(a, vT, vT+1, 10)
    a(f's_mov_b32 s{sStep}, 0\ns_mov_b32 s{sNeed}, 1\ns_mov_b32 s{sTag}, 1')
    kvdma = [f's_mov_b32 m0, s{sM0K}', f'buffer_load_dwordx4 v{vL16}, {WS}, s{sKV} offen sc1 lds', f'buffer_load_dwordx4 v{vL16}, {WS}, s{sKV} offen offset:1024 sc1 lds',
             f's_mov_b32 m0, s{sKD}', f'buffer_load_dwordx4 v{vL16}, {WS}, s{sFKV} offen sc1 lds', f'buffer_load_dwordx4 v{vL16}, {WS}, s{sFKV} offen offset:1024 sc1 lds']
    if cfg.get('x_nokv'): kvdma = []
    kvchk = [f'v_bitop3_b32 v{vT+k}, v{KX+8*k}, v{KX+8*k+4}, s{sTKM} bitop3:0x7e' for k in range(4)] + [
        f'v_or3_b32 v{vT}, v{vT}, v{vT+1}, v{vT+2}', f'v_bitop3_b32 v{vT+1}, v{VC}, v{VC+4}, s{sTKM} bitop3:0x7e',
        f'v_or3_b32 v{vT}, v{vT}, v{vT+1}, v{vT+3}', f'v_and_b32 v{vT}, 1, v{vT}', f'v_cmp_ne_u32 vcc, 0, v{vT}']
    sBad = 60
    kvchk2 = kvchk[:-1] + [f'v_cmp_ne_u32 s[{sBad}:{sBad+1}], 0, v{vT}']
    def kvslow(ok):
        L = a.lab('kvs')
        a(f'''s_and_b32 s6, s{sStep}, {ring}
        s_lshl_b32 s6, s6, 19
        s_add_u32 s6, s6, s{sKV0}
        s_sub_u32 s60, s6, s{sM0K}
        s_add_u32 s61, s60, 4096
        s_mov_b32 s7, 0
        {L}:''')
        for ks in range(4):
            for T_ in range(2): a(f'buffer_load_dwordx4 {vr(KX+16*T_+4*ks,4)}, v{vKx}, {WS}, s{60+ks//2} offen offset:{(ks%2)*2048+T_*128} sc1')
        for t in range(2): a(f'buffer_load_dwordx4 {vr(VC+4*t,4)}, v{vVx}, {WS}, s60 offen offset:{256*t} sc1')
        a('s_waitcnt vmcnt(0)')
        for x in kvchk: a(x)
        a(f's_cbranch_vccz {ok}')
        spin_check(a, 7, 13, L)
    def prep():
        for k, s in enumerate((sSh0, sA1, sA2, sA3)): a(f'v_add_u32 v{SA+k}, s{s}, v{vL16}')
        for r in range(QK, QK+24, 2): a(f'v_mov_b64 {vr(r,2)}, 0')
    a(f's_mov_b32 s{sTKM}, 1')
    kvslow('L_rec_go')
    a('L_rec_go:')
    kv_addr(a, ring)
    prep()
    a(f's_mov_b64 s[{sBad}:{sBad+1}], 0')
    if cfg.get('cnt'): a('s_mov_b32 s99, 0')
    mark(a, cfg, 7, 16)
    a('s_branch L_rec_step')
    def gl(r): a(f"""buffer_load_dwordx4 {vr(r,4)}, v{vL16}, {WS}, s{sMld} offen sc1
        buffer_load_dwordx4 {vr(r+4,4)}, v{vL16}, {WS}, s{sMld} offen offset:1024 sc1""")
    def gchk(r, ok): a(f"""v_bitop3_b32 v{vT}, v{r}, v{r+2}, s{sTag} bitop3:0x7e
        v_bitop3_b32 v{vT+1}, v{r+4}, v{r+6}, s{sTag} bitop3:0x7e
        v_bitop3_b32 v{vT}, v{vT}, v{vT+1}, 1 bitop3:0xa8
        v_cmp_ne_u32 vcc, 0, v{vT}
        s_cbranch_vccz {ok}""")
    gs = [MA, SA+4][:cfg.get('g_sets', 2)]; ng = len(gs)
    def fill(n):
        for k in range(n): a(f'v_mov_b32 v{vT+2}, 0')
    kxr = [f'ds_read_b128 {vr(KX+16*T_+4*ks,4)}, v{vKx} offset:{ks*2048+T_*128}' for ks in range(4) for T_ in range(2)]
    a('L_rec_loop:')
    pw = cfg.get('prep_at', 2)
    if pw == 1: prep()
    fill(cfg.get('g_pre', 0))
    gl(MA)
    a('s_mov_b32 s7, 0')
    if pw == 2: prep()
    fill(cfg.get('g_gap', 0))
    if ng > 1: gl(gs[1])
    if pw == 3: prep()
    a('s_branch L_rec_gather1')
    a('L_rec_gather:')
    for k in range(ng):
        gl(gs[k-1])
        if k == 0: a('L_rec_gather1:')
        a(f's_waitcnt vmcnt({2*(ng-1)})')
        gchk(gs[k], f'L_rec_got{k}' if k else 'L_rec_got')
    timeout_fix(a, 7, 12, 'L_rec_gather')
    for k in range(1, ng):
        a(f'L_rec_got{k}:')
        for r in range(0, 8, 2): a(f'v_mov_b64 {vr(MA+r,2)}, {vr(gs[k]+r,2)}')
        if k < ng-1: a('s_branch L_rec_got')
    a(f"""L_rec_got:
    s_mov_b32 s63, s7
    s_xor_b32 s{sTag}, s{sTag}, 1
    L_rec_step:""")
    T(0)
    def sm(m, t, ct):
        acc = (QK, QK+8, VA)[m] + 4*ct
        return f'v_smfmac_f32_16x16x64_bf16 {vr(acc,4)}, {vr(MA+4*t,4)}, {wfrag(m,t,ct)}, v{vIdx}'
    def red(acc, dst): return [f'v_add_f32 v{acc}, v{acc}, v{acc+1}', f'v_add_f32 v{acc+2}, v{acc+2}, v{acc+3}', f'v_cvt_pk_bf16_f32 v{dst}, v{acc}, v{acc+2}']
    a(f"""ds_write_b128 v{SA}, {vr(MA,4)}
    ds_write_b128 v{SA}, {vr(MA+4,4)} offset:1024""")
    own = [sm(m, t, ct) for m in range(3) for t in range(2) for ct in range(2)]
    misc = [f's_and_b32 s6, s{sStep}, {ring}', 's_lshl_b32 s6, s6, 17', f's_add_u32 s{sKM}, s{sKM0}, s6', f's_cmp_lg_u64 s[{sBad}:{sBad+1}], 0']
    for x in own[:4]:
        a(x); a(misc.pop(0))
    a('s_waitcnt lgkmcnt(0)\ns_barrier')
    mar = [f'ds_read_b128 {vr(MA+4*t,4)}, v{SA+t//2} offset:{(t%2)*1024}' for t in range(2, 8)]
    a(mar[0]); a(mar[1]); a(own[4]); a(mar[2]); a(mar[3]); a(own[5]); a(mar[4]); a(mar[5])
    for x in own[6:]: a(x)
    a('s_cbranch_scc1 L_rec_kvwait\nL_rec_kvok:')
    dm = list(kvdma); d0 = cfg.get('dma_at', 0)
    for t in range(2, 8):
        a(f's_waitcnt lgkmcnt({7-t})'); a(sm(0,t,0)); a(sm(0,t,1))
        if dm and d0 == 0: a(dm.pop(0))
    r0 = red(QK, vT); r1 = red(QK+4, vT+2); r2 = red(QK+8, vT+1); r3 = red(QK+12, vT+3)
    if cfg.get('k_alt'):
        rr = r0 + r1
        for t in range(2, 8):
            a(sm(1,t,0))
            if dm: a(dm.pop(0))
            a(sm(1,t,1))
            if t > 2: a(rr.pop(0))
            if t > 6: a(rr.pop(0))
        V = [sm(2, t, ct) for t in range(2, 8) for ct in range(2)]
        T(1)
        a(V[0]); a(V[1])
        for x, y in zip(r2, r3): a(x); a(y)
        a(f'ds_write_b64 v{vQKw}, {vr(vT,2)}\nds_write_b64 v{vQKw}, {vr(vT+2,2)} offset:128')
    else:
        fl = {4: r0[:2], 5: [r0[2], r1[0]], 6: r1[1:], 8: r2[:1], 9: r2[1:2], 10: r2[2:], 11: [f'ds_write_b64 v{vQKw}, {vr(vT,2)}']}
        for i in range(12):
            a(sm(1, 2 + i % 6, i // 6))
            if dm and i < 4:
                a(dm.pop(0))
                if dm and dm[0].startswith('s_'): a(dm.pop(0))
                if i == 0 and dm: a(dm.pop(0))
            for x in fl.get(i, []): a(x)
        assert not dm
        T(1)
        V = [sm(2, t, ct) for t in range(2, 8) for ct in range(2)]
        a(V[0]); a(V[1])
        for x in r3: a(x)
        a(f'ds_write_b64 v{vQKw}, {vr(vT+2,2)} offset:128')
    a(V[2]); a(V[3])
    a('s_waitcnt lgkmcnt(0)\ns_barrier')
    for ks in range(4):
        for sub in range(2): a(f'ds_read_b64_tr_b16 {vr(QK+4*ks+2*sub,2)}, v{vXr} offset:{ks*256+sub*64}')
        a(V[4+ks])
    nv = cfg.get('v_pre', 0)
    a(f's_waitcnt vmcnt({len(kvdma)*2//3})')
    for x in V[8:8+nv]: a(x)
    T(2)
    for ks in range(4):
        a(f's_waitcnt lgkmcnt({6-2*ks})')
        c = lambda r: '0' if ks == 0 else vr(r, 4)
        a(f'v_mfma_f32_16x16x32_bf16 {vr(SA,4)}, {vr(KX+4*ks,4)}, {vr(QK+4*ks,4)}, {c(SA)}')
        a(f'v_mfma_f32_16x16x32_bf16 {vr(SA+4,4)}, {vr(KX+16+4*ks,4)}, {vr(QK+4*ks,4)}, {c(SA+4)}')
        a(f'v_mfma_f32_16x16x32_bf16 {vr(SA+8,4)}, {vr(QK+4*ks,4)}, {vr(QK+4*ks,4)}, {c(SA+8)}')
    V = V[8+nv:]
    seq = [(0,0),(1,0),(0,1),(1,1),(2,0),(3,0),(2,1),(3,1),(4,0),(5,0),(4,1),(5,1),(6,0),(7,0),(6,1),(7,1)]
    slots = [KX, KX+8, KX+16, KX+24, MA, MA+8, MA+16, MA+24]
    def word(i):
        ct, kb = seq[i]
        return [f'ds_read_b128 {vr(slots[i%8]+4*hf,4)}, v{vWo} offset:{(2*kb+hf)*8192+ct*1024}' for hf in range(2)]
    pre = sum([word(i) for i in range(8)], [])
    def P(n=1):
        for _ in range(n):
            if pre: a(pre.pop(0))
    def Vn():
        if V: a(V.pop(0))
    Vn(); P(2)
    T(3)
    m_, t_ = QK+4, QK+5; PX = QK+8
    sv = [SA+i for i in range(8)] + [SA+10, SA+11]
    a(f'v_max3_f32 v{m_}, v{sv[0]}, v{sv[1]}, v{sv[2]}')
    a(f'v_max3_f32 v{t_}, v{sv[4]}, v{sv[5]}, v{sv[6]}')
    a(f'v_max3_f32 v{m_}, v{m_}, v{sv[3]}, v{sv[7]}')
    a(f'v_max3_f32 v{t_}, v{t_}, v{sv[8]}, v{sv[9]}')
    a(f'v_max_f32 v{m_}, v{m_}, v{t_}\nv_max_f32 v{t_}, v{m_}, v{t_}')
    Vn(); P(1)
    a(f'v_permlane32_swap_b32 v{m_}, v{t_}\nv_max_f32 v{m_}, v{m_}, v{t_}\nv_max_f32 v{t_}, v{m_}, v{t_}')
    Vn(); P(1)
    a(f'v_permlane16_swap_b32 v{m_}, v{t_}\nv_max_f32 v{m_}, v{m_}, v{t_}\nv_mul_f32 v{m_}, s{sC}, v{m_}')
    while V: Vn()
    def fm(r): a(f'v_fma_f32 v{r}, v{r}, s{sC}, -v{m_}')
    def ex(r): a(f'v_exp_f32 v{r}, v{r}'); P(1)
    fm(sv[8]); fm(sv[9]); ex(sv[8]); ex(sv[9])
    for i in range(4): fm(sv[i])
    SUM = SA+8
    a(f'v_cvt_pk_bf16_f32 v{vPM}, v{sv[8]}, v{sv[9]}')
    ex(sv[0]); ex(sv[1])
    a(f'v_mfma_f32_16x16x16_bf16 {vr(SUM,4)}, {vr(vONE,2)}, {vr(vPM,2)}, 0')
    ex(sv[2]); ex(sv[3])
    for x in red(VA, vT): a(x)
    a(f'v_cvt_pk_bf16_f32 v{PX}, v{sv[0]}, v{sv[1]}\nv_cvt_pk_bf16_f32 v{PX+1}, v{sv[2]}, v{sv[3]}')
    for x in red(VA+4, vT+2): a(x)
    a(f'v_mfma_f32_16x16x16_bf16 {vr(SUM,4)}, {vr(vONE,2)}, {vr(PX,2)}, {vr(SUM,4)}')
    a(f'v_bfi_b32 v{vT}, 1, s{sTKM}, v{vT}')
    for i in range(4, 6): fm(sv[i])
    if not cfg.get('x_nokm'): a(f'buffer_store_dwordx4 {vr(vT,4)}, v{vL16}, {WS}, s{sKM} offen sc1')
    a(f'v_mfma_f32_16x16x16_bf16 {vr(VA,4)}, {vr(vT,2)}, {vr(vPM,2)}, 0')
    for i in range(6, 8): fm(sv[i])
    a(f'v_mfma_f32_16x16x16_bf16 {vr(VA+4,4)}, {vr(vT+2,2)}, {vr(vPM,2)}, 0')
    for i in range(4, 8): ex(sv[i])
    a(f's_cmp_eq_u32 s{sStep}, 63')
    a(f'v_cvt_pk_bf16_f32 v{PX+2}, v{sv[4]}, v{sv[5]}\nv_cvt_pk_bf16_f32 v{PX+3}, v{sv[6]}, v{sv[7]}')
    a('s_cbranch_scc1 L_rec_last')
    T(4)
    a(f'v_mfma_f32_16x16x16_bf16 {vr(SUM,4)}, {vr(vONE,2)}, {vr(PX+2,2)}, {vr(SUM,4)}')
    a(f'v_mfma_f32_16x16x32_bf16 {vr(VA,4)}, {vr(VC,4)}, {vr(PX,4)}, {vr(VA,4)}')
    a(f'v_mfma_f32_16x16x32_bf16 {vr(VA+4,4)}, {vr(VC+4,4)}, {vr(PX,4)}, {vr(VA+4,4)}')
    P(16)
    a(f'v_rcp_f32 v{SUM}, v{SUM}')
    O_ = SA
    for t in range(2):
        for r in (0, 2): a(f'v_pk_mul_f32 {vr(VA+4*t+r,2)}, {vr(VA+4*t+r,2)}, {vr(SUM,2)} op_sel_hi:[1,0]')
        a(f'v_cvt_pk_bf16_f32 v{O_+2*t}, v{VA+4*t}, v{VA+4*t+1}\nv_cvt_pk_bf16_f32 v{O_+2*t+1}, v{VA+4*t+2}, v{VA+4*t+3}')
    a(f"""s_mov_b64 exec, s[{sVal}:{sVal+1}]
    ds_write2_b32 v{vOw}, v{O_}, v{O_+1} offset0:0 offset1:4
    ds_write2_b32 v{vOw}, v{O_+2}, v{O_+3} offset0:8 offset1:12
    s_mov_b64 exec, -1
    v_mfma_f32_32x32x8_bf16 {vr(QK,16)}, {vr(vPM,2)}, {vr(vPM+2,2)}, 0
    v_mfma_f32_32x32x8_bf16 {vr(QK+16,16)}, {vr(vPM,2)}, {vr(vPM+2,2)}, 0
    s_waitcnt vmcnt(1) lgkmcnt(0)
    s_barrier
    ds_read_b128 {vr(SA,4)}, v{vOr}
    ds_read_b128 {vr(SA+4,4)}, v{vOr} offset:128""")
    T(5)
    qd = ['o0', 'o1']
    def need(tags):
        last = max([k for k, x in enumerate(qd) if x in tags], default=-1)
        if last >= 0:
            a(f's_waitcnt lgkmcnt({len(qd)-1-last})'); del qd[:last+1]
    PK = SA+8; PK2 = vT
    valu = []
    def pack(ct):
        d = (PK, PK2)[ct//4] + ct % 4
        return red(QK+4*ct, d)
    for i in range(16):
        ct, kb = seq[i]; sl = slots[i % 8]
        need({f'f{i}', f'o{kb}'})
        a(f'v_smfmac_f32_16x16x64_bf16 {vr(QK+4*ct,4)}, {vr(SA+4*kb,4)}, {vr(sl,8)}, v{vIdx}')
        if i + 8 < 16:
            for x in word(i+8): a(x)
            qd += [f'f{i+8}']*2
        if i == 5: valu += pack(0) + pack(1)
        if i == 9: valu += pack(2) + pack(3) + [f'v_bfi_b32 v{PK}, 1, s{sTag}, v{PK}', f'buffer_store_dwordx4 {vr(PK,4)}, v{vPst}, {WS}, s{sPB0} offen']
        if i == 13: valu += pack(4) + pack(5)
        n = 1 if i < 8 else 2
        for x in valu[:n]: a(x)
        del valu[:n]
    for x in valu: a(x)
    for x in pack(6) + pack(7): a(x)
    a(f'v_bfi_b32 v{PK2}, 1, s{sTag}, v{PK2}\nbuffer_store_dwordx4 {vr(PK2,4)}, v{vPst}, {WS}, s{sPB1} offen')
    T(6)
    a(f's_add_u32 s{sStep}, s{sStep}, 1')
    if tm: time_dump(a)
    for x in kxr: a(x)
    a(f'ds_read_b128 {vr(VC,4)}, v{vVx}\nds_read_b128 {vr(VC+4,4)}, v{vVx} offset:256')
    a(f's_lshr_b32 s6, s{sStep}, 2\ns_andn2_b32 s{sTKM}, 1, s6')
    kv_addr(a, ring)
    if pw == 0: prep()
    def rloads(r):
        for i in range(8): a(f'buffer_load_dwordx4 {vr(r+4*i,4)}, v{vL16}, {WS}, s{sPR0 if i < 4 else sPR1} offen offset:{(i%4)*1024} sc1')
    SEL = SA+4; D_ = SA+8; AD = vT+3; F_ = vT
    a(f"""v_bfe_u32 v{AD}, v{vL16}, 4, 4
    v_and_b32 v{F_}, 1, v{AD}
    v_lshlrev_b32 v{F_+1}, 4, v{F_}
    v_mov_b32 v{F_+2}, 0x3f80
    v_lshlrev_b32 v{F_+1}, v{F_+1}, v{F_+2}
    v_lshrrev_b32 v{F_+2}, 1, v{AD}""")
    for k in range(4): a(f'v_cmp_eq_u32 vcc, {k}, v{F_+2}\nv_cndmask_b32 v{SEL+k}, 0, v{F_+1}, vcc')
    a(f"""v_lshlrev_b32 v{F_}, 5, v{F_}
    v_bfe_u32 v{F_+1}, v{AD}, 2, 1
    v_lshl_or_b32 v{F_}, v{F_+1}, 4, v{F_}
    v_bfe_u32 v{F_+1}, v{AD}, 1, 1
    v_lshl_or_b32 v{F_}, v{F_+1}, 3, v{F_}
    v_lshrrev_b32 v{F_+1}, 8, v{vL16}
    v_lshl_or_b32 v{D_}, v{F_+1}, 6, v{F_}
    s_waitcnt lgkmcnt(0)""")
    for x in kvchk2: a(x)
    a(f'v_mov_b32 v{AD}, v{D_}\ns_cmp_lg_u32 s{sW}, 0\ns_cbranch_scc1 L_rec_nored')
    rs = [MA, QK][:cfg.get('r_sets', 1)]; nr = len(rs)
    fill2 = lambda n: [a(f'v_mov_b32 v{F_+2}, 0') for k in range(n)]
    fill2(max(0, cfg.get('r_pre', 0) - (32 if tm else 0)))
    for k in range(nr-1):
        rloads(rs[k]); fill2(cfg.get('r_mid', 0))
    a('s_mov_b32 s7, 0\nL_rec_rr:')
    def rround(r, ok):
        for i in range(8):
            a(f's_waitcnt vmcnt({8*nr-1-i})')
            a(f'v_mfma_f32_16x16x32_bf16 {vr(D_,4)}, {vr(r+4*i,4)}, {vr(SEL,4)}, {"0" if i == 0 else vr(D_,4)}')
            if i % 2: a(f'v_bitop3_b32 v{F_+(i//2 if i < 7 else 1)}, v{r+4*i-4}, v{r+4*i}, s{sTag} bitop3:0x7e')
            if i == 6: a(f'v_or3_b32 v{F_}, v{F_}, v{F_+1}, v{F_+2}')
        a(f"""v_bitop3_b32 v{F_}, v{F_}, v{F_+1}, 1 bitop3:0xa8
        v_cmp_ne_u32 vcc, 0, v{F_}
        s_cbranch_vccz {ok}""")
    for k in range(nr):
        rloads(rs[k-1]); rround(rs[k], 'L_rec_red')
    timeout_fix(a, 7, 14, 'L_rec_rr')
    a('L_rec_red:')
    T(7)
    if tm: a('s_mov_b32 s62, s7')
    a(f"""v_cvt_pk_bf16_f32 v{D_}, v{D_}, v{D_+1}
    v_cvt_pk_bf16_f32 v{D_+1}, v{D_+2}, v{D_+3}
    v_bfi_b32 v{D_}, 1, s{sTag}, v{D_}
    s_mov_b64 exec, s[{sLo}:{sLo+1}]
    buffer_store_dwordx2 {vr(D_,2)}, v{AD}, {WS}, s{sMst} offen
    s_cmp_lg_u32 s{sStep}, 63
    s_cbranch_scc1 L_rec_nl
    buffer_store_dwordx2 {vr(D_,2)}, v{AD}, {WS}, s{sMst} offen sc1
    L_rec_nl:
    s_mov_b64 exec, -1
    s_barrier""")
    T(8)
    a('s_branch L_rec_loop\nL_rec_nored:')
    a('s_barrier')
    T(8)
    a('s_branch L_rec_loop\nL_rec_kvwait:')
    if cfg.get('cnt'): a('s_add_u32 s99, s99, 1')
    kvslow('L_rec_kvok')
    a('L_rec_last:')
    mark(a, cfg, 8, 16)
    if cfg.get('cnt'): mark(a, cfg, 10, 16, 99)
    a('s_waitcnt vmcnt(0)\ns_endpgm')

def time_dump(a):
    a(f'''s_waitcnt lgkmcnt(0)
    s_lshl_b32 s6, s{sX}, 5
    s_add_u32 s6, s6, s{sR}
    s_lshl_b32 s6, s6, 2
    s_add_u32 s6, s6, s{sW}
    s_lshl_b32 s6, s6, 6
    s_add_u32 s6, s6, s{sStep}
    s_lshl_b32 s6, s6, 6
    s_add_u32 s6, s6, {160*MB_}''')
    for k in range(9): a(f'v_mov_b32 v{QK+k}, s{70+2*k}')
    a(f'v_mov_b32 v{QK+9}, s62\nv_mov_b32 v{QK+10}, s63\ns_memtime s[70:71]\ns_waitcnt lgkmcnt(0)\nv_mov_b32 v{QK+11}, s70')
    a(f'''s_mov_b64 exec, 1
    buffer_store_dwordx4 {vr(QK,4)}, v{vPM+1}, {WS}, s6 offen
    buffer_store_dwordx4 {vr(QK+4,4)}, v{vPM+1}, {WS}, s6 offen offset:16
    buffer_store_dwordx4 {vr(QK+8,4)}, v{vPM+1}, {WS}, s6 offen offset:32
    s_mov_b64 exec, -1''')
```

```python
from asm import *
from layout import *
NAME = 'interleave_layers__ssm_conv_s4d__memory_aug_recurrent_mem_tr__prompt_kernel'
sW, sX, sR = 3, 4, 5
WS, DBG = 's[8:11]', 's[12:15]'
KA = 64
P_U, P_LA, P_AI, P_CR, P_CI, P_LDT, P_DS, P_BX, P_M0, P_WQ, P_WK, P_WV, P_WO, P_SL, P_OUT, P_DBG, P_WS = [KA + 2*i for i in range(17)]
SPIN = 1 << 17

def srd(a, s, ptr, nbytes):
    a(f's_mov_b32 s{s}, s{ptr}\ns_mov_b32 s{s+1}, s{ptr+1}\ns_mov_b32 s{s+2}, {nbytes:#x}\ns_mov_b32 s{s+3}, 0x20000')

def spin_check(a, cnt, code, retry):
    a(f'''s_add_u32 s{cnt}, s{cnt}, 1
    s_cmp_lt_u32 s{cnt}, {SPIN}
    s_cbranch_scc1 {retry}
    s_mov_b32 s6, {code}
    s_branch L_err''')

def again(a, bad, load, s0):
    for i, r in enumerate(bad): a(f'v_and_b32 v{r}, 1, v{r}')
    for i, r in enumerate(bad): a(f'v_cmp_ne_u32 s[{s0+2*i}:{s0+2*i+1}], 0, v{r}')
    for i, r in enumerate(bad): a(f's_or_b64 exec, s[{s0+2*i}:{s0+2*i+1}], 1\n{load(i)}')
    a('s_mov_b64 exec, -1')

def bf16r(a, dst, src):
    a(f'v_cvt_pk_bf16_f32 v{dst}, v{src}, v{src}\nv_and_b32 v{dst}, 0xffff0000, v{dst}')

def ln_final(a, s1, s2, t):
    a(f'''v_mul_f32 v{s1}, 0x3b000000, v{s1}
    v_mul_f32 v{t}, v{s1}, v{s1}
    v_mul_f32 v{s2}, 0x3b000000, v{s2}
    v_sub_f32 v{s2}, v{s2}, v{t}
    v_max_f32 v{s2}, 0, v{s2}''')
    bf16r(a, s2, s2)
    a(f'v_add_f32 v{s2}, 0x3727c5ac, v{s2}')
    bf16r(a, s2, s2)
    a(f'v_sqrt_f32 v{s2}, v{s2}')
    bf16r(a, s1, s1)
    bf16r(a, s2, s2)
    a(f'v_rcp_f32 v{s2}, v{s2}')

CFG = {}
def signal_done(a, wait='vmcnt(0)', t=2):
    L = a.lab('sd')
    a(f's_waitcnt {wait}\ns_barrier')
    mark(a, CFG, 9, t)
    a(f'''s_cmp_lg_u32 s{sW}, 0
    s_cbranch_scc1 {L}
    s_mov_b64 exec, 1
    s_and_b32 s6, s{sX}, 3
    s_lshl_b32 s6, s6, 6
    v_mov_b32 v{t}, {D_DONE[0]*4}
    v_mov_b32 v{t+1}, 1
    buffer_atomic_add v{t+1}, v{t}, {DBG}, s6 offen sc1''')
    a(f'''s_mov_b64 exec, -1
    {L}:''')

def role_done(a, cfg, n):
    L = a.lab('rdn')
    if cfg.get('integ'): a(f's_lshr_b32 s6, 0x72, s{sX}\ns_bitcmp1_b32 s6, 0\ns_cbranch_scc1 {L}')
    signal_done(a, f'vmcnt({n})', 18)
    a(f'{L}:')

def wait_done(a, t0, t1, code, one=0):
    L = a.lab('wd'); Lo = a.lab('wdo')
    if one: a(f's_cmp_lg_u32 s{sW}, 0\ns_cbranch_scc1 {Lo}')
    a(f'''s_mov_b32 s7, 0
    v_mbcnt_lo_u32_b32 v{t0}, -1, 0
    v_and_b32 v{t0}, 3, v{t0}
    v_lshlrev_b32 v{t0}, 6, v{t0}
    {L}:
    buffer_load_dword v{t1}, v{t0}, {DBG}, 0 offen offset:{D_DONE[0]*4} sc1
    s_waitcnt vmcnt(0)
    v_cmp_ne_u32 vcc, 64, v{t1}
    s_cbranch_vccz {Lo}''')
    spin_check(a, 7, code, L)
    a(f'{Lo}:')
    if one: a('s_barrier')

def poll_ge(a, vaddr, soff, need, t, code, n=1, imm=0):
    L = a.lab('pl'); Lo = a.lab('plo')
    op = {1: 'dword', 2: 'dwordx2', 4: 'dwordx4', 8: 'dwordx4'}[n]
    a(f'''s_mov_b32 s7, 0
    {L}:
    buffer_load_{op} {vr(t, min(n, 4))}, v{vaddr}, {WS}, s{soff} offen offset:{imm} sc1''')
    if n == 8: a(f'buffer_load_{op} {vr(t+4, 4)}, v{vaddr}, {WS}, s{soff} offen offset:{imm+1024} sc1')
    a('s_waitcnt vmcnt(0)')
    if n == 8: a(f'v_min3_u32 v{t}, v{t}, v{t+1}, v{t+2}\nv_min3_u32 v{t+3}, v{t+3}, v{t+4}, v{t+5}\nv_min3_u32 v{t}, v{t}, v{t+6}, v{t+7}\nv_min_u32 v{t}, v{t}, v{t+3}')
    if n == 2: a(f'v_min_u32 v{t}, v{t}, v{t+1}')
    if n == 4: a(f'v_min_u32 v{t}, v{t}, v{t+1}\nv_min3_u32 v{t}, v{t}, v{t+2}, v{t+3}')
    a(f'v_cmp_gt_u32 vcc, s{need}, v{t}\ns_cbranch_vccz {Lo}')
    spin_check(a, 7, code, L)
    a(f'{Lo}:')

def mark(a, cfg, k, t, src=100):
    if cfg.get('hdbg'):
        for (kk, X, w), word in {(6,0,0): 2, (0,0,0): 3, (2,0,0): 5, (7,0,0): 6, (8,0,0): 7, (2,1,0): 9, (7,1,0): 10, (8,1,0): 11, (8,7,3): 12, (4,2,0): 13, (5,4,0): 14, (3,2,0): 15}.items():
            if kk != k: continue
            L = a.lab('hd')
            a(f'''s_lshl_b32 s6, s{sX}, 8
            s_lshl_b32 s7, s{sR}, 2
            s_add_u32 s6, s6, s7
            s_add_u32 s6, s6, s{sW}
            s_cmp_eq_u32 s6, {X*256 + w}
            s_cbranch_scc0 {L}
            s_memrealtime s[100:101]
            s_waitcnt lgkmcnt(0)
            v_mov_b32 v{t}, s{src}
            v_mov_b32 v{t+1}, 0
            s_mov_b64 exec, 1
            buffer_store_dword v{t}, v{t+1}, {DBG}, 0 offen offset:{word*4} sc1
            s_mov_b64 exec, -1
            {L}:''')
        return
    if not cfg.get('marks'): return
    a(f"""s_memrealtime s[100:101]
    s_waitcnt lgkmcnt(0)
    s_lshl_b32 s6, s{sX}, 5
    s_add_u32 s6, s6, s{sR}
    s_lshl_b32 s6, s6, 2
    s_add_u32 s6, s6, s{sW}
    s_lshl_b32 s6, s6, 2
    s_add_u32 s6, s6, {TIM + 0x1000*(k+1):#x}
    v_mov_b32 v{t}, s{src}
    v_mov_b32 v{t+1}, 0
    s_mov_b64 exec, 1
    buffer_store_dword v{t}, v{t+1}, {WS}, s6 offen
    s_mov_b64 exec, -1""")

def prologue(a, cfg):
    if cfg.get('memtime') or cfg.get('hdbg'): a('s_memrealtime s[98:99]')
    a(f'''s_cmp_ge_u32 s2, 256
    s_cbranch_scc1 L_end
    s_load_dwordx16 s[64:79], s[0:1], 0
    s_load_dwordx16 s[80:95], s[0:1], 64
    s_load_dwordx2 s[96:97], s[0:1], 128
    s_getreg_b32 s{sX}, hwreg(HW_REG_XCC_ID,0,4)
    v_lshrrev_b32 v1, 6, v0
    v_and_b32 v0, 63, v0
    s_and_b32 s{sX}, s{sX}, 7
    v_readfirstlane_b32 s{sW}, v1''')
    if cfg.get('xperm'):
        a(f's_lshl_b32 s{sX}, s{sX}, 2\ns_lshr_b32 s{sX}, {sum(r << 4*x for x, r in enumerate(cfg["xperm"])):#x}, s{sX}\ns_and_b32 s{sX}, s{sX}, 7')
    a('s_waitcnt lgkmcnt(0)')
    srd(a, 12, P_DBG, 256); srd(a, 8, P_WS, 0x10000000); srd(a, 16, P_U, 2048*1024)
    def PT(k):
        if cfg.get('plt'): a(f's_memrealtime s[{48+2*k}:{49+2*k}]')
    PT(0)
    a(f'''s_lshl_b32 s6, s2, 3
    s_lshl_b32 s7, s{sW}, 1
    s_add_u32 s32, s6, s7
    s_lshl_b32 s6, s32, 10
    v_lshlrev_b32 v4, 5, v0
    buffer_load_dwordx4 v[40:43], v4, s[16:19], s6 offen
    buffer_load_dwordx4 v[44:47], v4, s[16:19], s6 offen offset:16''')
    Lt = a.lab('tk')
    a(f'''s_cmp_lg_u32 s{sW}, 0
    s_cbranch_scc1 {Lt}
    s_and_b32 s6, s{sX}, 3
    s_lshl_b32 s6, s6, 6
    s_and_b32 s7, s{sX}, 4
    s_add_u32 s6, s6, s7
    s_mov_b64 exec, 1
    v_mov_b32 v2, s6
    v_mov_b32 v3, 1
    buffer_atomic_add v3, v2, {DBG}, 0 offen sc0 sc1
    s_mov_b64 exec, -1
    {Lt}:''')
    PT(1)
    Lx = a.lab('xw')
    a(f's_cmp_lg_u32 s{sW}, 0\ns_waitcnt vmcnt(1)\ns_cbranch_scc0 {Lx}\ns_waitcnt vmcnt(0)\n{Lx}:')
    PT(2)
    a(f'''v_mov_b32 v5, 0
    v_mov_b32 v6, 0
    v_mov_b32 v7, 0x3f803f80''')
    for r in range(40, 48): a(f'v_dot2c_f32_bf16 v5, v{r}, v7\nv_dot2c_f32_bf16 v6, v{r}, v{r}')
    for m in ('quad_perm:[1,0,3,2]', 'quad_perm:[2,3,0,1]', 'row_half_mirror', 'row_mirror'):
        a(f'v_add_f32_dpp v5, v5, v5 {m} row_mask:0xf bank_mask:0xf\nv_add_f32_dpp v6, v6, v6 {m} row_mask:0xf bank_mask:0xf')
    a('''v_mov_b32 v8, v5
    v_mov_b32 v9, v6
    v_permlane16_swap_b32 v5, v8
    v_permlane16_swap_b32 v6, v9
    v_add_f32 v8, v5, v8
    v_add_f32 v9, v6, v9''')
    ln_final(a, 8, 9, 10)
    X, U = 16, 32
    for k in range(8):
        a(f'v_lshlrev_b32 v{X+2*k}, 16, v{24+16+k}\nv_and_b32 v{X+2*k+1}, 0xffff0000, v{24+16+k}')
    for k in range(16): a(f'v_sub_f32 v{X+k}, v{X+k}, v8')
    for k in range(8): a(f'v_cvt_pk_bf16_f32 v{U+k}, v{X+2*k}, v{X+2*k+1}')
    for k in range(8): a(f'v_lshlrev_b32 v{X+2*k}, 16, v{U+k}\nv_and_b32 v{X+2*k+1}, 0xffff0000, v{U+k}')
    for k in range(16): a(f'v_mul_f32 v{X+k}, v{X+k}, v9')
    for k in range(8): a(f'v_cvt_pk_bf16_f32 v{U+k}, v{X+2*k}, v{X+2*k+1}')
    a(f"""s_mov_b32 s6, 0x05040100
    s_mov_b32 s7, 0x07060302
    v_and_b32 v4, 31, v0
    v_mul_u32_u24 v4, 528, v4
    v_lshrrev_b32 v5, 5, v0
    v_lshl_add_u32 v4, v5, 8, v4
    s_lshl_b32 s34, s{sW}, 2
    s_add_u32 s34, s34, 64
    v_add_u32 v4, s34, v4""")
    for part in range(2):
        b = U + 8*part
        for k in range(4): a(f'v_permlane32_swap_b32 v{b+k}, v{b+k+4}')
        for k in range(4):
            for h in range(2):
                e = 2*k + h
                a(f'v_perm_b32 v{X+8*part+e}, v{b+k+4}, v{b+k}, s{6+h}')
                a(f'ds_write_b32 v4, v{X+8*part+e} offset:{(e//4)*128 + (e % 4)*16 + 64*part}')
    Lr = a.lab('rl'); Lok = a.lab('rok'); Lw = a.lab('row'); Lw2 = a.lab('row2')
    a(f'''s_cmp_lg_u32 s{sW}, 0
    s_cbranch_scc1 {Lr}
    s_waitcnt vmcnt(0)
    v_readfirstlane_b32 s{sR}, v3
    s_cmp_lt_u32 s{sR}, 32
    s_cbranch_scc1 {Lok}''')
    a(f'''s_mov_b64 exec, 1
    v_mov_b32 v2, {D_OVF*4}
    v_mov_b32 v3, 1
    buffer_atomic_add v3, v2, {DBG}, 0 offen sc0 sc1
    s_waitcnt vmcnt(0)
    v_readfirstlane_b32 s33, v3
    s_mov_b64 exec, -1
    s_mov_b32 s7, 0
    v_lshlrev_b32 v2, 2, v0
    {Lw}:
    buffer_load_dword v3, v2, {DBG}, 0 offen sc1
    s_waitcnt vmcnt(0)
    s_mov_b32 s34, 0''')
    for i in range(8): a(f'v_readlane_b32 s{40+i}, v3, {D_TICK[i]}')
    for i in range(8): a(f's_add_u32 s34, s34, s{40+i}')
    a(f's_cmp_eq_u32 s34, 256\ns_cbranch_scc1 {Lw2}')
    spin_check(a, 7, 1, Lw)
    a(f'{Lw2}:')
    for i in range(8):
        Ln = a.lab('ovn')
        a(f'''s_min_u32 s{sR}, s{40+i}, 32
        s_sub_u32 s35, 32, s{sR}
        s_cmp_ge_u32 s33, s35
        s_cbranch_scc1 {Ln}
        s_add_u32 s{sR}, s{sR}, s33
        s_mov_b32 s{sX}, {i}
        s_branch {Lok}
        {Ln}:
        s_sub_u32 s33, s33, s35''')
    a(f'''s_mov_b32 s6, 2
    s_branch L_err
    {Lok}:
    s_lshl_b32 s6, s{sX}, 5
    s_add_u32 s6, s6, s{sR}
    v_mov_b32 v2, 0
    v_mov_b32 v3, s6
    ds_write_b32 v2, v3
    {Lr}:''')
    a(f"""v_lshrrev_b32 v4, 5, v0
    s_lshl_b32 s6, s{sW}, 1
    v_add_u32 v4, s6, v4
    v_mul_u32_u24 v4, 528, v4
    v_and_b32 v5, 31, v0
    v_lshl_add_u32 v4, v5, 4, v4
    v_lshrrev_b32 v5, 3, v0
    v_lshlrev_b32 v5, 15, v5
    v_and_b32 v6, 7, v0
    v_lshl_or_b32 v5, v6, 4, v5
    s_lshl_b32 s6, s{sW}, 18
    s_lshl_b32 s7, s2, 7
    s_add_u32 s6, s6, s7
    s_add_u32 s6, s6, {UX:#x}
    s_waitcnt lgkmcnt(0)""")
    PT(3)
    a('s_barrier')
    PT(4)
    for k in range(4): a(f'ds_read_b128 {vr(X+4*k,4)}, v4 offset:{64 + k*8*528}')
    for k in range(4): a(f's_waitcnt lgkmcnt({3-k})\nbuffer_store_dwordx4 {vr(X+4*k,4)}, v5, {WS}, s6 offen sc1\ns_add_u32 s6, s6, {1 << 20}')
    a(f'''
    v_mov_b32 v2, 0
    ds_read_b32 v3, v2
    s_waitcnt lgkmcnt(0)
    v_readfirstlane_b32 s6, v3
    s_barrier
    s_lshr_b32 s{sX}, s6, 5
    s_and_b32 s{sX}, s{sX}, 7
    s_and_b32 s{sR}, s6, 31''')
    mark(a, cfg, 0, 2); mark(a, cfg, 6, 2, 98)
    if cfg.get('plt'):
        for k in range(5): mark(a, cfg, 10+k, 2, 48+2*k)

def epilogue(a):
    a(f'''L_err:
    s_mov_b64 exec, 1
    s_lshl_b32 s7, s{sX}, 2
    s_add_u32 s7, s7, {D_ERR*4}
    v_mov_b32 v2, s7
    v_mov_b32 v3, s6
    buffer_store_dword v3, v2, {DBG}, 0 offen sc1
    s_waitcnt vmcnt(0)
    L_end:
    s_endpgm''')
```

```python
from common import *
from rec import timeout_fix
UROW = 4128
L_K, L_U, L_X2, L_TB, L_F = 0, 73728, 139776, 147968, 150016
vL16, vZ, vF = 0, 1, 2
sS, sNeed, sA, sB, sTag, sRes0, sOP0, sFOP, sST, sO = range(32, 42)
sNx, sPa, sTP, sGo, sSel = 43, 44, 45, 46, 20

def unpack(a, dlo, dhi, src): a(f'v_lshlrev_b32 v{dlo}, 16, v{src}\nv_and_b32 v{dhi}, 0xffff0000, v{src}')

def lds_wait(a, off, n, need, t, code):
    L = a.lab('lw'); Lo = a.lab('lwo')
    a(f's_mov_b32 s7, 0\n{L}:\nds_read_b{32*n} {vr(t,n)}, v{vF} offset:{off}\ns_waitcnt lgkmcnt(0)')
    if n == 2: a(f'v_min_i32 v{t}, v{t}, v{t+1}')
    a(f'v_cmp_gt_i32 vcc, s{need}, v{t}\ns_cbranch_vccz {Lo}')
    spin_check(a, 7, code, L)
    a(f'{Lo}:')

def tdump(a, n, v):
    a(f'''s_waitcnt lgkmcnt(0)
    s_lshl_b32 s6, s{sX}, 5
    s_add_u32 s6, s6, s{sR}
    s_lshl_b32 s6, s6, 2
    s_add_u32 s6, s6, s{sW}
    s_lshl_b32 s6, s6, 6
    s_add_u32 s6, s6, s{sS}
    s_lshl_b32 s6, s6, 6
    s_add_u32 s6, s6, {160*MB_}''')
    for k in range(n): a(f'v_mov_b32 v{v+k}, s{70+2*k}')
    a('s_mov_b64 exec, 1')
    for k in range(0, n, 4): a(f'buffer_store_dwordx4 {vr(v+k,4)}, v{vZ}, {WS}, s6 offen offset:{4*k}')
    a('s_mov_b64 exec, -1')

def c(a, cfg):
    tm = cfg.get('c_time', 0)
    def T(slot):
        if tm: a(f's_mem{"real" if cfg.get("rt") else ""}time s[{70+2*slot}:{71+2*slot}]')
    a('L_c:')
    a(f'''v_lshlrev_b32 v4, 2, v0
    v_lshlrev_b32 v{vL16}, 4, v0
    v_mov_b32 v{vZ}, 0
    v_mov_b32 v{vF}, {L_F}
    s_lshl_b32 s6, s{sR}, 8
    s_lshl_b32 s7, s{sW}, 13
    s_add_u32 s6, s6, s7
    s_add_u32 s6, s6, {ST2:#x}
    buffer_store_dword v{vZ}, v4, {WS}, s6 offen sc1
    s_lshl_b32 s6, s{sR}, 3
    s_add_u32 s6, s6, {FX3:#x}
    s_mov_b64 exec, 3
    buffer_store_dword v{vZ}, v4, {WS}, s6 offen sc1
    buffer_store_dword v{vZ}, v4, {WS}, s6 offen offset:256 sc1
    s_mov_b64 exec, -1
    s_lshl_b32 s6, s{sR}, 10
    s_lshl_b32 s7, s{sW}, 15
    s_add_u32 s6, s6, s7
    s_add_u32 s6, s6, {OP[0]:#x}''')
    for r in range(8, 12): a(f'v_mov_b32 v{r}, 0')
    for k in range(8):
        a(f'buffer_store_dwordx4 v[8:11], v{vL16}, {WS}, s6 offen sc1')
        if k < 7: a(f's_add_u32 s6, s6, {0x20000 if k != 3 else OP[1] - OP[0] - 0x60000:#x}')
    signal_done(a, 'vmcnt(0)', 6)
    a(f'''v_bfe_u32 v5, v{vL16}, 5, 4
    v_mul_u32_u24 v5, {UROW}, v5
    v_and_b32 v6, 16, v{vL16}
    v_add3_u32 v5, v5, v6, v{vZ}''')
    a(f'v_add_u32 v5, {L_U}, v5\nds_write_b128 v5, v[8:11]\nds_write_b128 v{vF}, v[8:11]\nds_write_b128 v{vF}, v[8:11] offset:16')
    for r in range(256): a(f'v_accvgpr_write_b32 a{r}, 0')
    wait_done(a, 8, 9, 40, 1)
    a(f'''v_and_b32 v4, 60, v4
    s_lshl_b32 s6, s{sR}, 6
    s_add_u32 s{sA}, s6, {FX1:#x}
    s_mov_b32 s{sNeed}, 127''')
    poll_ge(a, 4, sA, sNeed, 8, 41, 1)
    a(f's_mul_i32 s{sA}, s{sR}, {16*KT_ROW}\ns_mul_i32 s{sB}, s{sW}, {18*1024}\ns_add_u32 s{sA}, s{sA}, s{sB}\ns_add_u32 s{sA}, s{sA}, {KT:#x}')
    for i in range(18):
        if i % 4 == 0: a(f's_add_u32 m0, s{sB}, {L_K + i*1024}\ns_add_u32 s6, s{sA}, {i*1024}')
        a(f'buffer_load_dwordx4 v{vL16}, {WS}, s6 offen offset:{(i%4)*1024} lds')
    a(f'''s_mov_b32 s{sS}, 0
    s_waitcnt vmcnt(0) lgkmcnt(0)
    s_barrier
    s_cmp_ge_u32 s{sW}, 2
    s_cbranch_scc1 L_c_res''')
    vKa, vUa, vTw, vTr, vUr, vXr, vSt, vK0, vD, vV = 4, 5, 6, 7, 8, 9, 10, 11, 12, 13
    AF, BF, Y, UU, X2, t = 16, 48, 80, 84, 86, 88
    sM = 42
    srd(a, 16, P_DS, 1024)
    a(f'''v_bfe_u32 v16, v{vL16}, 4, 4
    v_lshrrev_b32 v17, 8, v{vL16}
    v_lshrrev_b32 v18, 7, v{vL16}
    s_lshl_b32 s6, s{sR}, 5
    s_lshl_b32 s7, s{sW}, 4
    s_add_u32 s6, s6, s7
    v_lshlrev_b32 v19, 1, v18
    buffer_load_ushort v{vD}, v19, s[16:19], s6 offen
    s_mul_i32 s6, s{sW}, {8*KT_ROW}
    v_mul_u32_u24 v19, {KT_ROW}, v18
    v_add_u32 v19, s6, v19
    ds_read_b32 v{vK0}, v19 offset:{L_K + 4576}
    s_add_u32 s6, s6, {L_K + 480}
    v_lshlrev_b32 v19, 5, v16
    v_sub_u32 v19, s6, v19
    v_lshl_add_u32 v{vKa}, v17, 4, v19
    s_mul_i32 s6, s{sW}, {8*UROW}
    s_add_u32 s6, s6, {L_U}
    v_lshlrev_b32 v19, 1, v16
    v_lshl_add_u32 v19, v17, 4, v19
    v_add_u32 v{vUa}, s6, v19
    v_mul_u32_u24 v19, {UROW}, v18
    v_bfe_u32 v20, v{vL16}, 1, 6
    v_add3_u32 v19, v19, v20, s6
    v_add_u32 v{vUr}, 32, v19
    s_lshl_b32 s6, s{sW}, 10
    s_add_u32 s6, s6, {L_TB}
    v_add_u32 v{vTr}, s6, v{vL16}
    v_and_b32 v19, 1, v16
    v_lshlrev_b32 v19, 6, v19
    v_lshl_add_u32 v19, v17, 4, v19
    v_add_u32 v{vTw}, s6, v19
    v_lshrrev_b32 v{vSt}, 1, v{vL16}
    s_lshl_b32 s6, s{sW}, 9
    s_add_u32 s{sB}, s6, {L_X2}
    s_lshl_b32 s7, s{sR}, 10
    s_add_u32 s6, s6, s7
    s_add_u32 s{sST}, s6, {XT[1]:#x}
    s_lshl_b32 s6, s{sR}, 3
    s_lshl_b32 s7, s{sW}, 2
    s_add_u32 s6, s6, s7
    s_add_u32 s{sFOP}, s6, {FX3:#x}
    v_add_u32 v14, s7, v{vF}
    s_waitcnt vmcnt(0) lgkmcnt(0)
    v_lshlrev_b32 v{vD}, 16, v{vD}''')
    UA, RW, vSh = 104, 112, 15
    a(f'v_and_b32 v{vSh}, 2, v{vUa}\nv_and_b32 v{vUa}, -4, v{vUa}')
    for cl in range(8): a(f'v_add_u32 v{UA+cl}, {cl*UROW}, v{vUa}')
    def kb(i, cl, T_): return f'ds_read_b128 {vr(BF+4*(i%8),4)}, v{vKa} offset:{cl*KT_ROW + 512*(7-T_)}'
    def mf(i, cl, T_):
        acc = ar(32*cl + 4*T_, 4)
        return f'v_mfma_f32_16x16x32_bf16 {acc}, {vr(AF+4*cl,4)}, {vr(BF+4*(i%8),4)}, {acc}'
    for T0 in range(8):
        Lp = f'L_c_conv{T0}'
        a(f'''{Lp}:
        s_add_u32 s{sNeed}, s{sS}, 1
        s_and_b32 s6, s{sS}, 7
        s_lshl_b32 s7, s6, 10
        s_add_u32 s7, s7, s{sB}
        v_add_u32 v{vXr}, s7, v{vSt}
        s_lshl_b32 s6, s6, 1
        s_lshl_b32 s{sM}, 0x30003, s6
        v_mov_b32 v{vV}, s{sNeed}''')
        for cl in range(8): a(kb(cl, cl, T0))
        lds_wait(a, 0, 1, sNeed, t, 42)
        T(0)
        rest = [(cl, T_) for T_ in range(T0+1, 8) for cl in range(8)]
        if cfg.get('x_c'): rest = []
        qd = []
        def ds(x, tag): a(x); qd.append(tag)
        def need(tag):
            last = max([k for k, x in enumerate(qd) if x == tag], default=-1)
            if last >= 0:
                a(f's_waitcnt lgkmcnt({len(qd)-1-last})'); del qd[:last+1]
        def ur(cl):
            r = RW + 6*(cl % 4)
            ds(f'ds_read2_b32 {vr(r,2)}, v{UA+cl} offset0:0 offset1:1', f'u{cl}')
            ds(f'ds_read2_b32 {vr(r+2,2)}, v{UA+cl} offset0:2 offset1:3', f'u{cl}')
            ds(f'ds_read_b32 v{r+4}, v{UA+cl} offset:16', f'u{cl}')
        for cl in range(4): ur(cl)
        for cl in range(8):
            need(f'u{cl}')
            r = RW + 6*(cl % 4)
            for d in range(4): a(f'v_alignbyte_b32 v{AF+4*cl+d}, v{r+d+1}, v{r+d}, v{vSh}')
            if cl < 4: ur(cl + 4)
            if cl == 4: ds(f'ds_read_b64 {vr(UU,2)}, v{vUr}', 'x'); ds(f'ds_read_b64 {vr(X2,2)}, v{vXr}', 'x')
            if cl > 0:
                a(mf(cl-1, cl-1, T0))
        a(mf(7, 7, T0))
        need('x')
        for cl in range(min(8, len(rest))): a(kb(cl, *rest[cl]))
        a(f's_mov_b32 exec_lo, s{sM}\ns_mov_b32 exec_hi, s{sM}')
        for cl in range(8): a(f'ds_write_b128 v{vTw}, {ar(32*cl+4*T0,4)} offset:{cl*128}')
        a(f's_mov_b64 exec, -1\nds_read_b128 {vr(Y,4)}, v{vTr}\nds_write_b32 v14, v{vV} offset:8')
        U4, D4, X4 = t, t+4, t+8
        for h in range(2): unpack(a, U4+2*h, U4+2*h+1, UU+h)
        for h in range(2): unpack(a, X4+2*h, X4+2*h+1, X2+h)
        for r in range(4): a(f'v_mul_f32 v{D4+r}, v{U4+r}, v{vD}')
        for h in range(2): a(f'v_cvt_pk_bf16_f32 v{UU+h}, v{D4+2*h}, v{D4+2*h+1}')
        for h in range(2): unpack(a, D4+2*h, D4+2*h+1, UU+h)
        a('s_waitcnt lgkmcnt(1)')
        for r in range(4): a(f'v_fmac_f32 v{Y+r}, v{U4+r}, v{vK0}')
        def rnd(R):
            for h in range(2): a(f'v_cvt_pk_bf16_f32 v{UU+h}, v{R+2*h}, v{R+2*h+1}')
        rnd(Y)
        for add in (D4, X4):
            for h in range(2): unpack(a, Y+2*h, Y+2*h+1, UU+h)
            for r in range(4): a(f'v_add_f32 v{Y+r}, v{Y+r}, v{add+r}')
            rnd(Y)
        a(f'buffer_store_dwordx2 {vr(UU,2)}, v{vSt}, {WS}, s{sST} offen sc1')
        if cfg.get('x_cv'): rest = []
        T(1)
        for i, (cl, T_) in enumerate(rest):
            if i >= 8: a(f's_waitcnt lgkmcnt({min(7, len(rest)-1-i)})')
            a(mf(i, cl, T_))
            if i + 8 < len(rest): a(kb(i, *rest[i+8]))
        T(2)
        for cl in range(8): a(f'v_add_u32 v{UA+cl}, 64, v{UA+cl}')
        a(f'''v_add_u32 v{vKa}, 64, v{vKa}
        v_add_u32 v{vUr}, 64, v{vUr}
        s_add_u32 s{sST}, s{sST}, 0x8000
        s_waitcnt vmcnt(0)
        s_mov_b64 exec, 1
        buffer_store_dword v{vV}, v{vZ}, {WS}, s{sFOP} offen sc1
        s_mov_b64 exec, -1
        ds_write_b32 v14, v{vV} offset:16''')
        T(3)
        if tm: tdump(a, 4, 100)
        a(f's_add_u32 s{sS}, s{sS}, 1\ns_and_b32 s6, s{sS}, 7\ns_cbranch_scc1 {Lp}')
    a('s_waitcnt vmcnt(0)\ns_endpgm')
    vRa, vFa, vSa, vUw, vXw, vO, vLk = 4, 5, 6, 7, 8, 9, 10
    PT, RS_, X_, XP, S1, G = 16, 32, 40, 48, 52, 64
    a('L_c_res:')
    srd(a, 16, P_OUT, 2048*1024)
    a(f'''s_and_b32 s6, s{sW}, 1
    s_mul_i32 s{sRes0}, s6, {XT[1]-XT[0]:#x}
    s_mul_i32 s{sOP0}, s6, {OP[1]-OP[0]:#x}
    s_lshl_b32 s7, s{sR}, 10
    s_add_u32 s{sRes0}, s{sRes0}, s7
    s_add_u32 s{sRes0}, s{sRes0}, {XT[0]:#x}
    s_add_u32 s{sOP0}, s{sOP0}, s7
    s_add_u32 s{sOP0}, s{sOP0}, {OP[0]:#x}
    s_lshl_b32 s6, s{sR}, 3
    s_add_u32 s{sFOP}, s6, {FX3 + 256:#x}
    s_lshl_b32 s{sO}, s{sR}, 5
    v_bfe_u32 v16, v{vL16}, 4, 5
    v_lshrrev_b32 v17, 9, v{vL16}
    v_lshlrev_b32 v18, 1, v16
    v_lshl_or_b32 v{vRa}, v17, 8, v18
    v_add_u32 v{vXw}, {L_X2}, v{vRa}
    v_mul_u32_u24 v19, {4*UROW}, v17
    v_add_u32 v19, v19, v18
    v_add_u32 v{vUw}, {L_U + 32}, v19
    v_bfe_u32 v{vFa}, v{vL16}, 2, 3
    v_bfe_u32 v{vSa}, v{vL16}, 8, 1
    v_lshlrev_b32 v{vSa}, 3, v{vSa}
    v_and_b32 v19, 0xf0, v{vL16}
    v_or_b32 v{vSa}, v19, v{vSa}
    v_lshlrev_b32 v19, 10, v16
    v_lshl_or_b32 v{vO}, v17, 3, v19
    s_mov_b32 s{sNx}, 0
    s_mov_b32 s{sGo}, 0
    s_mov_b32 s23, 0
    s_mov_b32 s{sSel}, 0x3f80
    s_mov_b32 s{sSel+1}, 0x3f800000
    s_mov_b32 s{sSel+2}, 0x3f803f80
    v_bfe_u32 v{vLk}, v{vL16}, 4, 2
    v_lshlrev_b32 v{vLk}, 15, v{vLk}''')
    for v in range(8): a(f'v_mov_b32 v{RS_+v}, 0')
    def gate(both, bump=1):
        La = a.lab('ga'); Lb = a.lab('gb'); L = a.lab('gl')
        if both:
            a(f'''s_cmp_eq_u32 s{sW}, 2
            s_cbranch_scc1 {La}
            s_mov_b32 s47, 0''')
            if cfg.get('c_edge', 0): a(f'''ds_read_b32 v{S1}, v{vF} offset:24
            s_waitcnt lgkmcnt(0)
            v_readfirstlane_b32 s6, v{S1}
            s_min_i32 s{sGo}, s6, 0x7ffffffe''')
            a(f'''{L}:
            ds_read_b32 v{S1}, v{vF} offset:24
            s_waitcnt lgkmcnt(0)
            v_readfirstlane_b32 s6, v{S1}
            s_cmp_gt_i32 s6, s{sGo}
            s_cbranch_scc1 {Lb}''')
            spin_check(a, 47, 47, L)
        if not bump:
            a(f'{Lb}:\ns_min_i32 s{sGo}, s6, 0x7ffffffe\n{La}:')
            return
        a(f'''{La}:
        s_add_u32 s6, s{sGo}, 1
        v_mov_b32 v{S1}, {0 if cfg.get('x_r5') else 's6'}
        ds_write_b32 v{vF}, v{S1} offset:24
        {Lb}:
        s_min_i32 s{sGo}, s6, 0x7ffffffe''')
    def parts():
        for q in range(4): a(f's_add_u32 s6, s{sPa}, {q*32768}\nbuffer_load_dwordx4 {vr(PT+4*q,4)}, v{vL16}, {WS}, s6 offen sc1')
    def fetch(both):
        gate(both)
        for v in range(8): a(f'buffer_load_short_d16_hi v{RS_+v}, v{vRa}, {WS}, s{sRes0} offen offset:{(8*(v//4) + v % 4)*64}')
        a(f's_and_b32 s6, s{sNx}, 3\ns_lshl_b32 s6, s6, 17\ns_add_u32 s{sPa}, s{sOP0}, s6\ns_lshr_b32 s6, s{sNx}, 2\ns_andn2_b32 s{sTP}, 1, s6')
        parts()
        a(f's_add_u32 s{sRes0}, s{sRes0}, 0x8000\ns_add_u32 s{sNx}, s{sNx}, 1')
    a(f's_cmp_eq_u32 s{sW}, 2\ns_cbranch_scc0 L_c_r5\nL_c_rf:')
    fetch(1)
    pipe = cfg.get('c_pipe', 2)
    sAd, sT2, sA2, sN1, XQ = 23, 24, 25, 26, 96
    def ptags(): a(f'''v_bitop3_b32 v{S1}, v{PT}, v{PT+4}, s{sTP} bitop3:0x7e
    v_bitop3_b32 v{S1+1}, v{PT+8}, v{PT+12}, s{sTP} bitop3:0x7e
    v_bitop3_b32 v{S1}, v{S1}, v{S1+1}, 1 bitop3:0xa8
    v_cmp_ne_u32 vcc, 0, v{S1}''')
    a('L_c_rloop:\ns_mov_b32 s7, 0\nL_c_rp:\ns_waitcnt vmcnt(0)')
    ptags()
    a('s_cbranch_vccz L_c_rok')
    gate(1, cfg.get('c_bump', 0))
    if cfg.get('c_look'):
        a(f's_mov_b32 s47, 0\nL_c_lk:\ns_mov_b64 exec, 15\nbuffer_load_dword v{S1}, v{vLk}, {WS}, s{sPa} offen offset:1008 sc1\ns_waitcnt vmcnt(0)')
        a(f'v_bitop3_b32 v{S1}, v{S1}, s{sTP}, 1 bitop3:0x28\nv_cmp_ne_u32 vcc, 0, v{S1}\ns_mov_b64 exec, -1\ns_cbranch_vccz L_c_lko')
        spin_check(a, 47, 43, 'L_c_lk')
        a('L_c_lko:')
    parts()
    spin_check(a, 7, 43, 'L_c_rp')
    a('L_c_rok:')
    T(0)
    dot = lambda d, x, hi, c: a(f'v_dot2_f32_bf16 v{d}, v{x}, s{sSel+hi}, {c}')
    def resid(XP):
        for q in range(4):
            for v in range(8): dot(X_+v, PT+4*q+v//2, v % 2, f'v{X_+v}' if q else 0)
        for h in range(4): a(f'v_cvt_pk_bf16_f32 v{XP+h}, v{X_+2*h}, v{X_+2*h+1}')
        for v in range(8): dot(X_+v, XP+v//2, v % 2, f'v{RS_+v}')
        for h in range(4): a(f'v_cvt_pk_bf16_f32 v{XP+h}, v{X_+2*h}, v{X_+2*h+1}')
    resid(XP)
    T(1)
    a(f'''s_cmp_eq_u32 s{sW}, 2
    s_cbranch_scc1 L_c_ln
    buffer_store_dwordx2 {vr(XP,2)}, v{vO}, s[16:19], s{sO} offen {cfg.get('c_out', '')}
    buffer_store_dwordx2 {vr(XP+2,2)}, v{vO}, s[16:19], s{sO} offen offset:16 {cfg.get('c_out', '')}
    s_add_u32 s{sO}, s{sO}, 0x8000
    v_mov_b32 v{S1}, s{sNx}
    s_mov_b64 exec, 3
    buffer_store_dword v{S1}, v{vFa}, {WS}, s{sFOP} offen sc1
    s_mov_b64 exec, -1''')
    if tm: tdump(a, 4, 100)
    a(f'''s_add_u32 s{sS}, s{sS}, 1
    s_cmp_eq_u32 s{sS}, 64
    s_cbranch_scc1 L_c_rend
    L_c_r5:
    s_add_u32 s{sNeed}, s{sS}, 1''')
    lds_wait(a, 16, 2, sNeed, S1, 46)
    a('s_branch L_c_rf\nL_c_ln:')
    cf = cfg.get('c_f', 0)
    def nxt(last=''):
        Lf = a.lab('cf'); Ln = a.lab('cnf')
        a(f's_cmp_eq_u32 s{sS}, 63\ns_cbranch_scc0 {Lf}\nv_mov_b32 v{S1}, 0x7fffffff\nds_write_b32 v{vF}, v{S1} offset:24\n{last}s_branch {Ln}\n{Lf}:')
        fetch(0)
        a(f'{Ln}:')
    if cf == 0: nxt()
    def halves(): a(f'''v_mov_b32 v{S1+2}, v{S1}
    v_mov_b32 v{S1+3}, v{S1+1}
    v_permlane32_swap_b32 v{S1}, v{S1+2}
    v_permlane32_swap_b32 v{S1+1}, v{S1+3}
    v_add_f32 v{S1}, v{S1}, v{S1+2}
    v_add_f32 v{S1+1}, v{S1+1}, v{S1+3}''')
    def stats(XP, sS, sTag, sA, w=''):
        Ln = a.lab('cnl')
        for h in range(4):
            dot(S1, XP+h, 2, f'v{S1}' if h else 0)
            a(f'v_dot2_f32_bf16 v{S1+1}, v{XP+h}, v{XP+h}, {f"v{S1+1}" if h else 0}')
        a(f'''s_lshr_b32 s6, s{sS}, 2
        s_andn2_b32 s{sTag}, 1, s6
        s_and_b32 s6, s{sS}, 3
        s_lshl_b32 s6, s6, 13
        s_add_u32 s{sA}, s6, {ST2:#x}
        s_lshl_b32 s6, s{sR}, 8
        s_add_u32 s6, s6, s{sA}''')
        halves()
        a(f'''v_bfi_b32 v{S1+1}, 1, s{sTag}, v{S1+1}
        s_mov_b32 exec_hi, 0
        buffer_store_dwordx2 {vr(S1,2)}, v{vSa}, {WS}, s6 offen
        s_cmp_lt_u32 s{sS}, 62
        s_cbranch_scc1 {Ln}
        buffer_store_dwordx2 {vr(S1,2)}, v{vSa}, {WS}, s6 offen sc1
        {w}{Ln}:
        s_mov_b32 exec_hi, -1''')
    stats(XP, sS, sTag, sA)
    a(f's_add_u32 s{sB}, s{sA}, 4096')
    g1 = lambda i: f'buffer_load_dwordx4 {vr(G+4*i,4)}, v{vL16}, {WS}, s{sA if i < 4 else sB} offen offset:{(i%4)*1024} sc1'
    T(4)
    if cf == 3: nxt()
    if not cfg.get('c_late', 1):
        for i in range(8): a(g1(i))
    def wr16(addr, pitch, XP=XP):
        for v in range(8):
            a(f'ds_write_b16{"_d16_hi" if v % 2 else ""} v{addr}, v{XP+v//2} offset:{(8*(v//4) + v % 4)*pitch}')
    def x2ring(XP, sS):
        a(f's_sub_u32 s{sNeed}, s{sS}, 7')
        lds_wait(a, 8, 2, sNeed, S1, 44)
        a(f's_and_b32 s6, s{sS}, 7\ns_lshl_b32 s6, s6, 10\nv_add_u32 v{S1}, s6, v{vXw}')
        wr16(S1, 64, XP)
    x2ring(XP, sS)
    if cfg.get('c_late', 1):
        for i in range(8): a(g1(i))
    T(6)
    if cf == 4:
        nxt('s_waitcnt vmcnt(0)\n')
        a('s_mov_b32 s7, 0\ns_waitcnt vmcnt(12)')
        T(5)
        a('s_branch L_c_g1')
    if tm: a('s_waitcnt vmcnt(0)')
    T(5)
    GT = 56
    a('s_mov_b32 s7, 0\nL_c_g:\ns_waitcnt vmcnt(0)\nL_c_g1:')
    for i in range(8): a(f'v_bitop3_b32 v{GT+i}, v{G+4*i+1}, v{G+4*i+3}, s{sTag} bitop3:0x7e')
    a(f'''v_or3_b32 v{S1}, v{GT}, v{GT+1}, v{GT+2}
    v_or3_b32 v{S1+1}, v{GT+3}, v{GT+4}, v{GT+5}
    v_or3_b32 v{S1}, v{S1}, v{GT+6}, v{GT+7}
    v_bitop3_b32 v{S1}, v{S1}, v{S1+1}, 1 bitop3:0xa8
    v_cmp_ne_u32 vcc, 0, v{S1}
    s_cbranch_vccz L_c_gok0''')
    if cfg.get('c_sel', 1): again(a, [GT+i for i in range(8)], g1, 48)
    else:
        for i in range(8): a(g1(i))
    if pipe:
        a(f's_cmp_lg_u32 s{sAd}, 0\ns_cbranch_scc1 L_c_na\ns_cmp_eq_u32 s{sS}, 63\ns_cbranch_scc1 L_c_na\ns_waitcnt vmcnt(8)')
        ptags()
        if pipe == 2:
            a('s_cbranch_vccz L_c_pa\ns_cmp_lg_u32 s7, 0\ns_cbranch_scc1 L_c_na')
            parts()
            a('s_mov_b32 s7, 1\ns_waitcnt vmcnt(4)\ns_branch L_c_g1\nL_c_pa:')
        if pipe == 3:
            a('s_cbranch_vccz L_c_pa')
            parts()
            timeout_fix(a, 7, 45, 'L_c_g4')
            a('L_c_g4:\ns_waitcnt vmcnt(4)\ns_branch L_c_g1\nL_c_pa:')
        a(f's_cbranch_vccnz L_c_na\ns_add_u32 s{sN1}, s{sS}, 1\ns_mov_b32 s{sAd}, 1')
        resid(XQ)
        stats(XQ, sN1, sT2, sA2, 's_waitcnt vmcnt(1)\n')
        x2ring(XQ, sN1)
        a('s_waitcnt vmcnt(1)\ns_branch L_c_g1\nL_c_pre:')
        a(f's_mov_b32 s{sAd}, 0\ns_mov_b32 s{sTag}, s{sT2}\ns_mov_b32 s{sA}, s{sA2}\ns_add_u32 s{sB}, s{sA2}, 4096\ns_mov_b32 s7, 0')
        for i in range(8): a(g1(i))
        for h in range(4): a(f'v_mov_b32 v{XP+h}, v{XQ+h}')
        nxt('s_waitcnt vmcnt(0)\n')
        a('s_waitcnt vmcnt(12)\ns_branch L_c_g1\nL_c_na:')
    timeout_fix(a, 7, 45, 'L_c_g')
    R0 = G
    a('L_c_gok0:')
    for i in range(0, 16, 2): a(f'v_pk_add_f32 {vr(R0+i,2)}, {vr(G+i,2)}, {vr(G+16+i,2)}')
    a('L_c_gok:')
    T(2)
    if tm: a('s_mov_b32 s84, s7')
    if cf == 1: nxt()
    for n in (8, 4):
        for i in range(0, n, 2): a(f'v_pk_add_f32 {vr(R0+i,2)}, {vr(R0+i,2)}, {vr(R0+n+i,2)}')
    a(f'''v_permlane16_swap_b32 v{R0}, v{R0+2}
    v_permlane16_swap_b32 v{R0+1}, v{R0+3}
    v_pk_add_f32 {vr(S1,2)}, {vr(R0,2)}, {vr(R0+2,2)}''')
    halves()
    ln_final(a, S1, S1+1, S1+2)
    for v in range(8): dot(X_+v, XP+v//2, v % 2, f'v{S1} neg_lo:[0,0,1]')
    for h in range(4): a(f'v_cvt_pk_bf16_f32 v{XP+h}, v{X_+2*h}, v{X_+2*h+1}')
    for h in range(4): unpack(a, X_+2*h, X_+2*h+1, XP+h)
    for v in range(8): a(f'v_mul_f32 v{X_+v}, v{X_+v}, v{S1+1}')
    for h in range(4): a(f'v_cvt_pk_bf16_f32 v{XP+h}, v{X_+2*h}, v{X_+2*h+1}')
    a(f's_add_u32 s6, s{sS}, 1\nv_mov_b32 v{S1}, s6')
    wr16(vUw, UROW)
    a(f'ds_write_b32 v{vF}, v{S1}\nv_add_u32 v{vUw}, 64, v{vUw}')
    if cf == 2: nxt()
    T(3)
    if tm: tdump(a, 8, 100)
    a(f's_add_u32 s{sS}, s{sS}, 1')
    if pipe: a(f's_cmp_lg_u32 s{sAd}, 0\ns_cbranch_scc1 L_c_pre')
    a(f'''s_cmp_lt_u32 s{sS}, 64
    s_cbranch_scc1 L_c_rloop
    L_c_rend:''')
    mark(a, cfg, 8, 16)
    a('s_waitcnt vmcnt(0)\ns_endpgm')
```

```python
from common import *
from p import coop_weights, vL16
vRd, vFa, vZ, vFl, vBp, vBa = 1, 2, 3, 4, 5, 6
ACC, BF, PK = 16, 32, 48
sS, sLY, sKQ, sNQ, sOI0, sOP0, sFO0, sFOP, sFO, sNeed, sM0, sPend, sA, sB = range(32, 46)

def o(a, cfg):
    tm = cfg.get('o_time', 0)
    def T(slot):
        if tm: a(f's_mem{"real" if cfg.get("rt") else ""}time s[{70+2*slot}:{71+2*slot}]')
    a('L_o:')
    a(f'''s_lshr_b32 s{sLY}, s{sR}, 4
    s_bfe_u32 s{sKQ}, s{sR}, 0x20002
    s_and_b32 s{sNQ}, s{sR}, 3
    s_mul_i32 s{sOI0}, s{sLY}, {OI[1]-OI[0]:#x}
    s_add_u32 s{sOI0}, s{sOI0}, {OI[0]:#x}
    s_lshl_b32 s6, s{sKQ}, 3
    s_lshl_b32 s7, s{sW}, 1
    s_add_u32 s6, s6, s7
    s_lshl_b32 s7, s6, 13
    s_add_u32 s{sOI0}, s{sOI0}, s7
    s_lshl_b32 s6, s6, 7
    s_lshl_b32 s7, s{sLY}, 13
    s_add_u32 s6, s6, s7
    s_add_u32 s{sFO0}, s6, {FO:#x}
    s_mul_i32 s{sOP0}, s{sLY}, {OP[1]-OP[0]:#x}
    s_add_u32 s{sOP0}, s{sOP0}, {OP[0]:#x}
    s_lshl_b32 s6, s{sKQ}, 15
    s_add_u32 s{sOP0}, s{sOP0}, s6
    s_lshl_b32 s6, s{sNQ}, 13
    s_add_u32 s{sOP0}, s{sOP0}, s6
    s_lshl_b32 s6, s{sW}, 11
    s_add_u32 s{sOP0}, s{sOP0}, s6
    s_lshl_b32 s6, s{sNQ}, 6
    s_lshl_b32 s7, s{sW}, 4
    s_add_u32 s6, s6, s7
    s_lshl_b32 s7, s{sLY}, 8
    s_add_u32 s6, s6, s7
    s_add_u32 s{sFOP}, s6, {FX3:#x}
    s_lshl_b32 s{sM0}, s{sW}, 14''')
    if cfg.get('integ'): a('s_branch L_pro\nL_o2:')
    a(f'v_lshlrev_b32 v{vL16}, 4, v0')
    srd(a, 16, P_WO, 4*MB_)
    def goff(c): a(f's_lshl_b32 s61, s{sKQ}, 20\ns_lshl_b32 s62, s{sNQ}, 8\ns_add_u32 s61, s61, s62\ns_add_u32 s61, s61, {c << 17}')
    coop_weights(a, 8, lambda c, j: ar(32*c + 2*j, 2), lambda c: 16, goff,
                 lambda n: None if cfg.get('integ') else signal_done(a, f'vmcnt({n})', 18), 100, 104, 1024,
                 2, lambda j: 32*(j//4) + 8*((j//2) % 2) + 16*(j % 2))
    a(f'''v_mov_b32 v{vZ}, 0
    v_mov_b32 v{vRd}, v{vL16}
    v_bfe_u32 v{vFa}, v{vL16}, 6, 1
    v_lshlrev_b32 v{vFa}, 7, v{vFa}
    v_bfe_u32 v{vFl}, v{vL16}, 2, 4
    v_or_b32 v{vFa}, v{vFa}, v{vFl}
    v_bfe_u32 v{vBa}, v{vL16}, 2, 4
    v_and_b32 v{vBa}, 12, v{vBa}''')
    mark(a, cfg, 2, ACC)
    wait_done(a, ACC, ACC+1, 30)
    a(f's_mov_b32 s{sS}, 0\ns_mov_b32 s{sNeed}, 1\ns_mov_b32 s{sFO}, s{sFO0}')
    def dmal():
        l = [f's_sub_u32 s6, s{sNeed}, 1\ns_lshl_b32 s6, s6, 18\ns_add_u32 s{sA}, s{sOI0}, s6']
        for q in range(4):
            for k in range(4):
                l.append((f's_add_u32 m0, s{sM0}, {q*4096}\ns_add_u32 s{sB}, s{sA}, {q*4096}\n' if k == 0 else '') +
                         f'buffer_load_dwordx4 v{vL16}, {WS}, s{sB} offen offset:{k*1024} lds')
        return l + [f's_xor_b32 s{sM0}, s{sM0}, 0x10000']
    def dma():
        for x in dmal(): a(x)
    if cfg.get('warm', 0) & 2: warm(a, cfg, sLY, ACC, [(OP, 13, 0)])
    if cfg.get('cnt'): a('s_mov_b32 s99, 0')
    a('L_o_wait:')
    poll_ge(a, vFa, sFO, sNeed, vFl, 31, 1)
    a('L_o_go:')
    dma()
    a(f'''s_mov_b32 s{sPend}, 0
    s_waitcnt vmcnt(8)
    L_o_loop:
    s_barrier''')
    T(0)
    order = [8*h + k for h in (0, 2, 4, 6, 1, 3, 5, 7) for k in range(8)]
    def rd(i): a(f'ds_read_b128 {vr(BF+4*(i%4),4)}, v{vRd} offset:{order[i]*1024}')
    def half(lo):
        for i in range(lo, lo+3): rd(i)
        if lo == 0:
            a(f'''s_add_u32 s{sNeed}, s{sS}, 2
            s_xor_b32 s{sFO}, s{sFO}, 0x1000
            buffer_load_dword v{vFl}, v{vFa}, {WS}, s{sFO} offen sc1
            buffer_load_dword v{vBp}, v{vBa}, {WS}, s{sFOP} offen sc1''')
        else:
            L = a.lab('on')
            a(f'''s_mov_b32 s{sPend}, 0
            s_cmp_eq_u32 s{sS}, 63
            s_cbranch_scc1 {L}
            v_cmp_gt_u32 vcc, s{sNeed}, v{vFl}
            s_cbranch_vccnz {L}
            s_mov_b32 s{sPend}, 1''')
            mm(lo, dmal())
            a(f's_branch L_o_h2\n{L}:')
        mm(lo, [], l2 if lo else -1)
    l2 = cfg.get('o_l2', 4)
    def mm(lo, extra, look=-1):
        for i in range(lo, lo+32):
            a(f's_waitcnt lgkmcnt({min(2, lo+31-i)})')
            if i % 4 == 0 or not cfg.get('x_o'): a(f'v_mfma_f32_32x32x16_bf16 {vr(ACC,16)}, {ar(4*order[i],4)}, {vr(BF+4*(i%4),4)}, {"0" if i == 0 else vr(ACC,16)}')
            if i + 3 < lo + 32: rd(i+3)
            if i - lo == look: a(f'buffer_load_dword v{vFl}, v{vFa}, {WS}, s{sFO} offen sc1')
            if extra and (i % 2 == 0 or i - lo < 4): a(extra.pop(0))
        assert not extra
    half(0)
    T(1)
    a('s_waitcnt vmcnt(0)\ns_barrier')
    T(2)
    half(32)
    a('L_o_h2:')
    T(3)
    a(f'''s_sub_u32 s{sB}, s{sS}, 3
    v_cmp_gt_i32 vcc, s{sB}, v{vBp}
    s_cbranch_vccz L_o_free
    s_mov_b32 s7, 0
    {'s_add_u32 s99, s99, 1' if cfg.get('cnt') else ''}
    L_o_bp:
    buffer_load_dword v{vBp}, v{vBa}, {WS}, s{sFOP} offen sc1
    s_waitcnt vmcnt(0)
    v_cmp_gt_i32 vcc, s{sB}, v{vBp}
    s_cbranch_vccz L_o_free''')
    spin_check(a, 7, 32, 'L_o_bp')
    a(f'''L_o_free:
    s_and_b32 s6, s{sS}, 3
    s_lshl_b32 s6, s6, 17
    s_add_u32 s{sA}, s{sOP0}, s6
    s_lshr_b32 s6, s{sS}, 2
    s_andn2_b32 s{sB}, 1, s6
    s_add_u32 s{sS}, s{sS}, 1
    v_xor_b32 v{vRd}, 0x10000, v{vRd}''')
    for h in range(2):
        for r in range(4): a(f'v_cvt_pk_bf16_f32 v{PK+4*h+r}, v{ACC+8*h+2*r}, v{ACC+8*h+2*r+1}')
        a(f'v_bfi_b32 v{PK+4*h}, 1, s{sB}, v{PK+4*h}')
        a(f'buffer_store_dwordx4 {vr(PK+4*h,4)}, v{vL16}, {WS}, s{sA} offen offset:{h*1024} sc1')
    if tm:
        a(f'''s_waitcnt lgkmcnt(0)
        s_lshl_b32 s6, s{sX}, 5
        s_add_u32 s6, s6, s{sR}
        s_lshl_b32 s6, s6, 2
        s_add_u32 s6, s6, s{sW}
        s_lshl_b32 s6, s6, 6
        s_add_u32 s6, s6, s{sS}
        s_sub_u32 s6, s6, 1
        s_lshl_b32 s6, s6, 6
        s_add_u32 s6, s6, {160*MB_}''')
        for k in range(4): a(f'v_mov_b32 v{60+k}, s{70+2*k}')
        a(f's_mov_b64 exec, 1\nbuffer_store_dwordx4 v[60:63], v{vZ}, {WS}, s6 offen\ns_mov_b64 exec, -1')
    a(f'''s_cmp_eq_u32 s{sPend}, 0
    s_waitcnt vmcnt({(3 if tm else 2) + cfg.get('o_pw', 8)})
    s_cbranch_scc0 L_o_loop
    s_cmp_eq_u32 s{sS}, 64
    s_cbranch_scc1 L_o_end''')
    if l2 >= 0: a(f's_waitcnt vmcnt({3 if tm else 2})\nv_cmp_gt_u32 vcc, s{sNeed}, v{vFl}\ns_cbranch_vccz L_o_go')
    a('s_branch L_o_wait\nL_o_end:')
    if cfg.get('cnt'): mark(a, cfg, 10, 16, 99)
    a('''s_waitcnt vmcnt(0)
    s_endpgm''')
```

```python
from common import *
L_X, L_PK, PKX, L_T, L_RS, L_SP = 0, 0x8000, 0x18000, 0xE000, 0xF200, 0xF400
GQ = 1088
vL16, vXr, vKx, vQx, vVx, vTw, vTr, vMv, vRs, vRw, vONE, vPM, vCS, vMN, vMK = 0, 1, 2, 3, 4, 5, 6, 7, 8, 9, 10, 12, 16, 20, 24
AQ, AK, AV, XF, ST, RR, vPw, vOs, vL4, vFX = 32, 48, 64, 80, 92, 96, 112, 113, 114, 115
KMD, vSr, vSp = 116, 14, 15
WV = 128
sI, sSeg, sC, sLY, sH, sRep = 32, 33, 34, 35, 36, 37
sXT0, sKV0, sKM0, sOI0, sFKV, sFO, sFX, sXT, sKV, sKM, sOI, sNeed, sTag, sVal, sPre, sM0 = range(38, 54)

def wreg(m, r, n): return ar(128*m + r, n) if m < 2 else vr(WV + r, n)

def coop_weights(a, nch, dst, srdof, goff, done_cb, vG, vR, rowb, hish=3, rowof=lambda j: 16*(j//2) + 4*(j % 2), post=lambda c: None):
    a(f'''v_lshrrev_b32 v{vR}, 4, v{vL16}
    v_lshrrev_b32 v{vG}, 8, v{vL16}
    v_lshlrev_b32 v{vR+1}, 2, v{vG}
    v_and_b32 v{vR}, 15, v{vR}
    v_xor_b32 v{vR}, v{vR}, v{vR+1}
    v_mul_u32_u24 v{vG}, {rowb}, v{vG}
    v_lshl_add_u32 v{vG}, v{vR}, 4, v{vG}''')
    a(f'''v_bfe_u32 v{vR}, v{vL16}, 6, 2
    v_lshlrev_b32 v{vR+1}, 2, v{vR}
    v_bfe_u32 v{vR+2}, v{vL16}, 8, 1
    v_lshlrev_b32 v{vR+2}, 1, v{vR+2}
    v_bfe_u32 v{vR+3}, v{vL16}, 5, 1
    v_or_b32 v{vR+2}, v{vR+2}, v{vR+3}
    s_lshl_b32 s6, s{sW}, 2
    v_or_b32 v{vR+2}, s6, v{vR+2}
    v_xor_b32 v{vR+2}, v{vR+2}, v{vR+1}
    v_lshlrev_b32 v{vR+2}, 4, v{vR+2}
    v_bfe_u32 v{vR+3}, v{vL16}, 4, 1
    v_lshl_or_b32 v{vR+2}, v{vR+3}, 3, v{vR+2}
    v_bfe_u32 v{vR+3}, v{vL16}, 9, 1
    v_lshl_or_b32 v{vR}, v{vR+3}, {hish}, v{vR}
    v_lshl_or_b32 v{vR}, v{vR}, 8, v{vR+2}
    v_add_u32 v{vR+1}, 0x10000, v{vR}
    s_lshl_b32 s60, s{sW}, 13
    s_mul_i32 s63, s{sW}, {32*rowb}''')
    def issue(c):
        goff(c)
        a('s_add_u32 s61, s61, s63')
        for i in range(8):
            a(f'''s_add_u32 m0, s60, {(c % 4)*32768 + i*1024}
            s_add_u32 s62, s61, {i*4*rowb}
            buffer_load_dwordx4 v{vG}, s[{srdof(c)}:{srdof(c)+3}], s62 offen lds''')
    done_cb(0)
    for c in range(3): issue(c)
    for c in range(nch):
        a(f's_waitcnt vmcnt({8*min(2, nch-1-c)})\ns_barrier')
        if c + 3 < nch: issue(c + 3)
        b = c % 4
        for j in range(16):
            a(f'ds_read_b64_tr_b16 {dst(c, j)}, v{vR + b//2} offset:{(b % 2)*32768 + rowof(j)*256}')
        a('s_waitcnt lgkmcnt(0)')
        post(c)
    a('s_barrier')

def p(a, cfg):
    ring = cfg.get('ring', 3); tm = cfg.get('p_time', 0)
    def T(slot):
        if tm: a(f's_mem{"real" if cfg.get("rt") else ""}time s[{70+2*slot}:{71+2*slot}]')
    a('L_p:')
    def sel(dst, pair): a(f's_mul_i32 s{dst}, s{sLY}, {pair[1]-pair[0]:#x}\ns_add_u32 s{dst}, s{dst}, {pair[0]:#x}')
    a(f'''s_sub_u32 s{sLY}, s{sX}, 2
    s_lshr_b32 s{sLY}, s{sLY}, 1
    s_and_b32 s6, s{sX}, 1
    s_lshl_b32 s6, s6, 4
    s_and_b32 s{sH}, s{sR}, 15
    s_add_u32 s{sH}, s{sH}, s6
    s_lshr_b32 s{sRep}, s{sR}, 4''')
    sel(sXT0, XT if not cfg.get('x_xt') else (XT[0], XT[0])); sel(sKV0, KVX); sel(sKM0, KVM); sel(sOI0, OI); sel(sFX, (FX1, FX3))
    a(f'''s_lshl_b32 s6, s{sW}, 13
    s_add_u32 s{sXT0}, s{sXT0}, s6
    s_add_u32 s{sM0}, s6, {L_X}
    s_lshl_b32 s6, s{sH}, 14
    s_lshl_b32 s7, s{sW}, 11
    s_add_u32 s{sKV0}, s{sKV0}, s6
    s_add_u32 s{sKV0}, s{sKV0}, s7
    s_lshl_b32 s6, s{sH}, 12
    s_lshl_b32 s7, s{sW}, 10
    s_add_u32 s{sKM0}, s{sKM0}, s6
    s_add_u32 s{sKM0}, s{sKM0}, s7
    s_lshl_b32 s6, s{sH}, 13
    s_lshr_b32 s7, s{sW}, 1
    s_lshl_b32 s7, s7, 12
    s_add_u32 s{sOI0}, s{sOI0}, s6
    s_add_u32 s{sOI0}, s{sOI0}, s7
    s_lshl_b32 s6, s{sLY}, 13
    s_lshl_b32 s7, s{sRep}, 12
    s_add_u32 s6, s6, s7
    s_lshl_b32 s7, s{sH}, 7
    s_add_u32 s6, s6, s7
    s_lshl_b32 s7, s{sW}, 2
    s_add_u32 s6, s6, s7
    s_add_u32 s{sFO}, s6, {FO:#x}
    s_mov_b32 s{sC}, 0x3e0293ee
    v_mov_b32 v{vPM}, 0
    v_mov_b32 v{vPM+1}, 0
    v_mov_b32 v{vPM+2}, 0
    v_mov_b32 v{vPM+3}, 0
    v_lshlrev_b32 v16, 4, v0
    s_lshl_b32 s6, s{sRep}, 19
    s_add_u32 s6, s6, s{sKV0}
    s_mov_b64 exec, 1
    buffer_store_dword v{vPM}, v{vPM}, {WS}, s{sFO} offen sc1
    s_mov_b64 exec, -1''')
    for k in range(4):
        for h in range(2): a(f'buffer_store_dwordx4 {vr(vPM,4)}, v16, {WS}, s6 offen offset:{h*1024} sc1')
        if k < 3: a(f's_add_u32 s6, s6, {0x2000 if k != 1 else (2 << 19) - 0x2000}')
    if cfg.get('integ'):
        a(f's_cmp_ge_u32 s{sX}, 4\ns_cbranch_scc1 L_pro\nL_p2:\nv_mov_b32 v{vPM}, 0\nv_mov_b32 v{vPM+1}, 0')
    a(f'v_lshlrev_b32 v{vL16}, 4, v0')
    srd(a, 16, P_WQ, 4*MB_); srd(a, 20, P_WK, 4*MB_); srd(a, 24, P_WV, 4*MB_)
    def goff(c): a(f's_lshl_b32 s61, s{sH}, 8\ns_add_u32 s61, s61, {(c % 4) << 20}')
    for r in range(4): a(f'v_mov_b32 v{XF+r}, 0x3f803f80')
    def colsum(c):
        m = c // 4; acc = AQ + 16*m
        for ks in range(8*(c % 4), 8*(c % 4) + 8):
            a(f'v_mfma_f32_32x32x16_bf16 {vr(acc,16)}, {vr(XF,4)}, {wreg(m,4*ks,4)}, {"0" if ks == 0 else vr(acc,16)}')
    coop_weights(a, 12, lambda c, j: wreg(c//4, (c % 4)*32 + 2*j, 2), lambda c: 16 + 4*(c//4), goff,
                 lambda n: role_done(a, cfg, n), 100, 104, 8192, post=colsum)
    mark(a, cfg, 2, 16)
    a(f'''v_bfe_u32 v16, v{vL16}, 4, 4
    v_lshrrev_b32 v17, 8, v{vL16}
    v_lshrrev_b32 v{vL4}, 2, v{vL16}
    v_bfe_u32 v18, v{vL16}, 6, 2
    v_lshrrev_b32 v19, 9, v{vL16}
    v_lshl_or_b32 v18, v19, 3, v18
    v_lshlrev_b32 v18, 6, v18
    v_and_b32 v20, 1, v17
    v_lshl_or_b32 v18, v20, 5, v18
    v_and_b32 v20, 3, v16
    v_lshl_or_b32 v{vXr}, v20, 3, v18
    v_and_b32 v18, 7, v16
    v_lshrrev_b32 v20, 3, v16
    v_lshl_or_b32 v18, v20, 4, v18
    v_lshlrev_b32 v18, 4, v18
    v_lshl_add_u32 v18, v17, 9, v18
    v_add_u32 v{vKx}, {(L_PK ^ PKX) + 8192}, v18
    s_and_b32 s6, s{sW}, 1
    s_lshl_b32 s6, s6, 8
    v_lshlrev_b32 v18, 4, v16
    v_lshl_or_b32 v18, v17, 9, v18
    v_add_u32 v{vOs}, s6, v18
    v_add_u32 v{vQx}, {L_PK ^ PKX}, v{vOs}
    s_lshr_b32 s7, s{sW}, 1
    s_lshl_b32 s6, s7, 12
    s_add_u32 s6, s6, {(L_PK ^ PKX) + 16384}
    v_add_u32 v{vVx}, s6, v18
    s_lshl_b32 s6, s{sW}, 11
    s_add_u32 s6, s6, {L_PK}
    v_add_u32 v{vPw}, s6, v{vL16}
    v_mul_u32_u24 v18, {GQ}, v17
    v_lshl_add_u32 v18, v16, 3, v18
    s_lshl_b32 s6, s{sW}, 8
    s_add_u32 s6, s6, {L_T}
    v_add_u32 v{vTw}, s6, v18
    s_lshl_b32 s6, s7, 9
    s_add_u32 s6, s6, {L_T}
    v_add_u32 v{vMv}, s6, v18
    v_and_b32 v18, 3, v16
    v_mul_u32_u24 v18, {GQ}, v18
    v_bfe_u32 v20, v{vL16}, 6, 3
    v_lshl_add_u32 v18, v20, 3, v18
    v_lshl_add_u32 v18, v19, 7, v18
    v_add_u32 v{vTr}, {L_T}, v18
    s_lshl_b32 s6, s{sW}, 7
    s_add_u32 s6, s6, {L_RS}
    v_lshlrev_b32 v18, 4, v19
    v_add_u32 v{vRs}, s6, v18
    v_and_b32 v18, 0x7c, v{vL4}
    v_add_u32 v{vRw}, s6, v18
    v_lshlrev_b32 v18, 1, v18
    v_add_u32 v{vSp}, {L_SP}, v18
    s_lshl_b32 s6, s{sW}, 13
    v_add_u32 v{vSr}, s6, v{vXr}
    v_mov_b32 v{vONE}, 0x3f803f80
    v_mov_b32 v{vONE+1}, 0x3f803f80''')
    a(f'''s_and_b32 s6, s{sW}, 1
    s_lshl_b32 s6, s6, 4
    v_add_u32 v16, s6, v16
    v_lshlrev_b32 v18, 4, v19
    v_and_b32 v20, 1, v17
    v_lshl_or_b32 v18, v20, 2, v18
    v_sub_u32 v16, v16, v18
    v_mov_b32 v17, 0xf149f2ca''')
    for T_ in range(2):
        for r in range(4): a(f'v_cmp_gt_i32 vcc, {8*T_+r}, v16\nv_cndmask_b32 v{vMK+4*T_+r}, 0, v17, vcc')
    a(f'v_cmp_gt_u32 vcc, 512, v{vL16}')
    for m in range(3):
        acc = AQ + 16*m
        a(f'''v_cvt_pk_bf16_f32 v{acc+1}, v{acc}, v{acc}
        v_and_b32 v{acc+1}, 0xffff0000, v{acc+1}
        v_sub_f32 v{acc}, v{acc}, v{acc+1}
        v_cvt_pk_bf16_f32 v{acc}, v{acc}, v{acc+1}
        v_cndmask_b32 v{vCS+m}, 0, v{acc}, vcc''')
    a(f'v_mov_b32 v{vCS+3}, 0\nv_mov_b32 v{vMN+1}, 0\nv_mov_b32 v{vMN+2}, 0')
    wait_done(a, ST, ST+1, 20)
    mark(a, cfg, 3, ST)
    a(f's_mov_b32 s{sI}, 0\ns_mov_b32 s{sPre}, 0\ns_mov_b32 s{sSeg}, s{sRep}\ns_add_u32 s{sNeed}, s{sSeg}, 1')
    Ls = a.lab('p1')
    a(f's_cmp_lg_u32 s{sLY}, 0\ns_cbranch_scc1 {Ls}')
    poll_ge(a, vL16, sFX, sNeed, AQ, 21, 8)
    a(f'{Ls}:')
    mark(a, cfg, 4, ST)
    def xdma():
        a(f's_sub_u32 s6, s{sNeed}, 1\ns_lshl_b32 s6, s6, 15\ns_add_u32 s{sXT}, s{sXT0}, s6\ns_mov_b32 m0, s{sM0}\ns_add_u32 s6, s{sXT}, 4096')
        for k in range(4): a(f'buffer_load_dwordx4 v{vL16}, {WS}, s{sXT} offen offset:{k*1024} lds')
        a(f's_add_u32 m0, s{sM0}, 4096')
        for k in range(4): a(f'buffer_load_dwordx4 v{vL16}, {WS}, s6 offen offset:{k*1024} lds')
    if cfg.get('cnt'): a('s_mov_b32 s99, 0')
    a('L_p_xwait:')
    if cfg.get('cnt'): a('s_add_u32 s99, s99, 1')
    poll_ge(a, vL4, sFX, sNeed, ST, 22, 1)
    xdma()
    a('s_waitcnt vmcnt(0)\nL_p_loop:')
    a(f"""s_barrier
    s_and_b32 s6, s{sSeg}, {ring}
    s_lshl_b32 s6, s6, 19
    s_add_u32 s{sKV}, s{sKV0}, s6
    s_lshr_b32 s6, s{sSeg}, 2
    s_andn2_b32 s{sFKV}, 1, s6
    s_add_u32 s{sNeed}, s{sSeg}, 3
    s_lshl_b32 s7, s{sW}, 8""")
    T(0)
    qd = []
    def ds(x, tag): a(x); qd.append(tag)
    def need(tag):
        last = max([k for k, x in enumerate(qd) if x == tag], default=-1)
        if last >= 0:
            a(f's_waitcnt lgkmcnt({len(qd)-1-last})'); del qd[:last+1]
    def xr(ks):
        for h in range(2): ds(f'ds_read_b64_tr_b16 {vr(XF+4*(ks%3)+2*h,2)}, v{vXr} offset:{L_X + ks*1024 + h*256}', f'x{ks}')
    SF, U = RR, RR+8
    def sr_(k):
        for h in range(2): ds(f'ds_read_b64_tr_b16 {vr(SF+4*(k%2)+2*h,2)}, v{vSr} offset:{L_X + k*1024 + h*256}', f's{k}')
    xr(0); xr(1); sr_(0)
    a(f'v_mov_b32 v{ST}, 0\nv_mov_b32 v{ST+1}, 0\nv_add_u32 v{U+4}, s7, v{vSp}')
    fill = {ks: [] for ks in range(32)}
    for k in range(8):
        ops = []
        for r in range(4):
            f = SF + 4*(k % 2) + r; u = U + 2*(r % 2)
            ops += [f'v_lshlrev_b32 v{u}, 16, v{f}', f'v_and_b32 v{u+1}, 0xffff0000, v{f}', f'v_add_f32 v{ST}, v{ST}, v{u}', f'v_fmac_f32 v{ST+1}, v{u}, v{u}',
                    f'v_add_f32 v{ST}, v{ST}, v{u+1}', f'v_fmac_f32 v{ST+1}, v{u+1}, v{u+1}']
        fill[3*k].append(('need', f's{k}'))
        if k < 7: fill[3*k].append(('sr', k+1))
        for j in range(3): fill[3*k+j] += ops[8*j:8*j+8]
    fill[24] = [f'v_mov_b32 v{ST+2}, v{ST}', f'v_mov_b32 v{ST+3}, v{ST+1}', f'v_permlane32_swap_b32 v{ST}, v{ST+2}', f'v_permlane32_swap_b32 v{ST+1}, v{ST+3}',
                f'v_add_f32 v{ST}, v{ST}, v{ST+2}', f'v_add_f32 v{ST+1}, v{ST+1}, v{ST+3}', ('ds', f'ds_write_b64 v{U+4}, {vr(ST,2)}', 'w')]
    fill[25] = [('nop',), ('need', 'w'), 's_barrier'] + [('ds', f'ds_read_b64 {vr(SF+2*k,2)}, v{vSp} offset:{256*k}', 'r') for k in range(4)]
    b = Asm()
    b(f"""v_add_f32 v{ST}, v{SF}, v{SF+2}
    v_add_f32 v{ST+1}, v{SF+1}, v{SF+3}
    v_add_f32 v{ST+2}, v{SF+4}, v{SF+6}
    v_add_f32 v{ST+3}, v{SF+5}, v{SF+7}
    v_add_f32 v{ST}, v{ST}, v{ST+2}
    v_add_f32 v{ST+1}, v{ST+1}, v{ST+3}""")
    ln_final(b, ST, ST+1, ST+2)
    b(f"""v_xor_b32 v{ST}, 0x80000000, v{ST}
    v_lshrrev_b32 v{ST+2}, 16, v{ST}
    v_or_b32 v{vMN}, v{ST}, v{ST+2}
    v_or_b32 v{vMN+3}, v{ST}, v{ST+2}
    v_mov_b32 v{ST}, v{ST+1}""")
    ops = [('need', 'r')] + b.lines + [('ds', f'ds_write_b32 v{vRw}, v{ST+1}', 'w2')]
    for j in range(4): fill[27+j] = ops[8*j:8*j+8]
    assert len(ops) <= 32
    fill[31] = [('ds', f'ds_read_b128 {vr(RR+4*q,4)}, v{vRs} offset:{32*q}', 'rr') for q in range(4)]
    def F(lst):
        for x in lst:
            if isinstance(x, str): a(x)
            elif x[0] == 'need': need(x[1])
            elif x[0] == 'sr': sr_(x[1])
            elif x[0] == 'ds': ds(x[1], x[2])
    TM = 126
    oflag = f's_mov_b64 exec, 1\nbuffer_store_dword v{TM}, v{vPM+1}, {WS}, s{sFO} offen sc1\ns_mov_b64 exec, -1'
    for ks in range(32):
        f = XF + 4*(ks % 3); c = lambda r: '0' if ks == 0 else vr(r, 16)
        d = fill[ks]
        if ks == cfg.get('p_def', 5):
            a(f's_cmp_eq_u32 s{sPre}, 2\ns_cbranch_scc0 L_p_nof\ns_waitcnt vmcnt(0)\n{oflag}\nL_p_nof:')
        need(f'x{ks}')
        a(f'v_mfma_f32_32x32x16_bf16 {vr(AK,16)}, {wreg(1,4*ks,4)}, {vr(f,4)}, {c(AK)}')
        if ks + 2 < 32: xr(ks+2)
        n1 = 1 if len(d) < 10 else 3
        F(d[:n1])
        if ks == 0 or not cfg.get('x_p'): a(f'v_mfma_f32_32x32x16_bf16 {vr(AV,16)}, {vr(f,4)}, {wreg(2,4*ks,4)}, {c(AV)}')
        F(d[n1:n1+4])
        if ks == 0 or not cfg.get('x_p'): a(f'v_mfma_f32_32x32x16_bf16 {vr(AQ,16)}, {wreg(0,4*ks,4)}, {vr(f,4)}, {c(AQ)}')
        F(d[n1+4:])
    T(1)
    kmaddr = f'''s_sub_u32 s{sVal}, s{sSeg}, 2
    s_and_b32 s6, s{sVal}, {ring}
    s_lshl_b32 s6, s6, 17
    s_add_u32 s{sKM}, s{sKM0}, s6
    s_lshr_b32 s6, s{sVal}, 2
    s_andn2_b32 s{sTag}, 1, s6
    s_lshl_b32 s6, s{sVal}, 18
    s_add_u32 s{sOI}, s{sOI0}, s6
    s_add_u32 s{sVal}, s{sVal}, 1
    buffer_load_dwordx4 {vr(KMD,4)}, v{vL16}, {WS}, s{sKM} offen sc1'''
    a(kmaddr)
    a(f'buffer_load_dword v{vFX}, v{vL4}, {WS}, s{sFX} offen sc1')
    a(f"""v_mfma_f32_32x32x8_bf16 {vr(AK,16)}, {vr(vCS,2)}, {vr(vMN+2,2)}, {vr(AK,16)}
    v_mfma_f32_32x32x8_bf16 {vr(AV,16)}, {vr(vMN,2)}, {vr(vCS+2,2)}, {vr(AV,16)}
    v_mfma_f32_32x32x8_bf16 {vr(AQ,16)}, {vr(vCS,2)}, {vr(vMN,2)}, {vr(AQ,16)}""")
    def fin(acc, sc, goff_, loff):
        for r in range(0, 16, 2):
            a(f'v_pk_mul_f32 {vr(acc+r,2)}, {vr(acc+r,2)}, {sc(r)}')
        for r in range(8): a(f'v_cvt_pk_bf16_f32 v{acc+r}, v{acc+2*r}, v{acc+2*r+1}')
        for h in range(2):
            if goff_ is not None: a(f'v_bfi_b32 v{acc+4*h}, 1, s{sFKV}, v{acc+4*h}')
        for h in range(2):
            if goff_ is not None: a(f'buffer_store_dwordx4 {vr(acc+4*h,4)}, v{vL16}, {WS}, s{goff_} offen offset:{h*1024} sc1')
            a(f'ds_write_b128 v{vPw}, {vr(acc+4*h,4)} offset:{loff + h*1024}')
    a(f's_add_u32 s7, s{sKV}, 0x2000')
    fin(AK, lambda r: vr(ST,2), sKV, 8192)
    a('s_waitcnt lgkmcnt(2)')
    fin(AV, lambda r: vr(RR+r,2), 7, 16384)
    fin(AQ, lambda r: vr(ST,2), None, 0)
    T(2)
    a(f's_cmp_eq_u32 s{sI}, 0\ns_cbranch_scc1 L_p_first')
    a('L_p_att:')
    KF, QF, VF, S_ = 32, 64, 80, 96
    MT, MV, O_, PX, m_, t_, TM = 32, 48, 56, 120, 124, 125, 126
    for ks in range(4):
        a(f'ds_read_b128 {vr(QF+4*ks,4)}, v{vQx} offset:{ks*2048}')
        for T_ in range(2): a(f'ds_read_b128 {vr(KF+16*T_+4*ks,4)}, v{vKx} offset:{ks*2048+T_*128}')
    for ks in range(4):
        a(f's_waitcnt lgkmcnt({9-3*ks})')
        for T_ in range(2):
            a(f'v_mfma_f32_16x16x32_bf16 {vr(S_+4*T_,4)}, {vr(KF+16*T_+4*ks,4)}, {vr(QF+4*ks,4)}, {vr(vMK+4*T_,4) if ks == 0 else vr(S_+4*T_,4)}')
    for u in range(2):
        for t in range(2): a(f'ds_read_b128 {vr(VF+8*u+4*t,4)}, v{vVx} offset:{u*2048+t*256}')
    def tryx(again=0, keep=0):
        L = a.lab('nx'); L2 = a.lab('nx')
        a(f's_cmp_lg_u32 s{sPre}, 0\ns_cbranch_scc1 {L}' if keep else f's_mov_b32 s{sPre}, 0')
        a(f'''s_cmp_ge_u32 s{sI}, 31
        s_cbranch_scc1 {L}
        v_cmp_gt_u32 vcc, s{sNeed}, v{vFX}
        s_cbranch_vccnz {L2 if again else L}
        s_mov_b32 s{sPre}, 1''')
        xdma()
        if again: a(f's_branch {L}\n{L2}:\nbuffer_load_dword v{vFX}, v{vL4}, {WS}, s{sFX} offen sc1')
        a(f'{L}:')
    ex = cfg.get('p_ex', 1)
    if ex: a(f's_mov_b32 s{sPre}, 0\ns_barrier')
    a(f'''s_mov_b32 s7, 0
    s_waitcnt vmcnt(4)
    L_p_km:
    v_bitop3_b32 v{TM}, v{KMD}, s{sTag}, 1 bitop3:0x28
    v_cmp_ne_u32 vcc, 0, v{TM}
    s_cbranch_vccz L_p_kmok
    buffer_load_dwordx4 {vr(KMD,4)}, v{vL16}, {WS}, s{sKM} offen sc1''')
    if ex:
        a(f'''s_cmp_lg_u32 s{sPre}, 0
        s_cbranch_scc1 L_p_k0
        s_cmp_ge_u32 s{sI}, 31
        s_cbranch_scc1 L_p_k0
        v_cmp_gt_u32 vcc, s{sNeed}, v{vFX}
        s_cbranch_vccnz L_p_k1
        s_mov_b32 s{sPre}, 1''')
        xdma()
        a('s_waitcnt vmcnt(8)\ns_branch L_p_k2\nL_p_k1:')
    a(f'buffer_load_dword v{vFX}, v{vL4}, {WS}, s{sFX} offen sc1\nL_p_k0:\ns_waitcnt vmcnt(0)\nL_p_k2:')
    spin_check(a, 7, 23, 'L_p_km')
    a('L_p_kmok:')
    if ex: tryx(1, 1)
    a(f'''    ds_write_b64 v{vTw}, {vr(KMD,2)}
    ds_write_b64 v{vTw}, {vr(KMD+2,2)} offset:128
    v_max3_f32 v{m_}, v{S_}, v{S_+1}, v{S_+2}
    v_max3_f32 v{t_}, v{S_+4}, v{S_+5}, v{S_+6}
    v_max3_f32 v{m_}, v{m_}, v{S_+3}, v{S_+7}
    s_waitcnt lgkmcnt(0)
    s_barrier''')
    T(3)
    for ks in range(4):
        for sub in range(2): a(f'ds_read_b64_tr_b16 {vr(MT+4*ks+2*sub,2)}, v{vTr} offset:{ks*256+sub*64}')
    for k in range(4): a(f'ds_read_b64 {vr(MV+2*k,2)}, v{vMv} offset:{k*128}')
    p2 = 1
    if not ex: tryx(p2)
    for ks in range(4):
        a(f's_waitcnt lgkmcnt({10-2*ks})')
        a(f'v_mfma_f32_16x16x32_bf16 {vr(S_+8,4)}, {vr(MT+4*ks,4)}, {vr(QF+4*ks,4)}, {"0" if ks == 0 else vr(S_+8,4)}')
    sv = [S_+i for i in range(8)] + [S_+10, S_+11]
    a(f'''v_max_f32 v{m_}, v{m_}, v{t_}
    v_max3_f32 v{m_}, v{m_}, v{sv[8]}, v{sv[9]}
    v_mov_b32 v{t_}, v{m_}
    v_permlane32_swap_b32 v{m_}, v{t_}
    v_max_f32 v{m_}, v{m_}, v{t_}
    v_max_f32 v{t_}, v{m_}, v{t_}
    v_permlane16_swap_b32 v{m_}, v{t_}
    v_max_f32 v{m_}, v{m_}, v{t_}
    v_mul_f32 v{m_}, s{sC}, v{m_}''')
    for r in [sv[8], sv[9]] + sv[:8]: a(f'v_fma_f32 v{r}, v{r}, s{sC}, -v{m_}')
    for r in (sv[8], sv[9]): a(f'v_exp_f32 v{r}, v{r}')
    SUM = S_ + 12
    a(f'v_exp_f32 v{sv[0]}, v{sv[0]}\nv_cvt_pk_bf16_f32 v{vPM}, v{sv[8]}, v{sv[9]}\nv_exp_f32 v{sv[1]}, v{sv[1]}\ns_waitcnt lgkmcnt(0)')
    a(f'v_mfma_f32_16x16x16_bf16 {vr(SUM,4)}, {vr(vONE,2)}, {vr(vPM,2)}, 0')
    for k in range(4):
        a(f'v_mfma_f32_16x16x16_bf16 {vr(O_+4*k,4)}, {vr(MV+2*k,2)}, {vr(vPM,2)}, 0')
        if k < 3: a(f'v_exp_f32 v{sv[2+2*k]}, v{sv[2+2*k]}\nv_exp_f32 v{sv[3+2*k]}, v{sv[3+2*k]}')
    for k in range(4): a(f'v_cvt_pk_bf16_f32 v{PX+k}, v{sv[2*k]}, v{sv[2*k+1]}')
    for h in range(2): a(f'v_mfma_f32_16x16x16_bf16 {vr(SUM,4)}, {vr(vONE,2)}, {vr(PX+2*h,2)}, {vr(SUM,4)}')
    for k in range(4): a(f'v_mfma_f32_16x16x32_bf16 {vr(O_+4*k,4)}, {vr(VF+4*k,4)}, {vr(PX,4)}, {vr(O_+4*k,4)}')
    a(f'v_rcp_f32 v{SUM}, v{SUM}\nv_mov_b32 v{TM}, s{sVal}')
    for u in range(2):
        for r in range(0, 8, 2): a(f'v_pk_mul_f32 {vr(O_+8*u+r,2)}, {vr(O_+8*u+r,2)}, {vr(SUM,2)} op_sel_hi:[1,0]')
        for r in range(4): a(f'v_cvt_pk_bf16_f32 v{O_+8*u+r}, v{O_+8*u+2*r}, v{O_+8*u+2*r+1}')
        a(f'buffer_store_dwordx4 {vr(O_+8*u,4)}, v{vOs}, {WS}, s{sOI} offen offset:{u*2048} sc1')
    if p2:
        a(f'''s_cmp_ge_u32 s{sI}, 31
        s_cbranch_scc1 L_p_of
        s_cmp_lg_u32 s{sPre}, 0
        s_cbranch_scc1 {'L_p_of3' if cfg.get('p_def', 1) else 'L_p_of'}
        s_waitcnt vmcnt(2)
        v_cmp_gt_u32 vcc, s{sNeed}, v{vFX}
        s_cbranch_vccnz L_p_of
        s_mov_b32 s{sPre}, 1''')
        xdma()
        a(f's_waitcnt vmcnt(8)\n{oflag}\ns_waitcnt vmcnt(1)\ns_branch L_p_of2')
        a(f'L_p_of3:\ns_mov_b32 s{sPre}, 2')
        if tm: a('s_waitcnt vmcnt(10)')
        T(5)
        a('s_waitcnt vmcnt(2)\ns_branch L_p_of2')
    a(f'L_p_of:\ns_waitcnt vmcnt(0)\n{oflag}\nL_p_of2:')
    T(4)
    a('L_p_next:')
    for r in (vKx, vQx, vVx, vPw): a(f'v_xor_b32 v{r}, {PKX:#x}, v{r}')
    if tm:
        a(f'''s_waitcnt lgkmcnt(0)
        s_lshl_b32 s6, s{sX}, 5
        s_add_u32 s6, s6, s{sR}
        s_lshl_b32 s6, s6, 2
        s_add_u32 s6, s6, s{sW}
        s_lshl_b32 s6, s6, 6
        s_add_u32 s6, s6, s{sI}
        s_lshl_b32 s6, s6, 6
        s_add_u32 s6, s6, {160*MB_}''')
        for k in range(8): a(f'v_mov_b32 v{AQ+k}, s{70+2*k}')
        a(f'''s_mov_b64 exec, 1
        buffer_store_dwordx4 {vr(AQ,4)}, v{vPM+1}, {WS}, s6 offen
        buffer_store_dwordx4 {vr(AQ+4,4)}, v{vPM+1}, {WS}, s6 offen offset:16
        s_mov_b64 exec, -1''')
    a(f'''s_add_u32 s{sI}, s{sI}, 1
    s_add_u32 s{sSeg}, s{sSeg}, 2
    s_cmp_gt_u32 s{sI}, 32
    s_cbranch_scc1 L_p_end
    s_cmp_eq_u32 s{sI}, 32
    s_cbranch_scc1 L_p_tail
    s_cmp_eq_u32 s{sPre}, 0
    s_cbranch_scc1 L_p_xwait
    s_branch L_p_loop
    L_p_tail:''')
    a(kmaddr)
    a(f'''s_waitcnt vmcnt(0) lgkmcnt(0)
    s_barrier
    s_branch L_p_att
    L_p_first:''')
    mark(a, cfg, 7, KMD)
    a(f's_waitcnt vmcnt(0) lgkmcnt(0)\ns_barrier')
    tryx()
    a(f's_cmp_lg_u32 s{sLY}, 0\ns_cbranch_scc1 L_p_f2\ns_mov_b32 s{sVal}, 127')
    poll_ge(a, vL16, sFX, sVal, AQ, 24, 8)
    a('''L_p_f2:
    s_waitcnt vmcnt(0)
    s_branch L_p_next
    L_p_end:''')
    if cfg.get('cnt'): mark(a, cfg, 10, 16, 99)
    a('''s_waitcnt vmcnt(0)
    s_endpgm''')
```

```python
from common import *
L_X, L_PK, PKX, L_T, L_RS, L_SP = 0, 0x8000, 0x18000, 0xE000, 0xF200, 0xF400
GQ = 1088
vL16, vXr, vKx, vQx, vVx, vTw, vTr, vMv, vRs, vRw, vONE, vPM, vCS, vMN, vMK = 0, 1, 2, 3, 4, 5, 6, 7, 8, 9, 10, 12, 16, 20, 24
AQ, AK, AV, XF, ST, RR, vPw, vOs, vL4, vFX = 32, 48, 64, 80, 92, 96, 112, 113, 114, 115
KMD, vSr, vSp = 116, 14, 15
WV = 128
sI, sSeg, sC, sLY, sH, sRep = 32, 33, 34, 35, 36, 37
sXT0, sKV0, sKM0, sOI0, sFKV, sFO, sFX, sXT, sKV, sKM, sOI, sNeed, sTag, sVal, sPre, sM0 = range(38, 54)

def wreg(m, r, n): return ar(128*m + r, n) if m < 2 else vr(WV + r, n)

def coop_weights(a, nch, dst, srdof, goff, done_cb, vG, vR, rowb, hish=3, rowof=lambda j: 16*(j//2) + 4*(j % 2), post=lambda c: None):
    a(f'''v_lshrrev_b32 v{vR}, 4, v{vL16}
    v_lshrrev_b32 v{vG}, 8, v{vL16}
    v_lshlrev_b32 v{vR+1}, 2, v{vG}
    v_and_b32 v{vR}, 15, v{vR}
    v_xor_b32 v{vR}, v{vR}, v{vR+1}
    v_mul_u32_u24 v{vG}, {rowb}, v{vG}
    v_lshl_add_u32 v{vG}, v{vR}, 4, v{vG}''')
    a(f'''v_bfe_u32 v{vR}, v{vL16}, 6, 2
    v_lshlrev_b32 v{vR+1}, 2, v{vR}
    v_bfe_u32 v{vR+2}, v{vL16}, 8, 1
    v_lshlrev_b32 v{vR+2}, 1, v{vR+2}
    v_bfe_u32 v{vR+3}, v{vL16}, 5, 1
    v_or_b32 v{vR+2}, v{vR+2}, v{vR+3}
    s_lshl_b32 s6, s{sW}, 2
    v_or_b32 v{vR+2}, s6, v{vR+2}
    v_xor_b32 v{vR+2}, v{vR+2}, v{vR+1}
    v_lshlrev_b32 v{vR+2}, 4, v{vR+2}
    v_bfe_u32 v{vR+3}, v{vL16}, 4, 1
    v_lshl_or_b32 v{vR+2}, v{vR+3}, 3, v{vR+2}
    v_bfe_u32 v{vR+3}, v{vL16}, 9, 1
    v_lshl_or_b32 v{vR}, v{vR+3}, {hish}, v{vR}
    v_lshl_or_b32 v{vR}, v{vR}, 8, v{vR+2}
    v_add_u32 v{vR+1}, 0x10000, v{vR}
    s_lshl_b32 s60, s{sW}, 13
    s_mul_i32 s63, s{sW}, {32*rowb}''')
    def issue(c):
        goff(c)
        a('s_add_u32 s61, s61, s63')
        for i in range(8):
            a(f'''s_add_u32 m0, s60, {(c % 4)*32768 + i*1024}
            s_add_u32 s62, s61, {i*4*rowb}
            buffer_load_dwordx4 v{vG}, s[{srdof(c)}:{srdof(c)+3}], s62 offen lds''')
    done_cb(0)
    for c in range(3): issue(c)
    for c in range(nch):
        a(f's_waitcnt vmcnt({8*min(2, nch-1-c)})\ns_barrier')
        if c + 3 < nch: issue(c + 3)
        b = c % 4
        for j in range(16):
            a(f'ds_read_b64_tr_b16 {dst(c, j)}, v{vR + b//2} offset:{(b % 2)*32768 + rowof(j)*256}')
        a('s_waitcnt lgkmcnt(0)')
        post(c)
    a('s_barrier')

def p(a, cfg):
    ring = cfg.get('ring', 3); tm = cfg.get('p_time', 0)
    def T(slot):
        if tm: a(f's_mem{"real" if cfg.get("rt") else ""}time s[{70+2*slot}:{71+2*slot}]')
    a('L_p:')
    def sel(dst, pair): a(f's_mul_i32 s{dst}, s{sLY}, {pair[1]-pair[0]:#x}\ns_add_u32 s{dst}, s{dst}, {pair[0]:#x}')
    a(f'''s_sub_u32 s{sLY}, s{sX}, 2
    s_lshr_b32 s{sLY}, s{sLY}, 1
    s_and_b32 s6, s{sX}, 1
    s_lshl_b32 s6, s6, 4
    s_and_b32 s{sH}, s{sR}, 15
    s_add_u32 s{sH}, s{sH}, s6
    s_lshr_b32 s{sRep}, s{sR}, 4''')
    sel(sXT0, XT if not cfg.get('x_xt') else (XT[0], XT[0])); sel(sKV0, KVX); sel(sKM0, KVM); sel(sOI0, OI); sel(sFX, (FX1, FX3))
    a(f'''s_lshl_b32 s6, s{sW}, 13
    s_add_u32 s{sXT0}, s{sXT0}, s6
    s_add_u32 s{sM0}, s6, {L_X}
    s_lshl_b32 s6, s{sH}, 14
    s_lshl_b32 s7, s{sW}, 11
    s_add_u32 s{sKV0}, s{sKV0}, s6
    s_add_u32 s{sKV0}, s{sKV0}, s7
    s_lshl_b32 s6, s{sH}, 12
    s_lshl_b32 s7, s{sW}, 10
    s_add_u32 s{sKM0}, s{sKM0}, s6
    s_add_u32 s{sKM0}, s{sKM0}, s7
    s_lshl_b32 s6, s{sH}, 13
    s_lshr_b32 s7, s{sW}, 1
    s_lshl_b32 s7, s7, 12
    s_add_u32 s{sOI0}, s{sOI0}, s6
    s_add_u32 s{sOI0}, s{sOI0}, s7
    s_lshl_b32 s6, s{sLY}, 13
    s_lshl_b32 s7, s{sRep}, 12
    s_add_u32 s6, s6, s7
    s_lshl_b32 s7, s{sH}, 7
    s_add_u32 s6, s6, s7
    s_lshl_b32 s7, s{sW}, 2
    s_add_u32 s6, s6, s7
    s_add_u32 s{sFO}, s6, {FO:#x}
    s_mov_b32 s{sC}, 0x3e0293ee
    v_mov_b32 v{vPM}, 0
    v_mov_b32 v{vPM+1}, 0
    v_mov_b32 v{vPM+2}, 0
    v_mov_b32 v{vPM+3}, 0
    v_lshlrev_b32 v16, 4, v0
    s_lshl_b32 s6, s{sRep}, 19
    s_add_u32 s6, s6, s{sKV0}
    s_mov_b64 exec, 1
    buffer_store_dword v{vPM}, v{vPM}, {WS}, s{sFO} offen sc1
    s_mov_b64 exec, -1''')
    for k in range(4):
        for h in range(2): a(f'buffer_store_dwordx4 {vr(vPM,4)}, v16, {WS}, s6 offen offset:{h*1024} sc1')
        if k < 3: a(f's_add_u32 s6, s6, {0x2000 if k != 1 else (2 << 19) - 0x2000}')
    if cfg.get('integ'):
        a(f's_cmp_ge_u32 s{sX}, 4\ns_cbranch_scc1 L_pro\nL_p2:\nv_mov_b32 v{vPM}, 0\nv_mov_b32 v{vPM+1}, 0')
    a(f'v_lshlrev_b32 v{vL16}, 4, v0')
    srd(a, 16, P_WQ, 4*MB_); srd(a, 20, P_WK, 4*MB_); srd(a, 24, P_WV, 4*MB_)
    def goff(c): a(f's_lshl_b32 s61, s{sH}, 8\ns_add_u32 s61, s61, {(c % 4) << 20}')
    for r in range(4): a(f'v_mov_b32 v{XF+r}, 0x3f803f80')
    def colsum(c):
        m = c // 4; acc = AQ + 16*m
        for ks in range(8*(c % 4), 8*(c % 4) + 8):
            a(f'v_mfma_f32_32x32x16_bf16 {vr(acc,16)}, {vr(XF,4)}, {wreg(m,4*ks,4)}, {"0" if ks == 0 else vr(acc,16)}')
    coop_weights(a, 12, lambda c, j: wreg(c//4, (c % 4)*32 + 2*j, 2), lambda c: 16 + 4*(c//4), goff,
                 lambda n: role_done(a, cfg, n), 100, 104, 8192, post=colsum)
    mark(a, cfg, 2, 16)
    a(f'''v_bfe_u32 v16, v{vL16}, 4, 4
    v_lshrrev_b32 v17, 8, v{vL16}
    v_lshrrev_b32 v{vL4}, 2, v{vL16}
    v_bfe_u32 v18, v{vL16}, 6, 2
    v_lshrrev_b32 v19, 9, v{vL16}
    v_lshl_or_b32 v18, v19, 3, v18
    v_lshlrev_b32 v18, 6, v18
    v_and_b32 v20, 1, v17
    v_lshl_or_b32 v18, v20, 5, v18
    v_and_b32 v20, 3, v16
    v_lshl_or_b32 v{vXr}, v20, 3, v18
    v_and_b32 v18, 7, v16
    v_lshrrev_b32 v20, 3, v16
    v_lshl_or_b32 v18, v20, 4, v18
    v_lshlrev_b32 v18, 4, v18
    v_lshl_add_u32 v18, v17, 9, v18
    v_add_u32 v{vKx}, {(L_PK ^ PKX) + 8192}, v18
    s_and_b32 s6, s{sW}, 1
    s_lshl_b32 s6, s6, 8
    v_lshlrev_b32 v18, 4, v16
    v_lshl_or_b32 v18, v17, 9, v18
    v_add_u32 v{vOs}, s6, v18
    v_add_u32 v{vQx}, {L_PK ^ PKX}, v{vOs}
    s_lshr_b32 s7, s{sW}, 1
    s_lshl_b32 s6, s7, 12
    s_add_u32 s6, s6, {(L_PK ^ PKX) + 16384}
    v_add_u32 v{vVx}, s6, v18
    s_lshl_b32 s6, s{sW}, 11
    s_add_u32 s6, s6, {L_PK}
    v_add_u32 v{vPw}, s6, v{vL16}
    v_mul_u32_u24 v18, {GQ}, v17
    v_lshl_add_u32 v18, v16, 3, v18
    s_lshl_b32 s6, s{sW}, 8
    s_add_u32 s6, s6, {L_T}
    v_add_u32 v{vTw}, s6, v18
    s_lshl_b32 s6, s7, 9
    s_add_u32 s6, s6, {L_T}
    v_add_u32 v{vMv}, s6, v18
    v_and_b32 v18, 3, v16
    v_mul_u32_u24 v18, {GQ}, v18
    v_bfe_u32 v20, v{vL16}, 6, 3
    v_lshl_add_u32 v18, v20, 3, v18
    v_lshl_add_u32 v18, v19, 7, v18
    v_add_u32 v{vTr}, {L_T}, v18
    s_lshl_b32 s6, s{sW}, 7
    s_add_u32 s6, s6, {L_RS}
    v_lshlrev_b32 v18, 4, v19
    v_add_u32 v{vRs}, s6, v18
    v_and_b32 v18, 0x7c, v{vL4}
    v_add_u32 v{vRw}, s6, v18
    v_lshlrev_b32 v18, 1, v18
    v_add_u32 v{vSp}, {L_SP}, v18
    s_lshl_b32 s6, s{sW}, 13
    v_add_u32 v{vSr}, s6, v{vXr}
    v_mov_b32 v{vONE}, 0x3f803f80
    v_mov_b32 v{vONE+1}, 0x3f803f80''')
    a(f'''s_and_b32 s6, s{sW}, 1
    s_lshl_b32 s6, s6, 4
    v_add_u32 v16, s6, v16
    v_lshlrev_b32 v18, 4, v19
    v_and_b32 v20, 1, v17
    v_lshl_or_b32 v18, v20, 2, v18
    v_sub_u32 v16, v16, v18
    v_mov_b32 v17, 0xf149f2ca''')
    for T_ in range(2):
        for r in range(4): a(f'v_cmp_gt_i32 vcc, {8*T_+r}, v16\nv_cndmask_b32 v{vMK+4*T_+r}, 0, v17, vcc')
    a(f'v_cmp_gt_u32 vcc, 512, v{vL16}')
    for m in range(3):
        acc = AQ + 16*m
        a(f'''v_cvt_pk_bf16_f32 v{acc+1}, v{acc}, v{acc}
        v_and_b32 v{acc+1}, 0xffff0000, v{acc+1}
        v_sub_f32 v{acc}, v{acc}, v{acc+1}
        v_cvt_pk_bf16_f32 v{acc}, v{acc}, v{acc+1}
        v_cndmask_b32 v{vCS+m}, 0, v{acc}, vcc''')
    a(f'v_mov_b32 v{vCS+3}, 0\nv_mov_b32 v{vMN+1}, 0\nv_mov_b32 v{vMN+2}, 0')
    wait_done(a, ST, ST+1, 20)
    mark(a, cfg, 3, ST)
    a(f's_mov_b32 s{sI}, 0\ns_mov_b32 s{sPre}, 0\ns_mov_b32 s{sSeg}, s{sRep}\ns_add_u32 s{sNeed}, s{sSeg}, 1')
    Ls = a.lab('p1')
    a(f's_cmp_lg_u32 s{sLY}, 0\ns_cbranch_scc1 {Ls}')
    poll_ge(a, vL16, sFX, sNeed, AQ, 21, 8)
    a(f'{Ls}:')
    mark(a, cfg, 4, ST)
    def xdma():
        a(f's_sub_u32 s6, s{sNeed}, 1\ns_lshl_b32 s6, s6, 15\ns_add_u32 s{sXT}, s{sXT0}, s6\ns_mov_b32 m0, s{sM0}\ns_add_u32 s6, s{sXT}, 4096')
        for k in range(4): a(f'buffer_load_dwordx4 v{vL16}, {WS}, s{sXT} offen offset:{k*1024} lds')
        a(f's_add_u32 m0, s{sM0}, 4096')
        for k in range(4): a(f'buffer_load_dwordx4 v{vL16}, {WS}, s6 offen offset:{k*1024} lds')
    if cfg.get('warm', 0) & 1: warm(a, cfg, sLY, 120, [(KVX, 15, 0), (KVM, 13, 0)])
    if cfg.get('cnt'): a('s_mov_b32 s99, 0')
    a('L_p_xwait:')
    if cfg.get('cnt'): a('s_add_u32 s99, s99, 1')
    poll_ge(a, vL4, sFX, sNeed, ST, 22, 1)
    xdma()
    a('s_waitcnt vmcnt(0)\nL_p_loop:')
    a(f"""s_barrier
    s_and_b32 s6, s{sSeg}, {ring}
    s_lshl_b32 s6, s6, 19
    s_add_u32 s{sKV}, s{sKV0}, s6
    s_lshr_b32 s6, s{sSeg}, 2
    s_andn2_b32 s{sFKV}, 1, s6
    s_add_u32 s{sNeed}, s{sSeg}, 3
    s_lshl_b32 s7, s{sW}, 8""")
    T(0)
    qd = []
    def ds(x, tag): a(x); qd.append(tag)
    def need(tag):
        last = max([k for k, x in enumerate(qd) if x == tag], default=-1)
        if last >= 0:
            a(f's_waitcnt lgkmcnt({len(qd)-1-last})'); del qd[:last+1]
    def xr(ks):
        for h in range(2): ds(f'ds_read_b64_tr_b16 {vr(XF+4*(ks%3)+2*h,2)}, v{vXr} offset:{L_X + (ks % 32)*1024 + h*256}', f'x{ks}')
    SF, U = RR, RR+8
    def sr_(k):
        for h in range(2): ds(f'ds_read_b64_tr_b16 {vr(SF+4*(k%2)+2*h,2)}, v{vSr} offset:{L_X + k*1024 + h*256}', f's{k}')
    xr(0); xr(1); sr_(0)
    a(f'v_mov_b32 v{ST}, 0\nv_mov_b32 v{ST+1}, 0\nv_add_u32 v{U+4}, s7, v{vSp}')
    fill = {ks: [] for ks in range(32)}
    for k in range(8):
        ops = []
        for r in range(4):
            f = SF + 4*(k % 2) + r; u = U + 2*(r % 2)
            ops += [f'v_lshlrev_b32 v{u}, 16, v{f}', f'v_and_b32 v{u+1}, 0xffff0000, v{f}', f'v_add_f32 v{ST}, v{ST}, v{u}', f'v_fmac_f32 v{ST+1}, v{u}, v{u}',
                    f'v_add_f32 v{ST}, v{ST}, v{u+1}', f'v_fmac_f32 v{ST+1}, v{u+1}, v{u+1}']
        fill[3*k].append(('need', f's{k}'))
        if k < 7: fill[3*k].append(('sr', k+1))
        for j in range(3): fill[3*k+j] += ops[8*j:8*j+8]
    fill[24] = [f'v_mov_b32 v{ST+2}, v{ST}', f'v_mov_b32 v{ST+3}, v{ST+1}', f'v_permlane32_swap_b32 v{ST}, v{ST+2}', f'v_permlane32_swap_b32 v{ST+1}, v{ST+3}',
                f'v_add_f32 v{ST}, v{ST}, v{ST+2}', f'v_add_f32 v{ST+1}, v{ST+1}, v{ST+3}', ('ds', f'ds_write_b64 v{U+4}, {vr(ST,2)}', 'w')]
    fill[25] = [('nop',), ('need', 'w'), 's_barrier'] + [('ds', f'ds_read_b64 {vr(SF+2*k,2)}, v{vSp} offset:{256*k}', 'r') for k in range(4)]
    b = Asm()
    b(f"""v_add_f32 v{ST}, v{SF}, v{SF+2}
    v_add_f32 v{ST+1}, v{SF+1}, v{SF+3}
    v_add_f32 v{ST+2}, v{SF+4}, v{SF+6}
    v_add_f32 v{ST+3}, v{SF+5}, v{SF+7}
    v_add_f32 v{ST}, v{ST}, v{ST+2}
    v_add_f32 v{ST+1}, v{ST+1}, v{ST+3}""")
    ln_final(b, ST, ST+1, ST+2)
    b(f"""v_xor_b32 v{ST}, 0x80000000, v{ST}
    v_lshrrev_b32 v{ST+2}, 16, v{ST}
    v_or_b32 v{vMN}, v{ST}, v{ST+2}
    v_or_b32 v{vMN+3}, v{ST}, v{ST+2}
    v_mov_b32 v{ST}, v{ST+1}""")
    ops = [('need', 'r')] + b.lines + [('ds', f'ds_write_b32 v{vRw}, v{ST+1}', 'w2')]
    for j in range(4): fill[27+j] = ops[8*j:8*j+8]
    assert len(ops) <= 32
    fill[31] = [('ds', f'ds_read_b128 {vr(RR+4*q,4)}, v{vRs} offset:{32*q}', 'rr') for q in range(4)]
    def F(lst):
        for x in lst:
            if isinstance(x, str): a(x)
            elif x[0] == 'need': need(x[1])
            elif x[0] == 'sr': sr_(x[1])
            elif x[0] == 'ds': ds(x[1], x[2])
    TM = 126; kv1 = cfg.get('p_kv1', 4)
    oflag = f's_mov_b64 exec, 1\nbuffer_store_dword v{TM}, v{vPM+1}, {WS}, s{sFO} offen sc1\ns_mov_b64 exec, -1'
    for ks in range(32):
        f = XF + 4*(ks % 3); c = lambda r: '0' if ks == 0 else vr(r, 16)
        d = fill[ks]
        if ks == cfg.get('p_def', 5):
            a(f's_cmp_eq_u32 s{sPre}, 2\ns_cbranch_scc0 L_p_nof\ns_waitcnt vmcnt(0)\n{oflag}\nL_p_nof:')
        need(f'x{ks}')
        a(f'v_mfma_f32_32x32x16_bf16 {vr(AK,16)}, {wreg(1,4*ks,4)}, {vr(f,4)}, {c(AK)}')
        if ks + 2 < 32 or kv1: xr(ks+2)
        n1 = 1 if len(d) < 10 else 3
        if kv1: n1 = (len(d) + 1)//2
        F(d[:n1])
        if ks == 0 or not cfg.get('x_p'): a(f'v_mfma_f32_32x32x16_bf16 {vr(AV,16)}, {vr(f,4)}, {wreg(2,4*ks,4)}, {c(AV)}')
        F(d[n1:n1+4])
        if not kv1: a(f'v_mfma_f32_32x32x16_bf16 {vr(AQ,16)}, {wreg(0,4*ks,4)}, {vr(f,4)}, {c(AQ)}')
        F(d[n1+4:])
    def fin(acc, sc, goff_, loff):
        l = [f'v_pk_mul_f32 {vr(acc+r,2)}, {vr(acc+r,2)}, {sc(r)}' for r in range(0, 16, 2)]
        l += [f'v_cvt_pk_bf16_f32 v{acc+r}, v{acc+2*r}, v{acc+2*r+1}' for r in range(8)]
        if goff_ is not None: l += [f'v_bfi_b32 v{acc+4*h}, 1, s{sFKV}, v{acc+4*h}' for h in range(2)]
        for h in range(2):
            if goff_ is not None: l.append(f'buffer_store_dwordx4 {vr(acc+4*h,4)}, v{vL16}, {WS}, s{goff_} offen offset:{h*1024} sc1')
            l.append(('ds', f'ds_write_b128 v{vPw}, {vr(acc+4*h,4)} offset:{loff + h*1024}', 'pw'))
        return l
    cor = [f'v_mfma_f32_32x32x8_bf16 {vr(AK,16)}, {vr(vCS,2)}, {vr(vMN+2,2)}, {vr(AK,16)}', f'v_mfma_f32_32x32x8_bf16 {vr(AV,16)}, {vr(vMN,2)}, {vr(vCS+2,2)}, {vr(AV,16)}',
           f'v_mfma_f32_32x32x8_bf16 {vr(AQ,16)}, {vr(vCS,2)}, {vr(vMN,2)}, {vr(AQ,16)}']
    finkv = fin(AK, lambda r: vr(ST,2), sKV, 8192) + [('need', 'rr')] + fin(AV, lambda r: vr(RR+r,2), 7, 16384)
    a(f's_add_u32 s7, s{sKV}, 0x2000')
    if kv1:
        a(cor.pop(0)); a(cor.pop(0))
        for ks in range(32, 64):
            need(f'x{ks}')
            a(f'v_mfma_f32_32x32x16_bf16 {vr(AQ,16)}, {wreg(0,4*(ks-32),4)}, {vr(XF+4*(ks%3),4)}, {"0" if ks == 32 else vr(AQ,16)}')
            if ks + 2 < 64: xr(ks+2)
            if ks > 32: F(finkv[:kv1]); del finkv[:kv1]
    T(1)
    kmaddr = f'''s_sub_u32 s{sVal}, s{sSeg}, 2
    s_and_b32 s6, s{sVal}, {ring}
    s_lshl_b32 s6, s6, 17
    s_add_u32 s{sKM}, s{sKM0}, s6
    s_lshr_b32 s6, s{sVal}, 2
    s_andn2_b32 s{sTag}, 1, s6
    s_lshl_b32 s6, s{sVal}, 18
    s_add_u32 s{sOI}, s{sOI0}, s6
    s_add_u32 s{sVal}, s{sVal}, 1
    buffer_load_dwordx4 {vr(KMD,4)}, v{vL16}, {WS}, s{sKM} offen sc1'''
    a(kmaddr)
    a(f'buffer_load_dword v{vFX}, v{vL4}, {WS}, s{sFX} offen sc1')
    F(cor); F(finkv); F(fin(AQ, lambda r: vr(ST,2), None, 0))
    T(2)
    a(f's_cmp_eq_u32 s{sI}, 0\ns_cbranch_scc1 L_p_first')
    a('L_p_att:')
    KF, QF, VF, S_ = 32, 64, 80, 96
    MT, MV, O_, PX, m_, t_, TM = 32, 48, 56, 120, 124, 125, 126
    for ks in range(4):
        a(f'ds_read_b128 {vr(QF+4*ks,4)}, v{vQx} offset:{ks*2048}')
        for T_ in range(2): a(f'ds_read_b128 {vr(KF+16*T_+4*ks,4)}, v{vKx} offset:{ks*2048+T_*128}')
    for ks in range(4):
        a(f's_waitcnt lgkmcnt({9-3*ks})')
        for T_ in range(2):
            a(f'v_mfma_f32_16x16x32_bf16 {vr(S_+4*T_,4)}, {vr(KF+16*T_+4*ks,4)}, {vr(QF+4*ks,4)}, {vr(vMK+4*T_,4) if ks == 0 else vr(S_+4*T_,4)}')
    for u in range(2):
        for t in range(2): a(f'ds_read_b128 {vr(VF+8*u+4*t,4)}, v{vVx} offset:{u*2048+t*256}')
    def tryx(again=0, keep=0):
        L = a.lab('nx'); L2 = a.lab('nx')
        a(f's_cmp_lg_u32 s{sPre}, 0\ns_cbranch_scc1 {L}' if keep else f's_mov_b32 s{sPre}, 0')
        a(f'''s_cmp_ge_u32 s{sI}, 31
        s_cbranch_scc1 {L}
        v_cmp_gt_u32 vcc, s{sNeed}, v{vFX}
        s_cbranch_vccnz {L2 if again else L}
        s_mov_b32 s{sPre}, 1''')
        xdma()
        if again: a(f's_branch {L}\n{L2}:\nbuffer_load_dword v{vFX}, v{vL4}, {WS}, s{sFX} offen sc1')
        a(f'{L}:')
    ex = cfg.get('p_ex', 1)
    if ex: a(f's_mov_b32 s{sPre}, 0\ns_barrier')
    a(f'''s_mov_b32 s7, 0
    s_waitcnt vmcnt({0 if kv1 else 4})
    L_p_km:
    v_bitop3_b32 v{TM}, v{KMD}, s{sTag}, 1 bitop3:0x28
    v_cmp_ne_u32 vcc, 0, v{TM}
    s_cbranch_vccz L_p_kmok
    buffer_load_dwordx4 {vr(KMD,4)}, v{vL16}, {WS}, s{sKM} offen sc1''')
    if ex:
        a(f'''s_cmp_lg_u32 s{sPre}, 0
        s_cbranch_scc1 L_p_k0
        s_cmp_ge_u32 s{sI}, 31
        s_cbranch_scc1 L_p_k0
        v_cmp_gt_u32 vcc, s{sNeed}, v{vFX}
        s_cbranch_vccnz L_p_k1
        s_mov_b32 s{sPre}, 1''')
        xdma()
        a('s_waitcnt vmcnt(8)\ns_branch L_p_k2\nL_p_k1:')
    a(f'buffer_load_dword v{vFX}, v{vL4}, {WS}, s{sFX} offen sc1\nL_p_k0:\ns_waitcnt vmcnt(0)\nL_p_k2:')
    spin_check(a, 7, 23, 'L_p_km')
    a('L_p_kmok:')
    if ex: tryx(1, 1)
    a(f'''    ds_write_b64 v{vTw}, {vr(KMD,2)}
    ds_write_b64 v{vTw}, {vr(KMD+2,2)} offset:128
    v_max3_f32 v{m_}, v{S_}, v{S_+1}, v{S_+2}
    v_max3_f32 v{t_}, v{S_+4}, v{S_+5}, v{S_+6}
    v_max3_f32 v{m_}, v{m_}, v{S_+3}, v{S_+7}
    s_waitcnt lgkmcnt(0)
    s_barrier''')
    T(3)
    for ks in range(4):
        for sub in range(2): a(f'ds_read_b64_tr_b16 {vr(MT+4*ks+2*sub,2)}, v{vTr} offset:{ks*256+sub*64}')
    for k in range(4): a(f'ds_read_b64 {vr(MV+2*k,2)}, v{vMv} offset:{k*128}')
    p2 = 1
    if not ex: tryx(p2)
    for ks in range(4):
        a(f's_waitcnt lgkmcnt({10-2*ks})')
        a(f'v_mfma_f32_16x16x32_bf16 {vr(S_+8,4)}, {vr(MT+4*ks,4)}, {vr(QF+4*ks,4)}, {"0" if ks == 0 else vr(S_+8,4)}')
    sv = [S_+i for i in range(8)] + [S_+10, S_+11]
    a(f'''v_max_f32 v{m_}, v{m_}, v{t_}
    v_max3_f32 v{m_}, v{m_}, v{sv[8]}, v{sv[9]}
    v_mov_b32 v{t_}, v{m_}
    v_permlane32_swap_b32 v{m_}, v{t_}
    v_max_f32 v{m_}, v{m_}, v{t_}
    v_max_f32 v{t_}, v{m_}, v{t_}
    v_permlane16_swap_b32 v{m_}, v{t_}
    v_max_f32 v{m_}, v{m_}, v{t_}
    v_mul_f32 v{m_}, s{sC}, v{m_}''')
    for r in [sv[8], sv[9]] + sv[:8]: a(f'v_fma_f32 v{r}, v{r}, s{sC}, -v{m_}')
    for r in (sv[8], sv[9]): a(f'v_exp_f32 v{r}, v{r}')
    SUM = S_ + 12
    a(f'v_exp_f32 v{sv[0]}, v{sv[0]}\nv_cvt_pk_bf16_f32 v{vPM}, v{sv[8]}, v{sv[9]}\nv_exp_f32 v{sv[1]}, v{sv[1]}\ns_waitcnt lgkmcnt(0)')
    a(f'v_mfma_f32_16x16x16_bf16 {vr(SUM,4)}, {vr(vONE,2)}, {vr(vPM,2)}, 0')
    for k in range(4):
        a(f'v_mfma_f32_16x16x16_bf16 {vr(O_+4*k,4)}, {vr(MV+2*k,2)}, {vr(vPM,2)}, 0')
        if k < 3: a(f'v_exp_f32 v{sv[2+2*k]}, v{sv[2+2*k]}\nv_exp_f32 v{sv[3+2*k]}, v{sv[3+2*k]}')
    for k in range(4): a(f'v_cvt_pk_bf16_f32 v{PX+k}, v{sv[2*k]}, v{sv[2*k+1]}')
    for h in range(2): a(f'v_mfma_f32_16x16x16_bf16 {vr(SUM,4)}, {vr(vONE,2)}, {vr(PX+2*h,2)}, {vr(SUM,4)}')
    for k in range(4): a(f'v_mfma_f32_16x16x32_bf16 {vr(O_+4*k,4)}, {vr(VF+4*k,4)}, {vr(PX,4)}, {vr(O_+4*k,4)}')
    a(f'v_rcp_f32 v{SUM}, v{SUM}\nv_mov_b32 v{TM}, s{sVal}')
    for u in range(2):
        for r in range(0, 8, 2): a(f'v_pk_mul_f32 {vr(O_+8*u+r,2)}, {vr(O_+8*u+r,2)}, {vr(SUM,2)} op_sel_hi:[1,0]')
        for r in range(4): a(f'v_cvt_pk_bf16_f32 v{O_+8*u+r}, v{O_+8*u+2*r}, v{O_+8*u+2*r+1}')
        a(f'buffer_store_dwordx4 {vr(O_+8*u,4)}, v{vOs}, {WS}, s{sOI} offen offset:{u*2048} sc1')
    if p2:
        a(f'''s_cmp_ge_u32 s{sI}, 31
        s_cbranch_scc1 L_p_of
        s_cmp_lg_u32 s{sPre}, 0
        s_cbranch_scc1 {'L_p_of3' if cfg.get('p_def', 1) else 'L_p_of'}
        s_waitcnt vmcnt(2)
        v_cmp_gt_u32 vcc, s{sNeed}, v{vFX}
        s_cbranch_vccnz L_p_of
        s_mov_b32 s{sPre}, 1''')
        xdma()
        a(f's_waitcnt vmcnt(8)\n{oflag}\ns_waitcnt vmcnt(1)\ns_branch L_p_of2')
        a(f'L_p_of3:\ns_mov_b32 s{sPre}, 2')
        if tm: a('s_waitcnt vmcnt(10)')
        T(5)
        a('s_waitcnt vmcnt(2)\ns_branch L_p_of2')
    a(f'L_p_of:\ns_waitcnt vmcnt(0)\n{oflag}\nL_p_of2:')
    T(4)
    a('L_p_next:')
    for r in (vKx, vQx, vVx, vPw): a(f'v_xor_b32 v{r}, {PKX:#x}, v{r}')
    if tm:
        a(f'''s_waitcnt lgkmcnt(0)
        s_lshl_b32 s6, s{sX}, 5
        s_add_u32 s6, s6, s{sR}
        s_lshl_b32 s6, s6, 2
        s_add_u32 s6, s6, s{sW}
        s_lshl_b32 s6, s6, 6
        s_add_u32 s6, s6, s{sI}
        s_lshl_b32 s6, s6, 6
        s_add_u32 s6, s6, {160*MB_}''')
        for k in range(8): a(f'v_mov_b32 v{AQ+k}, s{70+2*k}')
        a(f'''s_mov_b64 exec, 1
        buffer_store_dwordx4 {vr(AQ,4)}, v{vPM+1}, {WS}, s6 offen
        buffer_store_dwordx4 {vr(AQ+4,4)}, v{vPM+1}, {WS}, s6 offen offset:16
        s_mov_b64 exec, -1''')
    a(f'''s_add_u32 s{sI}, s{sI}, 1
    s_add_u32 s{sSeg}, s{sSeg}, 2
    s_cmp_gt_u32 s{sI}, 32
    s_cbranch_scc1 L_p_end
    s_cmp_eq_u32 s{sI}, 32
    s_cbranch_scc1 L_p_tail
    s_cmp_eq_u32 s{sPre}, 0
    s_cbranch_scc1 L_p_xwait
    s_branch L_p_loop
    L_p_tail:''')
    a(kmaddr)
    a(f'''s_waitcnt vmcnt(0) lgkmcnt(0)
    s_barrier
    s_branch L_p_att
    L_p_first:''')
    mark(a, cfg, 7, KMD)
    a(f's_waitcnt vmcnt(0) lgkmcnt(0)\ns_barrier')
    tryx()
    a(f's_cmp_lg_u32 s{sLY}, 0\ns_cbranch_scc1 L_p_f2\ns_mov_b32 s{sVal}, 127')
    poll_ge(a, vL16, sFX, sVal, AQ, 24, 8)
    a('''L_p_f2:
    s_waitcnt vmcnt(0)
    s_branch L_p_next
    L_p_end:''')
    if cfg.get('cnt'): mark(a, cfg, 10, 16, 99)
    a('''s_waitcnt vmcnt(0)
    s_endpgm''')
```

```python
from common import *
L_SH, L_KB, L_VB, L_QK, L_OB, L_WO = 0, 8192, 16384, 24576, 28928, 32768
GQ, RS = 1088, 288
vIdx, vL16, vQKw, vXr, vKx, vOw, vOr, vWo, vPst, vVx, vONE, vPM = 0, 1, 2, 3, 4, 5, 6, 7, 8, 9, 10, 12
vT, MA, KX, QK, VA, VC, SA = 16, 20, 52, 84, 100, 108, 116
WV = 128
sStep, sTag, sC = 32, 33, 34
sKV0, sKM0, sFKM, sFKV0, sPB0, sPB1, sPR0, sPR1, sMst, sMld = 35, 36, 37, 38, 39, 40, 41, 42, 43, 44
sA1, sA2, sA3, sSh0, sNeed, sKV, sFKV, sKM, sM0K = 45, 46, 47, 48, 49, 50, 51, 52, 53
sLo, sVal = 54, 56
LY = 58
sKD, sTKM = 37, 59

def wfrag(m, t, ct):
    o = (t*2 + ct)*8
    return ar(o, 8) if m == 0 else (ar(128+o, 8) if m == 1 else vr(WV+o, 8))
def wpair(m, r):
    return ar(r, 2) if m == 0 else (ar(128+r, 2) if m == 1 else vr(WV+r, 2))

def timeout_fix(a, cnt, code, retry):
    L = a.lab('tf')
    a(f'''s_and_b32 s6, s{cnt}, 31
    s_cmp_lg_u32 s6, 31
    s_cbranch_scc1 {L}
    buffer_wbl2 sc1
    s_waitcnt vmcnt(0)
    buffer_inv sc1
    s_waitcnt vmcnt(0)
    {L}:''')
    spin_check(a, cnt, code, retry)

def load_weights(a, cfg, done_cb, hook=lambda c: None):
    vG, vH0, vH1, vR0, vRo, vt, vWw = 116, 118, 119, 120, 124, 126, 127
    done_cb(0)
    a(f'''v_bfe_u32 v16, v0, 4, 1
    v_lshrrev_b32 v17, 5, v0
    v_lshl_or_b32 v18, v17, 5, v16
    s_and_b32 s6, s{sW}, 1
    s_lshr_b32 s7, s{sW}, 1
    s_lshl_b32 s60, s6, 4
    s_lshl_b32 s7, s7, 6
    s_add_u32 s7, s7, s60
    v_add_u32 v18, s7, v18
    v_lshlrev_b32 v18, 13, v18
    v_lshrrev_b32 v19, 4, v0
    s_lshl_b32 s6, s6, 2
    v_or_b32 v19, s6, v19
    v_lshlrev_b32 v19, 1, v19
    v_and_b32 v{vG}, 15, v0
    v_xor_b32 v19, v19, v{vG}
    v_lshl_or_b32 v{vG}, v19, 4, v18''')
    a(f'''v_bfe_u32 v18, v0, 2, 2
    v_lshl_or_b32 v19, v16, 2, v18
    v_lshl_or_b32 v18, v17, 3, v18
    v_lshl_or_b32 v18, v16, 5, v18
    v_lshlrev_b32 v18, 8, v18
    s_lshl_b32 s6, s{sW}, 1
    v_xor_b32 v19, s6, v19
    v_lshl_or_b32 v18, v19, 5, v18
    v_and_b32 v19, 3, v0
    v_lshl_or_b32 v18, v19, 3, v18
    v_add_u32 v{vR0}, {L_WO}, v18
    v_xor_b32 v{vR0+1}, 32, v{vR0}
    v_add_u32 v{vR0+2}, 0x10000, v{vR0}
    v_add_u32 v{vR0+3}, 0x10000, v{vR0+1}''')
    a(f'''v_lshrrev_b32 v16, 4, v0
    v_and_b32 v17, 15, v0
    v_lshlrev_b32 v18, 1, v16
    v_xor_b32 v17, v17, v18
    v_lshlrev_b32 v17, 4, v17
    v_lshl_or_b32 v{vH0}, v16, 10, v17
    v_xor_b32 v{vH1}, 0x80, v{vH0}
    s_lshl_b32 s60, s{sW}, 13
    s_add_u32 s60, s60, {L_WO}
    v_bfe_u32 v17, v0, 2, 2
    v_bfe_u32 v18, v0, 4, 1
    v_lshl_or_b32 v18, v18, 2, v17
    v_lshl_or_b32 v17, v16, 3, v17
    v_lshlrev_b32 v17, 8, v17
    v_lshl_or_b32 v17, v18, 5, v17
    v_lshl_or_b32 v17, v19, 3, v17
    v_add_u32 v{vRo}, s60, v17
    v_add_u32 v{vWw}, s60, v{vL16}
    s_lshl_b32 s63, s{sR}, 8''')
    def issue(c):
        m, j = c // 4, c % 4
        if m < 3: a(f's_add_u32 s61, s63, {j << 20}')
        else: a(f's_lshl_b32 s61, s{sR}, 17\ns_lshl_b32 s62, s{sW}, 15\ns_add_u32 s61, s61, s62\ns_add_u32 s61, s61, {j*256}')
        for i in range(8):
            c0, v = (i*2*8192, vG) if m < 3 else (i*4096, vH1 if (i//2) % 2 else vH0)
            a(f'''s_add_u32 m0, s60, {j*32768 + i*1024}
            s_add_u32 s62, s61, {c0}
            buffer_load_dwordx4 v{v}, s[{16+4*m}:{19+4*m}], s62 offen lds''')
    for c in range(3): issue(c)
    for c in range(16):
        m, b = c // 4, c % 4
        a(f's_waitcnt vmcnt({8*min(2, 15-c)})')
        if c <= 12: a('s_barrier')
        if c + 3 < 16: issue(c + 3)
        hook(c)
        if m < 3:
            Le = a.lab('lw'); Ls = [a.lab('lv') for _ in range(4)]
            for w in range(1, 4): a(f's_cmp_eq_u32 s{sW}, {w}\ns_cbranch_scc1 {Ls[w]}')
            for w in range(4):
                a(f'{Ls[w]}:')
                j = (b - w) & 3
                for kbi in range(2):
                    for ct in range(2):
                        for hf in range(2):
                            for rp in range(2):
                                r = ((2*j + kbi)*2 + ct)*8 + 4*hf + 2*rp
                                a(f'ds_read_b64_tr_b16 {wpair(m, r)}, v{vR0 + ct + 2*(b//2)} offset:{(b % 2)*32768 + (4*rp + 16*hf + 64*kbi)*256}')
                if w < 3: a(f's_branch {Le}')
            a(f'{Le}:\ns_waitcnt lgkmcnt(0)')
        else:
            for ct in range(8):
                a(f'v_xor_b32 v{vt}, {ct*32}, v{vRo}')
                for rp in range(2):
                    a(f'ds_read_b64_tr_b16 {vr(MA + 4*ct + 2*rp, 2)}, v{vt} offset:{rp*1024}')
            a('s_waitcnt lgkmcnt(0)')
            for ct in range(8):
                a(f'ds_write_b128 v{vWw}, {vr(MA + 4*ct, 4)} offset:{ct*1024}')
            a(f's_waitcnt lgkmcnt(0)\nv_add_u32 v{vRo}, 0x8000, v{vRo}\nv_add_u32 v{vWw}, 0x8000, v{vWw}')

def kv_addr(a, ring):
    a(f'''s_add_u32 s6, s{sStep}, 1
    s_and_b32 s6, s6, {ring}
    s_lshl_b32 s6, s6, 19
    s_add_u32 s{sKV}, s{sKV0}, s6
    s_add_u32 s{sFKV}, s{sKV}, 0x2000''')

def rec(a, cfg):
    ring = cfg.get('ring', 3); bar = cfg.get('rec_bar', 1); tm = cfg.get('rec_time', 0)
    def T(slot):
        if tm: a(f's_mem{"real" if cfg.get("rt") else ""}time s[{70+2*slot}:{71+2*slot}]')
    if 'r_al' in cfg: a('.p2align 8\n' + 's_nop 0\n'*cfg['r_al'])
    a('L_rec:')
    def sel(dst, pair):
        a(f's_cmp_eq_u32 s{LY}, 0\ns_cselect_b32 s{dst}, {pair[0]:#x}, {pair[1]:#x}' if False else
          f's_mul_i32 s{dst}, s{LY}, {pair[1]-pair[0]:#x}\ns_add_u32 s{dst}, s{dst}, {pair[0]:#x}')
    a(f's_and_b32 s{LY}, s{sX}, 1')
    sel(sKV0, KVX); sel(sKM0, KVM); sel(sPB0, PBUF); sel(sMld, MBUF)
    a(f'''s_lshl_b32 s6, s{sR}, 14
    s_lshl_b32 s7, s{sW}, 11
    s_add_u32 s{sKV0}, s{sKV0}, s6
    s_add_u32 s{sKV0}, s{sKV0}, s7
    s_mov_b32 s{sSh0}, s7
    s_lshl_b32 s6, s{sR}, 8
    s_add_u32 s{sMst}, s{sMld}, s6
    s_add_u32 s{sMld}, s{sMld}, s7
    s_lshl_b32 s7, s{sR}, 13
    s_add_u32 s{sPR0}, s{sPB0}, s7
    s_add_u32 s{sPR1}, s{sPR0}, 4096
    s_add_u32 s{sPB0}, s{sPB0}, s6
    s_add_u32 s{sPB1}, s{sPB0}, 32768
    s_lshl_b32 s7, s{sR}, 12
    s_add_u32 s{sKM0}, s{sKM0}, s7
    s_lshl_b32 s7, s{sW}, 10
    s_add_u32 s{sKM0}, s{sKM0}, s7
    s_add_u32 s{sM0K}, s{sSh0}, {L_KB}
    s_add_u32 s{sKD}, s{sSh0}, {L_VB}
    s_lshl_b32 s6, s{LY}, 13
    s_lshl_b32 s7, s{sR}, 7
    s_add_u32 s{sFKV0}, s6, s7
    s_add_u32 s{sFKV0}, s{sFKV0}, {FKV:#x}
    s_mov_b32 s{sLo}, 0x00ff00ff
    s_mov_b32 s{sLo+1}, 0x00ff00ff
    s_mov_b32 s{sVal}, 0x33333333
    s_mov_b32 s{sVal+1}, 0x33333333
    s_mov_b32 s{sC}, 0x3e0293ee''')
    for k, s in ((1, sA1), (2, sA2), (3, sA3)):
        a(f's_add_u32 s6, s{sW}, {k}\ns_and_b32 s6, s6, 3\ns_lshl_b32 s{s}, s6, 11')
    lanec = (f'''v_and_b32 v16, 15, v0
    v_lshrrev_b32 v17, 4, v0
    v_lshlrev_b32 v{vL16}, 4, v0
    s_lshl_b32 s6, s{sW}, 8
    s_add_u32 s6, s6, {L_QK}
    v_mul_u32_u24 v18, {GQ}, v17
    v_lshl_add_u32 v18, v16, 3, v18
    v_add_u32 v{vQKw}, s6, v18
    v_and_b32 v18, 3, v0
    v_mul_u32_u24 v18, {GQ}, v18
    v_bfe_u32 v19, v0, 2, 3
    v_lshl_add_u32 v18, v19, 3, v18
    v_lshrrev_b32 v19, 5, v0
    v_lshl_add_u32 v18, v19, 7, v18
    v_add_u32 v{vXr}, {L_QK}, v18
    v_and_b32 v18, 7, v0
    v_bfe_u32 v19, v0, 3, 1
    v_lshl_or_b32 v18, v19, 4, v18
    v_lshlrev_b32 v18, 4, v18
    v_lshl_add_u32 v18, v17, 9, v18
    v_add_u32 v{vKx}, {L_KB}, v18
    v_lshrrev_b32 v18, 2, v16
    v_and_b32 v19, 1, v0
    v_lshl_or_b32 v18, v18, 1, v19
    v_mul_u32_u24 v18, {RS}, v18
    v_lshl_add_u32 v18, v17, 2, v18
    s_lshl_b32 s6, s{sW}, 6
    s_add_u32 s6, s6, {L_OB}
    v_add_u32 v{vOw}, s6, v18
    v_lshrrev_b32 v18, 1, v16
    v_mul_u32_u24 v18, {RS}, v18
    v_lshl_add_u32 v18, v17, 5, v18
    v_lshl_add_u32 v18, v19, 4, v18
    v_add_u32 v{vOr}, {L_OB}, v18
    s_lshl_b32 s6, s{sW}, 15
    s_add_u32 s6, s6, {L_WO}
    v_add_u32 v{vWo}, s6, v{vL16}
    v_lshrrev_b32 v18, 2, v16
    v_lshlrev_b32 v18, 13, v18
    v_and_b32 v19, 3, v0
    v_lshl_or_b32 v19, v17, 2, v19
    v_lshl_or_b32 v18, v19, 4, v18
    s_lshl_b32 s6, s{sW}, 16
    v_add_u32 v{vPst}, s6, v18
    v_lshlrev_b32 v18, 4, v16
    v_lshl_or_b32 v18, v17, 9, v18
    v_add_u32 v{vVx}, s{sKD}, v18
    v_mov_b32 v{vONE}, 0x3f803f80
    v_mov_b32 v{vONE+1}, 0x3f803f80
    ''' + '\n'.join(f'v_mov_b32 v{vPM+r}, 0' for r in range(4)))
    a(lanec)
    a(f"""buffer_store_dwordx4 {vr(vPM,4)}, v{vPst}, {WS}, s{sPB0} offen sc1
    buffer_store_dwordx4 {vr(vPM,4)}, v{vPst}, {WS}, s{sPB1} offen sc1""")
    for k in range(4): a(f's_add_u32 s6, s{sKM0}, {k << 17}\nbuffer_store_dwordx4 {vr(vPM,4)}, v{vL16}, {WS}, s6 offen sc1')
    a(f"""s_mov_b64 exec, 0xffff
    buffer_store_dwordx4 {vr(vPM,4)}, v{vL16}, {WS}, s{sMst} offen sc1
    s_mov_b64 exec, -1""")
    if cfg.get('integ'):
        a(f's_cmp_eq_u32 s{sX}, 1\ns_cbranch_scc1 L_pro\ns_branch L_rec3\nL_rec2:')
        a(lanec)
        a('L_rec3:')
    srd(a, 16, P_WQ, 4*MB_); srd(a, 20, P_WK, 4*MB_); srd(a, 24, P_WV, 4*MB_); srd(a, 28, P_WO, 4*MB_)
    def kvld(seg):
        a(f'''s_sub_u32 s60, {seg}, s{sM0K}
        s_add_u32 s61, s60, 4096''')
        return [f'buffer_load_dwordx4 {vr(KX+16*T_+4*ks,4)}, v{vKx}, {WS}, s{60+ks//2} offen offset:{(ks%2)*2048+T_*128} sc1' for ks in range(4) for T_ in range(2)] + [
                f'buffer_load_dwordx4 {vr(VC+4*t,4)}, v{vVx}, {WS}, s60 offen offset:{256*t} sc1' for t in range(2)]
    def hook(c):
        if c == 8:
            srd(a, 16, P_M0, 8192)
            a(f"""v_and_b32 v16, 15, v0
            v_lshrrev_b32 v17, 1, v16
            v_lshlrev_b32 v17, 10, v17
            v_and_b32 v18, 1, v0
            v_lshl_or_b32 v17, v18, 6, v17
            v_lshrrev_b32 v19, 4, v0
            v_lshl_or_b32 v17, v19, 3, v17
            s_lshl_b32 s6, s{sW}, 8""")
            for k, off in enumerate((0, 32, 128, 160)):
                a(f'buffer_load_dwordx2 {vr(QK+2*k, 2)}, v17, s[16:19], s6 offen offset:{off}')
            a(f"""v_mov_b32 v19, 0x4444
            v_mov_b32 v16, 0xeeee
            v_cmp_eq_u32 vcc, 0, v18
            v_cndmask_b32 v{vIdx}, v16, v19, vcc""")
            a(f'''v_mbcnt_lo_u32_b32 v16, -1, 0
            v_and_b32 v16, 3, v16
            v_lshlrev_b32 v16, 6, v16
            buffer_load_dword v17, v16, {DBG}, 0 offen offset:{D_DONE[0]*4} sc1''')
        if c == 15:
            a('v_cmp_ne_u32 vcc, 64, v17\ns_cbranch_vccz L_rec_dn')
            wait_done(a, vT, vT+1, 10)
            a('L_rec_dn:')
            for x in kvld(f's{sKV0}'): a(x)
    load_weights(a, cfg, lambda n: role_done(a, cfg, n), hook)
    mark(a, cfg, 2, 16)
    for r in range(0, 8, 2): a(f'v_mov_b64 {vr(MA+r,2)}, {vr(QK+r,2)}')
    a(f's_mov_b32 s{sStep}, 0\ns_mov_b32 s{sNeed}, 1\ns_mov_b32 s{sTag}, 1')
    kvdma = [f's_mov_b32 m0, s{sM0K}', f'buffer_load_dwordx4 v{vL16}, {WS}, s{sKV} offen sc1 lds', f'buffer_load_dwordx4 v{vL16}, {WS}, s{sKV} offen offset:1024 sc1 lds',
             f's_mov_b32 m0, s{sKD}', f'buffer_load_dwordx4 v{vL16}, {WS}, s{sFKV} offen sc1 lds', f'buffer_load_dwordx4 v{vL16}, {WS}, s{sFKV} offen offset:1024 sc1 lds']
    if cfg.get('x_nokv'): kvdma = []
    kvchk = [f'v_bitop3_b32 v{vT+k}, v{KX+8*k}, v{KX+8*k+4}, s{sTKM} bitop3:0x7e' for k in range(4)] + [
        f'v_or3_b32 v{vT}, v{vT}, v{vT+1}, v{vT+2}', f'v_bitop3_b32 v{vT+1}, v{VC}, v{VC+4}, s{sTKM} bitop3:0x7e',
        f'v_or3_b32 v{vT}, v{vT}, v{vT+1}, v{vT+3}', f'v_and_b32 v{vT}, 1, v{vT}', f'v_cmp_ne_u32 vcc, 0, v{vT}']
    sBad = 60
    kvchk2 = kvchk[:-1] + [f'v_cmp_ne_u32 s[{sBad}:{sBad+1}], 0, v{vT}']
    def kvslow(ok, first=0):
        L = a.lab('kvs'); L1 = a.lab('kvt')
        a(f'''s_and_b32 s6, s{sStep}, {ring}
        s_lshl_b32 s6, s6, 19
        s_add_u32 s6, s6, s{sKV0}''')
        ld = kvld('s6')
        a(f's_mov_b32 s7, 0\n{f"s_branch {L1}" if first else ""}\n{L}:')
        for x in ld: a(x)
        a(f'{L1}:\ns_waitcnt vmcnt(0)')
        for x in kvchk: a(x)
        a(f's_cbranch_vccz {ok}')
        spin_check(a, 7, 13, L)
    def prep():
        for k, s in enumerate((sSh0, sA1, sA2, sA3)): a(f'v_add_u32 v{SA+k}, s{s}, v{vL16}')
        for r in range(QK, QK+24, 2): a(f'v_mov_b64 {vr(r,2)}, 0')
    a(f's_mov_b32 s{sTKM}, 1')
    kvslow('L_rec_go', 1)
    a('L_rec_go:')
    kv_addr(a, ring)
    prep()
    a(f's_mov_b64 s[{sBad}:{sBad+1}], 0')
    if cfg.get('cnt'): a('s_mov_b32 s99, 0')
    mark(a, cfg, 7, 16)
    a('s_branch L_rec_step')
    def gl(r): a(f"""buffer_load_dwordx4 {vr(r,4)}, v{vL16}, {WS}, s{sMld} offen sc1
        buffer_load_dwordx4 {vr(r+4,4)}, v{vL16}, {WS}, s{sMld} offen offset:1024 sc1""")
    def gchk(r, ok): a(f"""v_bitop3_b32 v{vT}, v{r}, v{r+2}, s{sTag} bitop3:0x7e
        v_bitop3_b32 v{vT+1}, v{r+4}, v{r+6}, s{sTag} bitop3:0x7e
        v_bitop3_b32 v{vT}, v{vT}, v{vT+1}, 1 bitop3:0xa8
        v_cmp_ne_u32 vcc, 0, v{vT}
        s_cbranch_vccz {ok}""")
    gs = [MA, SA+4][:cfg.get('g_sets', 2)]; ng = len(gs)
    def fill(n):
        for k in range(n): a(f'v_mov_b32 v{vT+2}, 0')
    kxr = [f'ds_read_b128 {vr(KX+16*T_+4*ks,4)}, v{vKx} offset:{ks*2048+T_*128}' for ks in range(4) for T_ in range(2)]
    a('L_rec_loop:')
    pw = cfg.get('prep_at', 2)
    if pw == 1: prep()
    fill(cfg.get('g_pre', 0))
    gl(MA)
    a('s_mov_b32 s7, 0')
    if pw == 2: prep()
    fill(cfg.get('g_gap', 0))
    if ng > 1: gl(gs[1])
    if pw == 3: prep()
    a('s_branch L_rec_gather1')
    a('L_rec_gather:')
    for k in range(ng):
        gl(gs[k-1])
        if k == 0: a('L_rec_gather1:')
        a(f's_waitcnt vmcnt({2*(ng-1)})')
        gchk(gs[k], f'L_rec_got{k}' if k else 'L_rec_got')
    timeout_fix(a, 7, 12, 'L_rec_gather')
    for k in range(1, ng):
        a(f'L_rec_got{k}:')
        for r in range(0, 8, 2): a(f'v_mov_b64 {vr(MA+r,2)}, {vr(gs[k]+r,2)}')
        if k < ng-1: a('s_branch L_rec_got')
    a(f"""L_rec_got:
    s_mov_b32 s63, s7
    s_xor_b32 s{sTag}, s{sTag}, 1
    L_rec_step:""")
    T(0)
    def sm(m, t, ct):
        acc = (QK, QK+8, VA)[m] + 4*ct
        return f'v_smfmac_f32_16x16x64_bf16 {vr(acc,4)}, {vr(MA+4*t,4)}, {wfrag(m,t,ct)}, v{vIdx}'
    def red(acc, dst): return [f'v_add_f32 v{acc}, v{acc}, v{acc+1}', f'v_add_f32 v{acc+2}, v{acc+2}, v{acc+3}', f'v_cvt_pk_bf16_f32 v{dst}, v{acc}, v{acc+2}']
    a(f"""ds_write_b128 v{SA}, {vr(MA,4)}
    ds_write_b128 v{SA}, {vr(MA+4,4)} offset:1024""")
    own = [sm(m, t, ct) for m in range(3) for t in range(2) for ct in range(2)]
    misc = [f's_and_b32 s6, s{sStep}, {ring}', 's_lshl_b32 s6, s6, 17', f's_add_u32 s{sKM}, s{sKM0}, s6', f's_cmp_lg_u64 s[{sBad}:{sBad+1}], 0']
    for x in own[:4]:
        a(x); a(misc.pop(0))
    a('s_waitcnt lgkmcnt(0)\ns_barrier')
    mar = [f'ds_read_b128 {vr(MA+4*t,4)}, v{SA+t//2} offset:{(t%2)*1024}' for t in range(2, 8)]
    a(mar[0]); a(mar[1]); a(own[4]); a(mar[2]); a(mar[3]); a(own[5]); a(mar[4]); a(mar[5])
    for x in own[6:]: a(x)
    a('s_cbranch_scc1 L_rec_kvwait\nL_rec_kvok:')
    dm = list(kvdma); d0 = cfg.get('dma_at', 0)
    for t in range(2, 8):
        a(f's_waitcnt lgkmcnt({7-t})'); a(sm(0,t,0)); a(sm(0,t,1))
        if dm and d0 == 0: a(dm.pop(0))
    r0 = red(QK, vT); r1 = red(QK+4, vT+2); r2 = red(QK+8, vT+1); r3 = red(QK+12, vT+3)
    if cfg.get('k_alt'):
        rr = r0 + r1
        for t in range(2, 8):
            a(sm(1,t,0))
            if dm: a(dm.pop(0))
            a(sm(1,t,1))
            if t > 2: a(rr.pop(0))
            if t > 6: a(rr.pop(0))
        V = [sm(2, t, ct) for t in range(2, 8) for ct in range(2)]
        T(1)
        a(V[0]); a(V[1])
        for x, y in zip(r2, r3): a(x); a(y)
        a(f'ds_write_b64 v{vQKw}, {vr(vT,2)}\nds_write_b64 v{vQKw}, {vr(vT+2,2)} offset:128')
    else:
        fl = {4: r0[:2], 5: [r0[2], r1[0]], 6: r1[1:], 8: r2[:1], 9: r2[1:2], 10: r2[2:], 11: [f'ds_write_b64 v{vQKw}, {vr(vT,2)}']}
        for i in range(12):
            a(sm(1, 2 + i % 6, i // 6))
            if dm and i < 4:
                a(dm.pop(0))
                if dm and dm[0].startswith('s_'): a(dm.pop(0))
                if i == 0 and dm: a(dm.pop(0))
            for x in fl.get(i, []): a(x)
        assert not dm
        T(1)
        V = [sm(2, t, ct) for t in range(2, 8) for ct in range(2)]
        a(V[0]); a(V[1])
        for x in r3: a(x)
        a(f'ds_write_b64 v{vQKw}, {vr(vT+2,2)} offset:128')
    a(V[2]); a(V[3])
    a('s_waitcnt lgkmcnt(0)\ns_barrier')
    for ks in range(4):
        for sub in range(2): a(f'ds_read_b64_tr_b16 {vr(QK+4*ks+2*sub,2)}, v{vXr} offset:{ks*256+sub*64}')
        a(V[4+ks])
    nv = cfg.get('v_pre', 0)
    a(f's_waitcnt vmcnt({len(kvdma)*2//3})')
    for x in V[8:8+nv]: a(x)
    T(2)
    for ks in range(4):
        a(f's_waitcnt lgkmcnt({6-2*ks})')
        c = lambda r: '0' if ks == 0 else vr(r, 4)
        a(f'v_mfma_f32_16x16x32_bf16 {vr(SA,4)}, {vr(KX+4*ks,4)}, {vr(QK+4*ks,4)}, {c(SA)}')
        a(f'v_mfma_f32_16x16x32_bf16 {vr(SA+4,4)}, {vr(KX+16+4*ks,4)}, {vr(QK+4*ks,4)}, {c(SA+4)}')
        a(f'v_mfma_f32_16x16x32_bf16 {vr(SA+8,4)}, {vr(QK+4*ks,4)}, {vr(QK+4*ks,4)}, {c(SA+8)}')
    V = V[8+nv:]
    seq = [(0,0),(1,0),(0,1),(1,1),(2,0),(3,0),(2,1),(3,1),(4,0),(5,0),(4,1),(5,1),(6,0),(7,0),(6,1),(7,1)]
    slots = [KX, KX+8, KX+16, KX+24, MA, MA+8, MA+16, MA+24]
    def word(i):
        ct, kb = seq[i]
        return [f'ds_read_b128 {vr(slots[i%8]+4*hf,4)}, v{vWo} offset:{(2*kb+hf)*8192+ct*1024}' for hf in range(2)]
    pre = sum([word(i) for i in range(8)], [])
    def P(n=1):
        for _ in range(n):
            if pre: a(pre.pop(0))
    def Vn():
        if V: a(V.pop(0))
    Vn(); P(2)
    T(3)
    m_, t_ = QK+4, QK+5; PX = QK+8
    sv = [SA+i for i in range(8)] + [SA+10, SA+11]
    a(f'v_max3_f32 v{m_}, v{sv[0]}, v{sv[1]}, v{sv[2]}')
    a(f'v_max3_f32 v{t_}, v{sv[4]}, v{sv[5]}, v{sv[6]}')
    a(f'v_max3_f32 v{m_}, v{m_}, v{sv[3]}, v{sv[7]}')
    a(f'v_max3_f32 v{t_}, v{t_}, v{sv[8]}, v{sv[9]}')
    a(f'v_max_f32 v{m_}, v{m_}, v{t_}\nv_max_f32 v{t_}, v{m_}, v{t_}')
    Vn(); P(1)
    a(f'v_permlane32_swap_b32 v{m_}, v{t_}\nv_max_f32 v{m_}, v{m_}, v{t_}\nv_max_f32 v{t_}, v{m_}, v{t_}')
    Vn(); P(1)
    a(f'v_permlane16_swap_b32 v{m_}, v{t_}\nv_max_f32 v{m_}, v{m_}, v{t_}\nv_mul_f32 v{m_}, s{sC}, v{m_}')
    while V: Vn()
    def fm(r): a(f'v_fma_f32 v{r}, v{r}, s{sC}, -v{m_}')
    def ex(r): a(f'v_exp_f32 v{r}, v{r}'); P(1)
    fm(sv[8]); fm(sv[9]); ex(sv[8]); ex(sv[9])
    for i in range(4): fm(sv[i])
    SUM = SA+8
    a(f'v_cvt_pk_bf16_f32 v{vPM}, v{sv[8]}, v{sv[9]}')
    ex(sv[0]); ex(sv[1])
    a(f'v_mfma_f32_16x16x16_bf16 {vr(SUM,4)}, {vr(vONE,2)}, {vr(vPM,2)}, 0')
    ex(sv[2]); ex(sv[3])
    for x in red(VA, vT): a(x)
    a(f'v_cvt_pk_bf16_f32 v{PX}, v{sv[0]}, v{sv[1]}\nv_cvt_pk_bf16_f32 v{PX+1}, v{sv[2]}, v{sv[3]}')
    for x in red(VA+4, vT+2): a(x)
    a(f'v_mfma_f32_16x16x16_bf16 {vr(SUM,4)}, {vr(vONE,2)}, {vr(PX,2)}, {vr(SUM,4)}')
    a(f'v_bfi_b32 v{vT}, 1, s{sTKM}, v{vT}')
    for i in range(4, 6): fm(sv[i])
    if not cfg.get('x_nokm'): a(f'buffer_store_dwordx4 {vr(vT,4)}, v{vL16}, {WS}, s{sKM} offen sc1')
    a(f'v_mfma_f32_16x16x16_bf16 {vr(VA,4)}, {vr(vT,2)}, {vr(vPM,2)}, 0')
    for i in range(6, 8): fm(sv[i])
    a(f'v_mfma_f32_16x16x16_bf16 {vr(VA+4,4)}, {vr(vT+2,2)}, {vr(vPM,2)}, 0')
    for i in range(4, 8): ex(sv[i])
    a(f's_cmp_eq_u32 s{sStep}, 63')
    a(f'v_cvt_pk_bf16_f32 v{PX+2}, v{sv[4]}, v{sv[5]}\nv_cvt_pk_bf16_f32 v{PX+3}, v{sv[6]}, v{sv[7]}')
    a('s_cbranch_scc1 L_rec_last')
    T(4)
    a(f'v_mfma_f32_16x16x16_bf16 {vr(SUM,4)}, {vr(vONE,2)}, {vr(PX+2,2)}, {vr(SUM,4)}')
    a(f'v_mfma_f32_16x16x32_bf16 {vr(VA,4)}, {vr(VC,4)}, {vr(PX,4)}, {vr(VA,4)}')
    a(f'v_mfma_f32_16x16x32_bf16 {vr(VA+4,4)}, {vr(VC+4,4)}, {vr(PX,4)}, {vr(VA+4,4)}')
    P(16)
    a(f'v_rcp_f32 v{SUM}, v{SUM}')
    O_ = SA
    for t in range(2):
        for r in (0, 2): a(f'v_pk_mul_f32 {vr(VA+4*t+r,2)}, {vr(VA+4*t+r,2)}, {vr(SUM,2)} op_sel_hi:[1,0]')
        a(f'v_cvt_pk_bf16_f32 v{O_+2*t}, v{VA+4*t}, v{VA+4*t+1}\nv_cvt_pk_bf16_f32 v{O_+2*t+1}, v{VA+4*t+2}, v{VA+4*t+3}')
    a(f"""s_mov_b64 exec, s[{sVal}:{sVal+1}]
    ds_write2_b32 v{vOw}, v{O_}, v{O_+1} offset0:0 offset1:4
    ds_write2_b32 v{vOw}, v{O_+2}, v{O_+3} offset0:8 offset1:12
    s_mov_b64 exec, -1
    v_mfma_f32_32x32x8_bf16 {vr(QK,16)}, {vr(vPM,2)}, {vr(vPM+2,2)}, 0
    v_mfma_f32_32x32x8_bf16 {vr(QK+16,16)}, {vr(vPM,2)}, {vr(vPM+2,2)}, 0
    s_waitcnt {'' if cfg.get('kv_late', 0) else 'vmcnt(1) '}lgkmcnt(0)
    s_barrier
    ds_read_b128 {vr(SA,4)}, v{vOr}
    ds_read_b128 {vr(SA+4,4)}, v{vOr} offset:128""")
    T(5)
    qd = ['o0', 'o1']
    def need(tags):
        last = max([k for k, x in enumerate(qd) if x in tags], default=-1)
        if last >= 0:
            a(f's_waitcnt lgkmcnt({len(qd)-1-last})'); del qd[:last+1]
    PK = SA+8; PK2 = vT
    valu = []
    def pack(ct):
        d = (PK, PK2)[ct//4] + ct % 4
        return red(QK+4*ct, d)
    for i in range(16):
        ct, kb = seq[i]; sl = slots[i % 8]
        need({f'f{i}', f'o{kb}'})
        a(f'v_smfmac_f32_16x16x64_bf16 {vr(QK+4*ct,4)}, {vr(SA+4*kb,4)}, {vr(sl,8)}, v{vIdx}')
        if i + 8 < 16:
            for x in word(i+8): a(x)
            qd += [f'f{i+8}']*2
        if i == 5: valu += pack(0) + pack(1)
        if i == 9: valu += pack(2) + pack(3) + [f'v_bfi_b32 v{PK}, 1, s{sTag}, v{PK}', f'buffer_store_dwordx4 {vr(PK,4)}, v{vPst}, {WS}, s{sPB0} offen']
        if i == 13: valu += pack(4) + pack(5)
        n = 1 if i < 8 else 2
        for x in valu[:n]: a(x)
        del valu[:n]
    for x in valu: a(x)
    for x in pack(6) + pack(7): a(x)
    a(f'v_bfi_b32 v{PK2}, 1, s{sTag}, v{PK2}\nbuffer_store_dwordx4 {vr(PK2,4)}, v{vPst}, {WS}, s{sPB1} offen')
    T(6)
    a(f's_add_u32 s{sStep}, s{sStep}, 1')
    if cfg.get('kv_late', 0): a('s_waitcnt vmcnt(3)\ns_barrier')
    if tm: time_dump(a)
    for x in kxr: a(x)
    a(f'ds_read_b128 {vr(VC,4)}, v{vVx}\nds_read_b128 {vr(VC+4,4)}, v{vVx} offset:256')
    a(f's_lshr_b32 s6, s{sStep}, 2\ns_andn2_b32 s{sTKM}, 1, s6')
    kv_addr(a, ring)
    if pw == 0: prep()
    def rloads(r):
        for i in range(8): a(f'buffer_load_dwordx4 {vr(r+4*i,4)}, v{vL16}, {WS}, s{sPR0 if i < 4 else sPR1} offen offset:{(i%4)*1024} sc1')
    SEL = SA+4; D_ = SA+8; AD = vT+3; F_ = vT
    a(f"""v_bfe_u32 v{AD}, v{vL16}, 4, 4
    v_and_b32 v{F_}, 1, v{AD}
    v_lshlrev_b32 v{F_+1}, 4, v{F_}
    v_mov_b32 v{F_+2}, 0x3f80
    v_lshlrev_b32 v{F_+1}, v{F_+1}, v{F_+2}
    v_lshrrev_b32 v{F_+2}, 1, v{AD}""")
    for k in range(4): a(f'v_cmp_eq_u32 vcc, {k}, v{F_+2}\nv_cndmask_b32 v{SEL+k}, 0, v{F_+1}, vcc')
    a(f"""v_lshlrev_b32 v{F_}, 5, v{F_}
    v_bfe_u32 v{F_+1}, v{AD}, 2, 1
    v_lshl_or_b32 v{F_}, v{F_+1}, 4, v{F_}
    v_bfe_u32 v{F_+1}, v{AD}, 1, 1
    v_lshl_or_b32 v{F_}, v{F_+1}, 3, v{F_}
    v_lshrrev_b32 v{F_+1}, 8, v{vL16}
    v_lshl_or_b32 v{D_}, v{F_+1}, 6, v{F_}
    s_waitcnt lgkmcnt(0)""")
    for x in kvchk2: a(x)
    a(f'v_mov_b32 v{AD}, v{D_}\ns_cmp_lg_u32 s{sW}, 0\ns_cbranch_scc1 L_rec_nored')
    rs = [MA, QK][:cfg.get('r_sets', 1)]; nr = len(rs)
    fill2 = lambda n: [a(f'v_mov_b32 v{F_+2}, 0') for k in range(n)]
    fill2(max(0, cfg.get('r_pre', 0) - (32 if tm else 0)))
    for k in range(nr-1):
        rloads(rs[k]); fill2(cfg.get('r_mid', 0))
    a('s_mov_b32 s7, 0\nL_rec_rr:')
    def rround(r, ok):
        for i in range(8):
            a(f's_waitcnt vmcnt({8*nr-1-i})')
            a(f'v_mfma_f32_16x16x32_bf16 {vr(D_,4)}, {vr(r+4*i,4)}, {vr(SEL,4)}, {"0" if i == 0 else vr(D_,4)}')
            if i % 2: a(f'v_bitop3_b32 v{F_+(i//2 if i < 7 else 1)}, v{r+4*i-4}, v{r+4*i}, s{sTag} bitop3:0x7e')
            if i == 6: a(f'v_or3_b32 v{F_}, v{F_}, v{F_+1}, v{F_+2}')
        a(f"""v_bitop3_b32 v{F_}, v{F_}, v{F_+1}, 1 bitop3:0xa8
        v_cmp_ne_u32 vcc, 0, v{F_}
        s_cbranch_vccz {ok}""")
    for k in range(nr):
        rloads(rs[k-1]); rround(rs[k], 'L_rec_red')
    timeout_fix(a, 7, 14, 'L_rec_rr')
    a('L_rec_red:')
    T(7)
    if tm: a('s_mov_b32 s62, s7')
    a(f"""v_cvt_pk_bf16_f32 v{D_}, v{D_}, v{D_+1}
    v_cvt_pk_bf16_f32 v{D_+1}, v{D_+2}, v{D_+3}
    v_bfi_b32 v{D_}, 1, s{sTag}, v{D_}
    s_mov_b64 exec, s[{sLo}:{sLo+1}]
    buffer_store_dwordx2 {vr(D_,2)}, v{AD}, {WS}, s{sMst} offen
    s_cmp_lg_u32 s{sStep}, 63
    s_cbranch_scc1 L_rec_nl
    buffer_store_dwordx2 {vr(D_,2)}, v{AD}, {WS}, s{sMst} offen sc1
    L_rec_nl:
    s_mov_b64 exec, -1
    s_barrier""")
    T(8)
    a('s_branch L_rec_loop\nL_rec_nored:')
    a('s_barrier')
    T(8)
    a('s_branch L_rec_loop\nL_rec_kvwait:')
    if cfg.get('cnt'): a('s_add_u32 s99, s99, 1')
    kvslow('L_rec_kvok')
    a('L_rec_last:')
    mark(a, cfg, 8, 16)
    if cfg.get('cnt'): mark(a, cfg, 10, 16, 99)
    a('s_waitcnt vmcnt(0)\ns_endpgm')

def time_dump(a):
    a(f'''s_waitcnt lgkmcnt(0)
    s_lshl_b32 s6, s{sX}, 5
    s_add_u32 s6, s6, s{sR}
    s_lshl_b32 s6, s6, 2
    s_add_u32 s6, s6, s{sW}
    s_lshl_b32 s6, s6, 6
    s_add_u32 s6, s6, s{sStep}
    s_lshl_b32 s6, s6, 6
    s_add_u32 s6, s6, {160*MB_}''')
    for k in range(9): a(f'v_mov_b32 v{QK+k}, s{70+2*k}')
    a(f'v_mov_b32 v{QK+9}, s62\nv_mov_b32 v{QK+10}, s63\ns_memtime s[70:71]\ns_waitcnt lgkmcnt(0)\nv_mov_b32 v{QK+11}, s70')
    a(f'''s_mov_b64 exec, 1
    buffer_store_dwordx4 {vr(QK,4)}, v{vPM+1}, {WS}, s6 offen
    buffer_store_dwordx4 {vr(QK+4,4)}, v{vPM+1}, {WS}, s6 offen offset:16
    buffer_store_dwordx4 {vr(QK+8,4)}, v{vPM+1}, {WS}, s6 offen offset:32
    s_mov_b64 exec, -1''')
```

```python
from asm import *
from layout import *
NAME = 'interleave_layers__ssm_conv_s4d__memory_aug_recurrent_mem_tr__prompt_kernel'
sW, sX, sR = 3, 4, 5
WS, DBG = 's[8:11]', 's[12:15]'
KA = 64
P_U, P_LA, P_AI, P_CR, P_CI, P_LDT, P_DS, P_BX, P_M0, P_WQ, P_WK, P_WV, P_WO, P_SL, P_OUT, P_DBG, P_WS = [KA + 2*i for i in range(17)]
SPIN = 1 << 17

def srd(a, s, ptr, nbytes):
    a(f's_mov_b32 s{s}, s{ptr}\ns_mov_b32 s{s+1}, s{ptr+1}\ns_mov_b32 s{s+2}, {nbytes:#x}\ns_mov_b32 s{s+3}, 0x20000')

def spin_check(a, cnt, code, retry):
    a(f'''s_add_u32 s{cnt}, s{cnt}, 1
    s_cmp_lt_u32 s{cnt}, {SPIN}
    s_cbranch_scc1 {retry}
    s_mov_b32 s6, {code}
    s_branch L_err''')

def again(a, bad, load, s0):
    for i, r in enumerate(bad): a(f'v_and_b32 v{r}, 1, v{r}')
    for i, r in enumerate(bad): a(f'v_cmp_ne_u32 s[{s0+2*i}:{s0+2*i+1}], 0, v{r}')
    for i, r in enumerate(bad): a(f's_or_b64 exec, s[{s0+2*i}:{s0+2*i+1}], 1\n{load(i)}')
    a('s_mov_b64 exec, -1')

def bf16r(a, dst, src):
    a(f'v_cvt_pk_bf16_f32 v{dst}, v{src}, v{src}\nv_and_b32 v{dst}, 0xffff0000, v{dst}')

def ln_final(a, s1, s2, t):
    a(f'''v_mul_f32 v{s1}, 0x3b000000, v{s1}
    v_mul_f32 v{t}, v{s1}, v{s1}
    v_mul_f32 v{s2}, 0x3b000000, v{s2}
    v_sub_f32 v{s2}, v{s2}, v{t}
    v_max_f32 v{s2}, 0, v{s2}''')
    bf16r(a, s2, s2)
    a(f'v_add_f32 v{s2}, 0x3727c5ac, v{s2}')
    bf16r(a, s2, s2)
    a(f'v_sqrt_f32 v{s2}, v{s2}')
    bf16r(a, s1, s1)
    bf16r(a, s2, s2)
    a(f'v_rcp_f32 v{s2}, v{s2}')

CFG = {}
def signal_done(a, wait='vmcnt(0)', t=2):
    L = a.lab('sd')
    a(f's_waitcnt {wait}\ns_barrier')
    mark(a, CFG, 9, t)
    a(f'''s_cmp_lg_u32 s{sW}, 0
    s_cbranch_scc1 {L}
    s_mov_b64 exec, 1
    s_and_b32 s6, s{sX}, 3
    s_lshl_b32 s6, s6, 6
    v_mov_b32 v{t}, {D_DONE[0]*4}
    v_mov_b32 v{t+1}, 1
    buffer_atomic_add v{t+1}, v{t}, {DBG}, s6 offen sc1''')
    a(f'''s_mov_b64 exec, -1
    {L}:''')

def role_done(a, cfg, n):
    L = a.lab('rdn')
    if cfg.get('integ'): a(f's_lshr_b32 s6, 0x72, s{sX}\ns_bitcmp1_b32 s6, 0\ns_cbranch_scc1 {L}')
    signal_done(a, f'vmcnt({n})', 18)
    a(f'{L}:')

def wait_done(a, t0, t1, code, one=0):
    L = a.lab('wd'); Lo = a.lab('wdo')
    if one: a(f's_cmp_lg_u32 s{sW}, 0\ns_cbranch_scc1 {Lo}')
    a(f'''s_mov_b32 s7, 0
    v_mbcnt_lo_u32_b32 v{t0}, -1, 0
    v_and_b32 v{t0}, 3, v{t0}
    v_lshlrev_b32 v{t0}, 6, v{t0}
    {L}:
    buffer_load_dword v{t1}, v{t0}, {DBG}, 0 offen offset:{D_DONE[0]*4} sc1
    s_waitcnt vmcnt(0)
    v_cmp_ne_u32 vcc, 64, v{t1}
    s_cbranch_vccz {Lo}''')
    spin_check(a, 7, code, L)
    a(f'{Lo}:')
    if one: a('s_barrier')

def poll_ge(a, vaddr, soff, need, t, code, n=1, imm=0):
    L = a.lab('pl'); Lo = a.lab('plo')
    op = {1: 'dword', 2: 'dwordx2', 4: 'dwordx4', 8: 'dwordx4'}[n]
    a(f'''s_mov_b32 s7, 0
    {L}:
    buffer_load_{op} {vr(t, min(n, 4))}, v{vaddr}, {WS}, s{soff} offen offset:{imm} sc1''')
    if n == 8: a(f'buffer_load_{op} {vr(t+4, 4)}, v{vaddr}, {WS}, s{soff} offen offset:{imm+1024} sc1')
    a('s_waitcnt vmcnt(0)')
    if n == 8: a(f'v_min3_u32 v{t}, v{t}, v{t+1}, v{t+2}\nv_min3_u32 v{t+3}, v{t+3}, v{t+4}, v{t+5}\nv_min3_u32 v{t}, v{t}, v{t+6}, v{t+7}\nv_min_u32 v{t}, v{t}, v{t+3}')
    if n == 2: a(f'v_min_u32 v{t}, v{t}, v{t+1}')
    if n == 4: a(f'v_min_u32 v{t}, v{t}, v{t+1}\nv_min3_u32 v{t}, v{t}, v{t+2}, v{t+3}')
    a(f'v_cmp_gt_u32 vcc, s{need}, v{t}\ns_cbranch_vccz {Lo}')
    spin_check(a, 7, code, L)
    a(f'{Lo}:')

def mark(a, cfg, k, t, src=100):
    if cfg.get('hdbg'):
        for (kk, X, w), word in {(6,0,0): 2, (0,0,0): 3, (2,0,0): 5, (7,0,0): 6, (8,0,0): 7, (2,1,0): 9, (7,1,0): 10, (8,1,0): 11, (8,7,3): 12, (4,2,0): 13, (5,4,0): 14, (3,2,0): 15}.items():
            if kk != k: continue
            L = a.lab('hd')
            a(f'''s_lshl_b32 s6, s{sX}, 8
            s_lshl_b32 s7, s{sR}, 2
            s_add_u32 s6, s6, s7
            s_add_u32 s6, s6, s{sW}
            s_cmp_eq_u32 s6, {X*256 + w}
            s_cbranch_scc0 {L}
            s_memrealtime s[100:101]
            s_waitcnt lgkmcnt(0)
            v_mov_b32 v{t}, s{src}
            v_mov_b32 v{t+1}, 0
            s_mov_b64 exec, 1
            buffer_store_dword v{t}, v{t+1}, {DBG}, 0 offen offset:{word*4} sc1
            s_mov_b64 exec, -1
            {L}:''')
        return
    if not cfg.get('marks'): return
    a(f"""s_memrealtime s[100:101]
    s_waitcnt lgkmcnt(0)
    s_lshl_b32 s6, s{sX}, 5
    s_add_u32 s6, s6, s{sR}
    s_lshl_b32 s6, s6, 2
    s_add_u32 s6, s6, s{sW}
    s_lshl_b32 s6, s6, 2
    s_add_u32 s6, s6, {TIM + 0x1000*(k+1):#x}
    v_mov_b32 v{t}, s{src}
    v_mov_b32 v{t+1}, 0
    s_mov_b64 exec, 1
    buffer_store_dword v{t}, v{t+1}, {WS}, s6 offen
    s_mov_b64 exec, -1""")

def prologue(a, cfg):
    if cfg.get('memtime') or cfg.get('hdbg'): a('s_memrealtime s[98:99]')
    a(f'''s_cmp_ge_u32 s2, 256
    s_cbranch_scc1 L_end
    s_load_dwordx16 s[64:79], s[0:1], 0
    s_load_dwordx16 s[80:95], s[0:1], 64
    s_load_dwordx2 s[96:97], s[0:1], 128
    s_getreg_b32 s{sX}, hwreg(HW_REG_XCC_ID,0,4)
    v_lshrrev_b32 v1, 6, v0
    v_and_b32 v0, 63, v0
    s_and_b32 s{sX}, s{sX}, 7
    v_readfirstlane_b32 s{sW}, v1''')
    if cfg.get('xperm'):
        a(f's_lshl_b32 s{sX}, s{sX}, 2\ns_lshr_b32 s{sX}, {sum(r << 4*x for x, r in enumerate(cfg["xperm"])):#x}, s{sX}\ns_and_b32 s{sX}, s{sX}, 7')
    if cfg.get('x_mix'): a(f's_lshr_b32 s{sX}, s2, {cfg["x_mix"]}\ns_and_b32 s{sX}, s{sX}, 7')
    a('s_waitcnt lgkmcnt(0)')
    srd(a, 12, P_DBG, 256); srd(a, 8, P_WS, 0x10000000); srd(a, 16, P_U, 2048*1024)
    def PT(k):
        if cfg.get('plt'): a(f's_memrealtime s[{48+2*k}:{49+2*k}]')
    PT(0)
    a(f'''s_lshl_b32 s6, s2, 3
    s_lshl_b32 s7, s{sW}, 1
    s_add_u32 s32, s6, s7
    s_lshl_b32 s6, s32, 10
    v_lshlrev_b32 v4, 5, v0
    buffer_load_dwordx4 v[40:43], v4, s[16:19], s6 offen
    buffer_load_dwordx4 v[44:47], v4, s[16:19], s6 offen offset:16''')
    Lt = a.lab('tk')
    a(f'''s_cmp_lg_u32 s{sW}, 0
    s_cbranch_scc1 {Lt}
    s_and_b32 s6, s{sX}, 3
    s_lshl_b32 s6, s6, 6
    s_and_b32 s7, s{sX}, 4
    s_add_u32 s6, s6, s7
    s_mov_b64 exec, 1
    v_mov_b32 v2, s6
    v_mov_b32 v3, 1
    buffer_atomic_add v3, v2, {DBG}, 0 offen sc0 sc1
    s_mov_b64 exec, -1
    {Lt}:''')
    PT(1)
    Lx = a.lab('xw')
    a(f's_cmp_lg_u32 s{sW}, 0\ns_waitcnt vmcnt(1)\ns_cbranch_scc0 {Lx}\ns_waitcnt vmcnt(0)\n{Lx}:')
    PT(2)
    a(f'''v_mov_b32 v5, 0
    v_mov_b32 v6, 0
    v_mov_b32 v7, 0x3f803f80''')
    for r in range(40, 48): a(f'v_dot2c_f32_bf16 v5, v{r}, v7\nv_dot2c_f32_bf16 v6, v{r}, v{r}')
    for m in ('quad_perm:[1,0,3,2]', 'quad_perm:[2,3,0,1]', 'row_half_mirror', 'row_mirror'):
        a(f'v_add_f32_dpp v5, v5, v5 {m} row_mask:0xf bank_mask:0xf\nv_add_f32_dpp v6, v6, v6 {m} row_mask:0xf bank_mask:0xf')
    a('''v_mov_b32 v8, v5
    v_mov_b32 v9, v6
    v_permlane16_swap_b32 v5, v8
    v_permlane16_swap_b32 v6, v9
    v_add_f32 v8, v5, v8
    v_add_f32 v9, v6, v9''')
    ln_final(a, 8, 9, 10)
    X, U = 16, 32
    for k in range(8):
        a(f'v_lshlrev_b32 v{X+2*k}, 16, v{24+16+k}\nv_and_b32 v{X+2*k+1}, 0xffff0000, v{24+16+k}')
    for k in range(16): a(f'v_sub_f32 v{X+k}, v{X+k}, v8')
    for k in range(8): a(f'v_cvt_pk_bf16_f32 v{U+k}, v{X+2*k}, v{X+2*k+1}')
    for k in range(8): a(f'v_lshlrev_b32 v{X+2*k}, 16, v{U+k}\nv_and_b32 v{X+2*k+1}, 0xffff0000, v{U+k}')
    for k in range(16): a(f'v_mul_f32 v{X+k}, v{X+k}, v9')
    for k in range(8): a(f'v_cvt_pk_bf16_f32 v{U+k}, v{X+2*k}, v{X+2*k+1}')
    a(f"""s_mov_b32 s6, 0x05040100
    s_mov_b32 s7, 0x07060302
    v_and_b32 v4, 31, v0
    v_mul_u32_u24 v4, 528, v4
    v_lshrrev_b32 v5, 5, v0
    v_lshl_add_u32 v4, v5, 8, v4
    s_lshl_b32 s34, s{sW}, 2
    s_add_u32 s34, s34, 64
    v_add_u32 v4, s34, v4""")
    for part in range(2):
        b = U + 8*part
        for k in range(4): a(f'v_permlane32_swap_b32 v{b+k}, v{b+k+4}')
        for k in range(4):
            for h in range(2):
                e = 2*k + h
                a(f'v_perm_b32 v{X+8*part+e}, v{b+k+4}, v{b+k}, s{6+h}')
                a(f'ds_write_b32 v4, v{X+8*part+e} offset:{(e//4)*128 + (e % 4)*16 + 64*part}')
    Lr = a.lab('rl'); Lok = a.lab('rok'); Lw = a.lab('row'); Lw2 = a.lab('row2')
    a(f'''s_cmp_lg_u32 s{sW}, 0
    s_cbranch_scc1 {Lr}
    s_waitcnt vmcnt(0)
    v_readfirstlane_b32 s{sR}, v3
    s_cmp_lt_u32 s{sR}, 32
    s_cbranch_scc1 {Lok}''')
    a(f'''s_mov_b64 exec, 1
    v_mov_b32 v2, {D_OVF*4}
    v_mov_b32 v3, 1
    buffer_atomic_add v3, v2, {DBG}, 0 offen sc0 sc1
    s_waitcnt vmcnt(0)
    v_readfirstlane_b32 s33, v3
    s_mov_b64 exec, -1
    s_mov_b32 s7, 0
    v_lshlrev_b32 v2, 2, v0
    {Lw}:
    buffer_load_dword v3, v2, {DBG}, 0 offen sc1
    s_waitcnt vmcnt(0)
    s_mov_b32 s34, 0''')
    for i in range(8): a(f'v_readlane_b32 s{40+i}, v3, {D_TICK[i]}')
    for i in range(8): a(f's_add_u32 s34, s34, s{40+i}')
    a(f's_cmp_eq_u32 s34, 256\ns_cbranch_scc1 {Lw2}')
    spin_check(a, 7, 1, Lw)
    a(f'{Lw2}:')
    for i in range(8):
        Ln = a.lab('ovn')
        a(f'''s_min_u32 s{sR}, s{40+i}, 32
        s_sub_u32 s35, 32, s{sR}
        s_cmp_ge_u32 s33, s35
        s_cbranch_scc1 {Ln}
        s_add_u32 s{sR}, s{sR}, s33
        s_mov_b32 s{sX}, {i}
        s_branch {Lok}
        {Ln}:
        s_sub_u32 s33, s33, s35''')
    a(f'''s_mov_b32 s6, 2
    s_branch L_err
    {Lok}:
    s_lshl_b32 s6, s{sX}, 5
    s_add_u32 s6, s6, s{sR}
    v_mov_b32 v2, 0
    v_mov_b32 v3, s6
    ds_write_b32 v2, v3
    {Lr}:''')
    a(f"""v_lshrrev_b32 v4, 5, v0
    s_lshl_b32 s6, s{sW}, 1
    v_add_u32 v4, s6, v4
    v_mul_u32_u24 v4, 528, v4
    v_and_b32 v5, 31, v0
    v_lshl_add_u32 v4, v5, 4, v4
    v_lshrrev_b32 v5, 3, v0
    v_lshlrev_b32 v5, 15, v5
    v_and_b32 v6, 7, v0
    v_lshl_or_b32 v5, v6, 4, v5
    s_lshl_b32 s6, s{sW}, 18
    s_lshl_b32 s7, s2, 7
    s_add_u32 s6, s6, s7
    s_add_u32 s6, s6, {UX:#x}
    s_waitcnt lgkmcnt(0)""")
    PT(3)
    a('s_barrier')
    PT(4)
    for k in range(4): a(f'ds_read_b128 {vr(X+4*k,4)}, v4 offset:{64 + k*8*528}')
    for k in range(4): a(f's_waitcnt lgkmcnt({3-k})\nbuffer_store_dwordx4 {vr(X+4*k,4)}, v5, {WS}, s6 offen sc1\ns_add_u32 s6, s6, {1 << 20}')
    a(f'''
    v_mov_b32 v2, 0
    ds_read_b32 v3, v2
    s_waitcnt lgkmcnt(0)
    v_readfirstlane_b32 s6, v3
    s_barrier
    s_lshr_b32 s{sX}, s6, 5
    s_and_b32 s{sX}, s{sX}, 7
    s_and_b32 s{sR}, s6, 31''')
    mark(a, cfg, 0, 2); mark(a, cfg, 6, 2, 98)
    if cfg.get('plt'):
        for k in range(5): mark(a, cfg, 10+k, 2, 48+2*k)

def epilogue(a):
    a(f'''L_err:
    s_mov_b64 exec, 1
    s_lshl_b32 s7, s{sX}, 2
    s_add_u32 s7, s7, {D_ERR*4}
    v_mov_b32 v2, s7
    v_mov_b32 v3, s6
    buffer_store_dword v3, v2, {DBG}, 0 offen sc1
    s_waitcnt vmcnt(0)
    L_end:
    s_endpgm''')

def warm(a, cfg, sly, t, regions):
    if not cfg.get('warm', 0): return
    a(f'v_mbcnt_lo_u32_b32 v{t}, -1, 0\nv_mbcnt_hi_u32_b32 v{t}, -1, v{t}')
    for k, (pair, sh, off) in enumerate(regions):
        a(f"""s_mul_i32 s6, s{sly}, {pair[1]-pair[0]:#x}
        s_add_u32 s6, s6, {pair[0]+off:#x}
        v_lshlrev_b32 v{t+1}, {sh}, v{t}
        buffer_load_dword v{t+2+k}, v{t+1}, {WS}, s6 offen sc1""")
```

```python
from common import *
L_SH, L_KB, L_VB, L_QK, L_OB, L_WO = 0, 8192, 16384, 24576, 28928, 32768
GQ, RS = 1088, 288
vIdx, vL16, vQKw, vXr, vKx, vOw, vOr, vWo, vPst, vVx, vONE, vPM = 0, 1, 2, 3, 4, 5, 6, 7, 8, 9, 10, 12
vT, MA, KX, QK, VA, VC, SA = 16, 20, 52, 84, 100, 108, 116
WV = 128
sStep, sTag, sC = 32, 33, 34
sKV0, sKM0, sFKM, sFKV0, sPB0, sPB1, sPR0, sPR1, sMst, sMld = 35, 36, 37, 38, 39, 40, 41, 42, 43, 44
sA1, sA2, sA3, sSh0, sNeed, sKV, sFKV, sKM, sM0K = 45, 46, 47, 48, 49, 50, 51, 52, 53
sLo, sVal = 54, 56
LY = 58
sKD, sTKM = 37, 59

def wfrag(m, t, ct):
    o = (t*2 + ct)*8
    return ar(o, 8) if m == 0 else (ar(128+o, 8) if m == 1 else vr(WV+o, 8))
def wpair(m, r):
    return ar(r, 2) if m == 0 else (ar(128+r, 2) if m == 1 else vr(WV+r, 2))

def timeout_fix(a, cnt, code, retry):
    L = a.lab('tf')
    a(f'''s_and_b32 s6, s{cnt}, 31
    s_cmp_lg_u32 s6, 31
    s_cbranch_scc1 {L}
    buffer_wbl2 sc1
    s_waitcnt vmcnt(0)
    buffer_inv sc1
    s_waitcnt vmcnt(0)
    {L}:''')
    spin_check(a, cnt, code, retry)

def load_weights(a, cfg, done_cb, hook=lambda c: None):
    vG, vH0, vH1, vR0, vRo, vt, vWw = 116, 118, 119, 120, 124, 126, 127
    if not cfg.get('r_sig', 1): done_cb(0)
    a(f'''v_bfe_u32 v16, v0, 4, 1
    v_lshrrev_b32 v17, 5, v0
    v_lshl_or_b32 v18, v17, 5, v16
    s_and_b32 s6, s{sW}, 1
    s_lshr_b32 s7, s{sW}, 1
    s_lshl_b32 s60, s6, 4
    s_lshl_b32 s7, s7, 6
    s_add_u32 s7, s7, s60
    v_add_u32 v18, s7, v18
    v_lshlrev_b32 v18, 13, v18
    v_lshrrev_b32 v19, 4, v0
    s_lshl_b32 s6, s6, 2
    v_or_b32 v19, s6, v19
    v_lshlrev_b32 v19, 1, v19
    v_and_b32 v{vG}, 15, v0
    v_xor_b32 v19, v19, v{vG}
    v_lshl_or_b32 v{vG}, v19, 4, v18''')
    a(f'''v_bfe_u32 v18, v0, 2, 2
    v_lshl_or_b32 v19, v16, 2, v18
    v_lshl_or_b32 v18, v17, 3, v18
    v_lshl_or_b32 v18, v16, 5, v18
    v_lshlrev_b32 v18, 8, v18
    s_lshl_b32 s6, s{sW}, 1
    v_xor_b32 v19, s6, v19
    v_lshl_or_b32 v18, v19, 5, v18
    v_and_b32 v19, 3, v0
    v_lshl_or_b32 v18, v19, 3, v18
    v_add_u32 v{vR0}, {L_WO}, v18
    v_xor_b32 v{vR0+1}, 32, v{vR0}
    v_add_u32 v{vR0+2}, 0x10000, v{vR0}
    v_add_u32 v{vR0+3}, 0x10000, v{vR0+1}''')
    a(f'''v_lshrrev_b32 v16, 4, v0
    v_and_b32 v17, 15, v0
    v_lshlrev_b32 v18, 1, v16
    v_xor_b32 v17, v17, v18
    v_lshlrev_b32 v17, 4, v17
    v_lshl_or_b32 v{vH0}, v16, 10, v17
    v_xor_b32 v{vH1}, 0x80, v{vH0}
    s_lshl_b32 s60, s{sW}, 13
    s_add_u32 s60, s60, {L_WO}
    v_bfe_u32 v17, v0, 2, 2
    v_bfe_u32 v18, v0, 4, 1
    v_lshl_or_b32 v18, v18, 2, v17
    v_lshl_or_b32 v17, v16, 3, v17
    v_lshlrev_b32 v17, 8, v17
    v_lshl_or_b32 v17, v18, 5, v17
    v_lshl_or_b32 v17, v19, 3, v17
    v_add_u32 v{vRo}, s60, v17
    v_add_u32 v{vWw}, s60, v{vL16}
    s_lshl_b32 s63, s{sR}, 8''')
    def issue(c):
        m, j = c // 4, c % 4
        if m < 3: a(f's_add_u32 s61, s63, {j << 20}')
        else: a(f's_lshl_b32 s61, s{sR}, 17\ns_lshl_b32 s62, s{sW}, 15\ns_add_u32 s61, s61, s62\ns_add_u32 s61, s61, {j*256}')
        for i in range(8):
            c0, v = (i*2*8192, vG) if m < 3 else (i*4096, vH1 if (i//2) % 2 else vH0)
            a(f'''s_add_u32 m0, s60, {j*32768 + i*1024}
            s_add_u32 s62, s61, {c0}
            buffer_load_dwordx4 v{v}, s[{16+4*m}:{19+4*m}], s62 offen lds''')
    for c in range(3): issue(c)
    if cfg.get('r_sig', 1): done_cb(24)
    for c in range(16):
        m, b = c // 4, c % 4
        a(f's_waitcnt vmcnt({8*min(2, 15-c)})')
        if c <= 12: a('s_barrier')
        if c + 3 < 16: issue(c + 3)
        hook(c)
        if m < 3:
            Le = a.lab('lw'); Ls = [a.lab('lv') for _ in range(4)]
            for w in range(1, 4): a(f's_cmp_eq_u32 s{sW}, {w}\ns_cbranch_scc1 {Ls[w]}')
            for w in range(4):
                a(f'{Ls[w]}:')
                j = (b - w) & 3
                for kbi in range(2):
                    for ct in range(2):
                        for hf in range(2):
                            for rp in range(2):
                                r = ((2*j + kbi)*2 + ct)*8 + 4*hf + 2*rp
                                a(f'ds_read_b64_tr_b16 {wpair(m, r)}, v{vR0 + ct + 2*(b//2)} offset:{(b % 2)*32768 + (4*rp + 16*hf + 64*kbi)*256}')
                if w < 3: a(f's_branch {Le}')
            a(f'{Le}:\ns_waitcnt lgkmcnt(0)')
        else:
            for ct in range(8):
                a(f'v_xor_b32 v{vt}, {ct*32}, v{vRo}')
                for rp in range(2):
                    a(f'ds_read_b64_tr_b16 {vr(MA + 4*ct + 2*rp, 2)}, v{vt} offset:{rp*1024}')
            a('s_waitcnt lgkmcnt(0)')
            for ct in range(8):
                a(f'ds_write_b128 v{vWw}, {vr(MA + 4*ct, 4)} offset:{ct*1024}')
            a(f's_waitcnt lgkmcnt(0)\nv_add_u32 v{vRo}, 0x8000, v{vRo}\nv_add_u32 v{vWw}, 0x8000, v{vWw}')

def kv_addr(a, ring):
    a(f'''s_add_u32 s6, s{sStep}, 1
    s_and_b32 s6, s6, {ring}
    s_lshl_b32 s6, s6, 19
    s_add_u32 s{sKV}, s{sKV0}, s6
    s_add_u32 s{sFKV}, s{sKV}, 0x2000''')

def rec(a, cfg):
    ring = cfg.get('ring', 3); bar = cfg.get('rec_bar', 1); tm = cfg.get('rec_time', 0)
    def T(slot):
        if tm: a(f's_mem{"real" if cfg.get("rt") else ""}time s[{70+2*slot}:{71+2*slot}]')
    if 'r_al' in cfg: a('.p2align 8\n' + 's_nop 0\n'*cfg['r_al'])
    a('L_rec:')
    def sel(dst, pair):
        a(f's_cmp_eq_u32 s{LY}, 0\ns_cselect_b32 s{dst}, {pair[0]:#x}, {pair[1]:#x}' if False else
          f's_mul_i32 s{dst}, s{LY}, {pair[1]-pair[0]:#x}\ns_add_u32 s{dst}, s{dst}, {pair[0]:#x}')
    a(f's_and_b32 s{LY}, s{sX}, 1')
    sel(sKV0, KVX); sel(sKM0, KVM); sel(sPB0, PBUF); sel(sMld, MBUF)
    a(f'''s_lshl_b32 s6, s{sR}, 14
    s_lshl_b32 s7, s{sW}, 11
    s_add_u32 s{sKV0}, s{sKV0}, s6
    s_add_u32 s{sKV0}, s{sKV0}, s7
    s_mov_b32 s{sSh0}, s7
    s_lshl_b32 s6, s{sR}, 8
    s_add_u32 s{sMst}, s{sMld}, s6
    s_add_u32 s{sMld}, s{sMld}, s7
    s_lshl_b32 s7, s{sR}, 13
    s_add_u32 s{sPR0}, s{sPB0}, s7
    s_add_u32 s{sPR1}, s{sPR0}, 4096
    s_add_u32 s{sPB0}, s{sPB0}, s6
    s_add_u32 s{sPB1}, s{sPB0}, 32768
    s_lshl_b32 s7, s{sR}, 12
    s_add_u32 s{sKM0}, s{sKM0}, s7
    s_lshl_b32 s7, s{sW}, 10
    s_add_u32 s{sKM0}, s{sKM0}, s7
    s_add_u32 s{sM0K}, s{sSh0}, {L_KB}
    s_add_u32 s{sKD}, s{sSh0}, {L_VB}
    s_lshl_b32 s6, s{LY}, 13
    s_lshl_b32 s7, s{sR}, 7
    s_add_u32 s{sFKV0}, s6, s7
    s_add_u32 s{sFKV0}, s{sFKV0}, {FKV:#x}
    s_mov_b32 s{sLo}, 0x00ff00ff
    s_mov_b32 s{sLo+1}, 0x00ff00ff
    s_mov_b32 s{sVal}, 0x33333333
    s_mov_b32 s{sVal+1}, 0x33333333
    s_mov_b32 s{sC}, 0x3e0293ee''')
    for k, s in ((1, sA1), (2, sA2), (3, sA3)):
        a(f's_add_u32 s6, s{sW}, {k}\ns_and_b32 s6, s6, 3\ns_lshl_b32 s{s}, s6, 11')
    lanec = (f'''v_and_b32 v16, 15, v0
    v_lshrrev_b32 v17, 4, v0
    v_lshlrev_b32 v{vL16}, 4, v0
    s_lshl_b32 s6, s{sW}, 8
    s_add_u32 s6, s6, {L_QK}
    v_mul_u32_u24 v18, {GQ}, v17
    v_lshl_add_u32 v18, v16, 3, v18
    v_add_u32 v{vQKw}, s6, v18
    v_and_b32 v18, 3, v0
    v_mul_u32_u24 v18, {GQ}, v18
    v_bfe_u32 v19, v0, 2, 3
    v_lshl_add_u32 v18, v19, 3, v18
    v_lshrrev_b32 v19, 5, v0
    v_lshl_add_u32 v18, v19, 7, v18
    v_add_u32 v{vXr}, {L_QK}, v18
    v_and_b32 v18, 7, v0
    v_bfe_u32 v19, v0, 3, 1
    v_lshl_or_b32 v18, v19, 4, v18
    v_lshlrev_b32 v18, 4, v18
    v_lshl_add_u32 v18, v17, 9, v18
    v_add_u32 v{vKx}, {L_KB}, v18
    v_lshrrev_b32 v18, 2, v16
    v_and_b32 v19, 1, v0
    v_lshl_or_b32 v18, v18, 1, v19
    v_mul_u32_u24 v18, {RS}, v18
    v_lshl_add_u32 v18, v17, 2, v18
    s_lshl_b32 s6, s{sW}, 6
    s_add_u32 s6, s6, {L_OB}
    v_add_u32 v{vOw}, s6, v18
    v_lshrrev_b32 v18, 1, v16
    v_mul_u32_u24 v18, {RS}, v18
    v_lshl_add_u32 v18, v17, 5, v18
    v_lshl_add_u32 v18, v19, 4, v18
    v_add_u32 v{vOr}, {L_OB}, v18
    s_lshl_b32 s6, s{sW}, 15
    s_add_u32 s6, s6, {L_WO}
    v_add_u32 v{vWo}, s6, v{vL16}
    v_lshrrev_b32 v18, 2, v16
    v_lshlrev_b32 v18, 13, v18
    v_and_b32 v19, 3, v0
    v_lshl_or_b32 v19, v17, 2, v19
    v_lshl_or_b32 v18, v19, 4, v18
    s_lshl_b32 s6, s{sW}, 16
    v_add_u32 v{vPst}, s6, v18
    v_lshlrev_b32 v18, 4, v16
    v_lshl_or_b32 v18, v17, 9, v18
    v_add_u32 v{vVx}, s{sKD}, v18
    v_mov_b32 v{vONE}, 0x3f803f80
    v_mov_b32 v{vONE+1}, 0x3f803f80
    ''' + '\n'.join(f'v_mov_b32 v{vPM+r}, 0' for r in range(4)))
    a(lanec)
    a(f"""buffer_store_dwordx4 {vr(vPM,4)}, v{vPst}, {WS}, s{sPB0} offen sc1
    buffer_store_dwordx4 {vr(vPM,4)}, v{vPst}, {WS}, s{sPB1} offen sc1""")
    for k in range(4): a(f's_add_u32 s6, s{sKM0}, {k << 17}\nbuffer_store_dwordx4 {vr(vPM,4)}, v{vL16}, {WS}, s6 offen sc1')
    a(f"""s_mov_b64 exec, 0xffff
    buffer_store_dwordx4 {vr(vPM,4)}, v{vL16}, {WS}, s{sMst} offen sc1
    s_mov_b64 exec, -1""")
    if cfg.get('integ'):
        a(f's_cmp_eq_u32 s{sX}, 1\ns_cbranch_scc1 L_pro\ns_branch L_rec3\nL_rec2:')
        a(lanec)
        a('L_rec3:')
    srd(a, 16, P_WQ, 4*MB_); srd(a, 20, P_WK, 4*MB_); srd(a, 24, P_WV, 4*MB_); srd(a, 28, P_WO, 4*MB_)
    def kvld(seg):
        a(f'''s_sub_u32 s60, {seg}, s{sM0K}
        s_add_u32 s61, s60, 4096''')
        return [f'buffer_load_dwordx4 {vr(KX+16*T_+4*ks,4)}, v{vKx}, {WS}, s{60+ks//2} offen offset:{(ks%2)*2048+T_*128} sc1' for ks in range(4) for T_ in range(2)] + [
                f'buffer_load_dwordx4 {vr(VC+4*t,4)}, v{vVx}, {WS}, s60 offen offset:{256*t} sc1' for t in range(2)]
    def hook(c):
        if c == 8:
            srd(a, 16, P_M0, 8192)
            a(f"""v_and_b32 v16, 15, v0
            v_lshrrev_b32 v17, 1, v16
            v_lshlrev_b32 v17, 10, v17
            v_and_b32 v18, 1, v0
            v_lshl_or_b32 v17, v18, 6, v17
            v_lshrrev_b32 v19, 4, v0
            v_lshl_or_b32 v17, v19, 3, v17
            s_lshl_b32 s6, s{sW}, 8""")
            for k, off in enumerate((0, 32, 128, 160)):
                a(f'buffer_load_dwordx2 {vr(QK+2*k, 2)}, v17, s[16:19], s6 offen offset:{off}')
            a(f"""v_mov_b32 v19, 0x4444
            v_mov_b32 v16, 0xeeee
            v_cmp_eq_u32 vcc, 0, v18
            v_cndmask_b32 v{vIdx}, v16, v19, vcc""")
            a(f'''v_mbcnt_lo_u32_b32 v16, -1, 0
            v_and_b32 v16, 3, v16
            v_lshlrev_b32 v16, 6, v16
            buffer_load_dword v17, v16, {DBG}, 0 offen offset:{D_DONE[0]*4} sc1''')
            if cfg.get('warm', 0) & 4: warm(a, cfg, LY, QK+8, [(KVX, 15, 0), (KVM, 13, 0)])
        if c == 15:
            a('v_cmp_ne_u32 vcc, 64, v17\ns_cbranch_vccz L_rec_dn')
            wait_done(a, vT, vT+1, 10)
            a('L_rec_dn:')
            for x in kvld(f's{sKV0}'): a(x)
    load_weights(a, cfg, lambda n: role_done(a, cfg, n), hook)
    mark(a, cfg, 2, 16)
    for r in range(0, 8, 2): a(f'v_mov_b64 {vr(MA+r,2)}, {vr(QK+r,2)}')
    a(f's_mov_b32 s{sStep}, 0\ns_mov_b32 s{sNeed}, 1\ns_mov_b32 s{sTag}, 1')
    kvdma = [f's_mov_b32 m0, s{sM0K}', f'buffer_load_dwordx4 v{vL16}, {WS}, s{sKV} offen sc1 lds', f'buffer_load_dwordx4 v{vL16}, {WS}, s{sKV} offen offset:1024 sc1 lds',
             f's_mov_b32 m0, s{sKD}', f'buffer_load_dwordx4 v{vL16}, {WS}, s{sFKV} offen sc1 lds', f'buffer_load_dwordx4 v{vL16}, {WS}, s{sFKV} offen offset:1024 sc1 lds']
    if cfg.get('x_nokv'): kvdma = []
    kvchk = [f'v_bitop3_b32 v{vT+k}, v{KX+8*k}, v{KX+8*k+4}, s{sTKM} bitop3:0x7e' for k in range(4)] + [
        f'v_or3_b32 v{vT}, v{vT}, v{vT+1}, v{vT+2}', f'v_bitop3_b32 v{vT+1}, v{VC}, v{VC+4}, s{sTKM} bitop3:0x7e',
        f'v_or3_b32 v{vT}, v{vT}, v{vT+1}, v{vT+3}', f'v_and_b32 v{vT}, 1, v{vT}', f'v_cmp_ne_u32 vcc, 0, v{vT}']
    sBad = 60
    kvchk2 = kvchk[:-1] + [f'v_cmp_ne_u32 s[{sBad}:{sBad+1}], 0, v{vT}']
    def kvslow(ok, first=0):
        L = a.lab('kvs'); L1 = a.lab('kvt')
        a(f'''s_and_b32 s6, s{sStep}, {ring}
        s_lshl_b32 s6, s6, 19
        s_add_u32 s6, s6, s{sKV0}''')
        ld = kvld('s6')
        a(f's_mov_b32 s7, 0\n{f"s_branch {L1}" if first else ""}\n{L}:')
        for x in ld: a(x)
        a(f'{L1}:\ns_waitcnt vmcnt(0)')
        for x in kvchk: a(x)
        a(f's_cbranch_vccz {ok}')
        spin_check(a, 7, 13, L)
    def prep():
        for k, s in enumerate((sSh0, sA1, sA2, sA3)): a(f'v_add_u32 v{SA+k}, s{s}, v{vL16}')
        for r in range(QK, QK+24, 2): a(f'v_mov_b64 {vr(r,2)}, 0')
    a(f's_mov_b32 s{sTKM}, 1')
    kvslow('L_rec_go', 1)
    a('L_rec_go:')
    kv_addr(a, ring)
    prep()
    a(f's_mov_b64 s[{sBad}:{sBad+1}], 0')
    if cfg.get('cnt'): a('s_mov_b32 s99, 0')
    mark(a, cfg, 7, 16)
    a('s_branch L_rec_step')
    def gl(r): a(f"""buffer_load_dwordx4 {vr(r,4)}, v{vL16}, {WS}, s{sMld} offen sc1
        buffer_load_dwordx4 {vr(r+4,4)}, v{vL16}, {WS}, s{sMld} offen offset:1024 sc1""")
    def gchk(r, ok): a(f"""v_bitop3_b32 v{vT}, v{r}, v{r+2}, s{sTag} bitop3:0x7e
        v_bitop3_b32 v{vT+1}, v{r+4}, v{r+6}, s{sTag} bitop3:0x7e
        v_bitop3_b32 v{vT}, v{vT}, v{vT+1}, 1 bitop3:0xa8
        v_cmp_ne_u32 vcc, 0, v{vT}
        s_cbranch_vccz {ok}""")
    gs = [MA, SA+4][:cfg.get('g_sets', 2)]; ng = len(gs)
    def fill(n):
        for k in range(n): a(f'v_mov_b32 v{vT+2}, 0')
    kxr = [f'ds_read_b128 {vr(KX+16*T_+4*ks,4)}, v{vKx} offset:{ks*2048+T_*128}' for ks in range(4) for T_ in range(2)]
    a('L_rec_loop:')
    pw = cfg.get('prep_at', 2)
    if pw == 1: prep()
    fill(cfg.get('g_pre', 0))
    gl(MA)
    a('s_mov_b32 s7, 0')
    if pw == 2: prep()
    fill(cfg.get('g_gap', 0))
    if ng > 1: gl(gs[1])
    if pw == 3: prep()
    a('s_branch L_rec_gather1')
    a('L_rec_gather:')
    for k in range(ng):
        gl(gs[k-1])
        if k == 0: a('L_rec_gather1:')
        a(f's_waitcnt vmcnt({2*(ng-1)})')
        gchk(gs[k], f'L_rec_got{k}' if k else 'L_rec_got')
    timeout_fix(a, 7, 12, 'L_rec_gather')
    for k in range(1, ng):
        a(f'L_rec_got{k}:')
        for r in range(0, 8, 2): a(f'v_mov_b64 {vr(MA+r,2)}, {vr(gs[k]+r,2)}')
        if k < ng-1: a('s_branch L_rec_got')
    a(f"""L_rec_got:
    s_mov_b32 s63, s7
    s_xor_b32 s{sTag}, s{sTag}, 1
    L_rec_step:""")
    T(0)
    def sm(m, t, ct):
        acc = (QK, QK+8, VA)[m] + 4*ct
        return f'v_smfmac_f32_16x16x64_bf16 {vr(acc,4)}, {vr(MA+4*t,4)}, {wfrag(m,t,ct)}, v{vIdx}'
    def red(acc, dst): return [f'v_add_f32 v{acc}, v{acc}, v{acc+1}', f'v_add_f32 v{acc+2}, v{acc+2}, v{acc+3}', f'v_cvt_pk_bf16_f32 v{dst}, v{acc}, v{acc+2}']
    a(f"""ds_write_b128 v{SA}, {vr(MA,4)}
    ds_write_b128 v{SA}, {vr(MA+4,4)} offset:1024""")
    own = [sm(m, t, ct) for m in range(3) for t in range(2) for ct in range(2)]
    misc = [f's_and_b32 s6, s{sStep}, {ring}', 's_lshl_b32 s6, s6, 17', f's_add_u32 s{sKM}, s{sKM0}, s6', f's_cmp_lg_u64 s[{sBad}:{sBad+1}], 0']
    for x in own[:4]:
        a(x); a(misc.pop(0))
    a('s_waitcnt lgkmcnt(0)\ns_barrier')
    mar = [f'ds_read_b128 {vr(MA+4*t,4)}, v{SA+t//2} offset:{(t%2)*1024}' for t in range(2, 8)]
    a(mar[0]); a(mar[1]); a(own[4]); a(mar[2]); a(mar[3]); a(own[5]); a(mar[4]); a(mar[5])
    for x in own[6:]: a(x)
    a('s_cbranch_scc1 L_rec_kvwait\nL_rec_kvok:')
    dm = list(kvdma); d0 = cfg.get('dma_at', 0)
    for t in range(2, 8):
        a(f's_waitcnt lgkmcnt({7-t})'); a(sm(0,t,0)); a(sm(0,t,1))
        if dm and d0 == 0: a(dm.pop(0))
    r0 = red(QK, vT); r1 = red(QK+4, vT+2); r2 = red(QK+8, vT+1); r3 = red(QK+12, vT+3)
    if cfg.get('k_alt'):
        rr = r0 + r1
        for t in range(2, 8):
            a(sm(1,t,0))
            if dm: a(dm.pop(0))
            a(sm(1,t,1))
            if t > 2: a(rr.pop(0))
            if t > 6: a(rr.pop(0))
        V = [sm(2, t, ct) for t in range(2, 8) for ct in range(2)]
        T(1)
        a(V[0]); a(V[1])
        for x, y in zip(r2, r3): a(x); a(y)
        a(f'ds_write_b64 v{vQKw}, {vr(vT,2)}\nds_write_b64 v{vQKw}, {vr(vT+2,2)} offset:128')
    else:
        fl = {4: r0[:2], 5: [r0[2], r1[0]], 6: r1[1:], 8: r2[:1], 9: r2[1:2], 10: r2[2:], 11: [f'ds_write_b64 v{vQKw}, {vr(vT,2)}']}
        for i in range(12):
            a(sm(1, 2 + i % 6, i // 6))
            if dm and i < 4:
                a(dm.pop(0))
                if dm and dm[0].startswith('s_'): a(dm.pop(0))
                if i == 0 and dm: a(dm.pop(0))
            for x in fl.get(i, []): a(x)
        assert not dm
        T(1)
        V = [sm(2, t, ct) for t in range(2, 8) for ct in range(2)]
        a(V[0]); a(V[1])
        for x in r3: a(x)
        a(f'ds_write_b64 v{vQKw}, {vr(vT+2,2)} offset:128')
    a(V[2]); a(V[3])
    a('s_waitcnt lgkmcnt(0)\ns_barrier')
    for ks in range(4):
        for sub in range(2): a(f'ds_read_b64_tr_b16 {vr(QK+4*ks+2*sub,2)}, v{vXr} offset:{ks*256+sub*64}')
        a(V[4+ks])
    nv = cfg.get('v_pre', 0)
    a(f's_waitcnt vmcnt({len(kvdma)*2//3})')
    for x in V[8:8+nv]: a(x)
    T(2)
    for ks in range(4):
        a(f's_waitcnt lgkmcnt({6-2*ks})')
        c = lambda r: '0' if ks == 0 else vr(r, 4)
        a(f'v_mfma_f32_16x16x32_bf16 {vr(SA,4)}, {vr(KX+4*ks,4)}, {vr(QK+4*ks,4)}, {c(SA)}')
        a(f'v_mfma_f32_16x16x32_bf16 {vr(SA+4,4)}, {vr(KX+16+4*ks,4)}, {vr(QK+4*ks,4)}, {c(SA+4)}')
        a(f'v_mfma_f32_16x16x32_bf16 {vr(SA+8,4)}, {vr(QK+4*ks,4)}, {vr(QK+4*ks,4)}, {c(SA+8)}')
    V = V[8+nv:]
    seq = [(0,0),(1,0),(0,1),(1,1),(2,0),(3,0),(2,1),(3,1),(4,0),(5,0),(4,1),(5,1),(6,0),(7,0),(6,1),(7,1)]
    slots = [KX, KX+8, KX+16, KX+24, MA, MA+8, MA+16, MA+24]
    def word(i):
        ct, kb = seq[i]
        return [f'ds_read_b128 {vr(slots[i%8]+4*hf,4)}, v{vWo} offset:{(2*kb+hf)*8192+ct*1024}' for hf in range(2)]
    pre = sum([word(i) for i in range(8)], [])
    def P(n=1):
        for _ in range(n):
            if pre: a(pre.pop(0))
    def Vn():
        if V: a(V.pop(0))
    Vn(); P(2)
    T(3)
    m_, t_ = QK+4, QK+5; PX = QK+8
    sv = [SA+i for i in range(8)] + [SA+10, SA+11]
    a(f'v_max3_f32 v{m_}, v{sv[0]}, v{sv[1]}, v{sv[2]}')
    a(f'v_max3_f32 v{t_}, v{sv[4]}, v{sv[5]}, v{sv[6]}')
    a(f'v_max3_f32 v{m_}, v{m_}, v{sv[3]}, v{sv[7]}')
    a(f'v_max3_f32 v{t_}, v{t_}, v{sv[8]}, v{sv[9]}')
    a(f'v_max_f32 v{m_}, v{m_}, v{t_}\nv_max_f32 v{t_}, v{m_}, v{t_}')
    Vn(); P(1)
    a(f'v_permlane32_swap_b32 v{m_}, v{t_}\nv_max_f32 v{m_}, v{m_}, v{t_}\nv_max_f32 v{t_}, v{m_}, v{t_}')
    Vn(); P(1)
    a(f'v_permlane16_swap_b32 v{m_}, v{t_}\nv_max_f32 v{m_}, v{m_}, v{t_}\nv_mul_f32 v{m_}, s{sC}, v{m_}')
    while V: Vn()
    def fm(r): a(f'v_fma_f32 v{r}, v{r}, s{sC}, -v{m_}')
    def ex(r): a(f'v_exp_f32 v{r}, v{r}'); P(1)
    fm(sv[8]); fm(sv[9]); ex(sv[8]); ex(sv[9])
    for i in range(4): fm(sv[i])
    SUM = SA+8
    a(f'v_cvt_pk_bf16_f32 v{vPM}, v{sv[8]}, v{sv[9]}')
    ex(sv[0]); ex(sv[1])
    a(f'v_mfma_f32_16x16x16_bf16 {vr(SUM,4)}, {vr(vONE,2)}, {vr(vPM,2)}, 0')
    ex(sv[2]); ex(sv[3])
    for x in red(VA, vT): a(x)
    a(f'v_cvt_pk_bf16_f32 v{PX}, v{sv[0]}, v{sv[1]}\nv_cvt_pk_bf16_f32 v{PX+1}, v{sv[2]}, v{sv[3]}')
    for x in red(VA+4, vT+2): a(x)
    a(f'v_mfma_f32_16x16x16_bf16 {vr(SUM,4)}, {vr(vONE,2)}, {vr(PX,2)}, {vr(SUM,4)}')
    a(f'v_bfi_b32 v{vT}, 1, s{sTKM}, v{vT}')
    for i in range(4, 6): fm(sv[i])
    if not cfg.get('x_nokm'): a(f'buffer_store_dwordx4 {vr(vT,4)}, v{vL16}, {WS}, s{sKM} offen sc1')
    a(f'v_mfma_f32_16x16x16_bf16 {vr(VA,4)}, {vr(vT,2)}, {vr(vPM,2)}, 0')
    for i in range(6, 8): fm(sv[i])
    a(f'v_mfma_f32_16x16x16_bf16 {vr(VA+4,4)}, {vr(vT+2,2)}, {vr(vPM,2)}, 0')
    for i in range(4, 8): ex(sv[i])
    a(f's_cmp_eq_u32 s{sStep}, 63')
    a(f'v_cvt_pk_bf16_f32 v{PX+2}, v{sv[4]}, v{sv[5]}\nv_cvt_pk_bf16_f32 v{PX+3}, v{sv[6]}, v{sv[7]}')
    a('s_cbranch_scc1 L_rec_last')
    T(4)
    a(f'v_mfma_f32_16x16x16_bf16 {vr(SUM,4)}, {vr(vONE,2)}, {vr(PX+2,2)}, {vr(SUM,4)}')
    a(f'v_mfma_f32_16x16x32_bf16 {vr(VA,4)}, {vr(VC,4)}, {vr(PX,4)}, {vr(VA,4)}')
    a(f'v_mfma_f32_16x16x32_bf16 {vr(VA+4,4)}, {vr(VC+4,4)}, {vr(PX,4)}, {vr(VA+4,4)}')
    P(16)
    a(f'v_rcp_f32 v{SUM}, v{SUM}')
    O_ = SA
    for t in range(2):
        for r in (0, 2): a(f'v_pk_mul_f32 {vr(VA+4*t+r,2)}, {vr(VA+4*t+r,2)}, {vr(SUM,2)} op_sel_hi:[1,0]')
        a(f'v_cvt_pk_bf16_f32 v{O_+2*t}, v{VA+4*t}, v{VA+4*t+1}\nv_cvt_pk_bf16_f32 v{O_+2*t+1}, v{VA+4*t+2}, v{VA+4*t+3}')
    a(f"""s_mov_b64 exec, s[{sVal}:{sVal+1}]
    ds_write2_b32 v{vOw}, v{O_}, v{O_+1} offset0:0 offset1:4
    ds_write2_b32 v{vOw}, v{O_+2}, v{O_+3} offset0:8 offset1:12
    s_mov_b64 exec, -1
    v_mfma_f32_32x32x8_bf16 {vr(QK,16)}, {vr(vPM,2)}, {vr(vPM+2,2)}, 0
    v_mfma_f32_32x32x8_bf16 {vr(QK+16,16)}, {vr(vPM,2)}, {vr(vPM+2,2)}, 0
    s_waitcnt {'' if cfg.get('kv_late', 0) else 'vmcnt(1) '}lgkmcnt(0)
    s_barrier
    ds_read_b128 {vr(SA,4)}, v{vOr}
    ds_read_b128 {vr(SA+4,4)}, v{vOr} offset:128""")
    T(5)
    qd = ['o0', 'o1']
    def need(tags):
        last = max([k for k, x in enumerate(qd) if x in tags], default=-1)
        if last >= 0:
            a(f's_waitcnt lgkmcnt({len(qd)-1-last})'); del qd[:last+1]
    PK = SA+8; PK2 = vT
    valu = []
    def pack(ct):
        d = (PK, PK2)[ct//4] + ct % 4
        return red(QK+4*ct, d)
    for i in range(16):
        ct, kb = seq[i]; sl = slots[i % 8]
        need({f'f{i}', f'o{kb}'})
        a(f'v_smfmac_f32_16x16x64_bf16 {vr(QK+4*ct,4)}, {vr(SA+4*kb,4)}, {vr(sl,8)}, v{vIdx}')
        if i + 8 < 16:
            for x in word(i+8): a(x)
            qd += [f'f{i+8}']*2
        if i == 5: valu += pack(0) + pack(1)
        if i == 9: valu += pack(2) + pack(3) + [f'v_bfi_b32 v{PK}, 1, s{sTag}, v{PK}', f'buffer_store_dwordx4 {vr(PK,4)}, v{vPst}, {WS}, s{sPB0} offen']
        if i == 13: valu += pack(4) + pack(5)
        n = 1 if i < 8 else 2
        for x in valu[:n]: a(x)
        del valu[:n]
    for x in valu: a(x)
    for x in pack(6) + pack(7): a(x)
    a(f'v_bfi_b32 v{PK2}, 1, s{sTag}, v{PK2}\nbuffer_store_dwordx4 {vr(PK2,4)}, v{vPst}, {WS}, s{sPB1} offen')
    T(6)
    a(f's_add_u32 s{sStep}, s{sStep}, 1')
    if cfg.get('kv_late', 0): a('s_waitcnt vmcnt(3)\ns_barrier')
    if tm: time_dump(a)
    for x in kxr: a(x)
    a(f'ds_read_b128 {vr(VC,4)}, v{vVx}\nds_read_b128 {vr(VC+4,4)}, v{vVx} offset:256')
    a(f's_lshr_b32 s6, s{sStep}, 2\ns_andn2_b32 s{sTKM}, 1, s6')
    kv_addr(a, ring)
    if pw == 0: prep()
    def rloads(r):
        for i in range(8): a(f'buffer_load_dwordx4 {vr(r+4*i,4)}, v{vL16}, {WS}, s{sPR0 if i < 4 else sPR1} offen offset:{(i%4)*1024} sc1')
    SEL = SA+4; D_ = SA+8; AD = vT+3; F_ = vT
    a(f"""v_bfe_u32 v{AD}, v{vL16}, 4, 4
    v_and_b32 v{F_}, 1, v{AD}
    v_lshlrev_b32 v{F_+1}, 4, v{F_}
    v_mov_b32 v{F_+2}, 0x3f80
    v_lshlrev_b32 v{F_+1}, v{F_+1}, v{F_+2}
    v_lshrrev_b32 v{F_+2}, 1, v{AD}""")
    for k in range(4): a(f'v_cmp_eq_u32 vcc, {k}, v{F_+2}\nv_cndmask_b32 v{SEL+k}, 0, v{F_+1}, vcc')
    a(f"""v_lshlrev_b32 v{F_}, 5, v{F_}
    v_bfe_u32 v{F_+1}, v{AD}, 2, 1
    v_lshl_or_b32 v{F_}, v{F_+1}, 4, v{F_}
    v_bfe_u32 v{F_+1}, v{AD}, 1, 1
    v_lshl_or_b32 v{F_}, v{F_+1}, 3, v{F_}
    v_lshrrev_b32 v{F_+1}, 8, v{vL16}
    v_lshl_or_b32 v{D_}, v{F_+1}, 6, v{F_}
    s_waitcnt lgkmcnt(0)""")
    for x in kvchk2: a(x)
    a(f'v_mov_b32 v{AD}, v{D_}\ns_cmp_lg_u32 s{sW}, 0\ns_cbranch_scc1 L_rec_nored')
    rs = [MA, QK][:cfg.get('r_sets', 1)]; nr = len(rs)
    fill2 = lambda n: [a(f'v_mov_b32 v{F_+2}, 0') for k in range(n)]
    fill2(max(0, cfg.get('r_pre', 0) - (32 if tm else 0)))
    for k in range(nr-1):
        rloads(rs[k]); fill2(cfg.get('r_mid', 0))
    a('s_mov_b32 s7, 0\nL_rec_rr:')
    def rround(r, ok):
        for i in range(8):
            a(f's_waitcnt vmcnt({8*nr-1-i})')
            a(f'v_mfma_f32_16x16x32_bf16 {vr(D_,4)}, {vr(r+4*i,4)}, {vr(SEL,4)}, {"0" if i == 0 else vr(D_,4)}')
            if i % 2: a(f'v_bitop3_b32 v{F_+(i//2 if i < 7 else 1)}, v{r+4*i-4}, v{r+4*i}, s{sTag} bitop3:0x7e')
            if i == 6: a(f'v_or3_b32 v{F_}, v{F_}, v{F_+1}, v{F_+2}')
        a(f"""v_bitop3_b32 v{F_}, v{F_}, v{F_+1}, 1 bitop3:0xa8
        v_cmp_ne_u32 vcc, 0, v{F_}
        s_cbranch_vccz {ok}""")
    for k in range(nr):
        rloads(rs[k-1]); rround(rs[k], 'L_rec_red')
    timeout_fix(a, 7, 14, 'L_rec_rr')
    a('L_rec_red:')
    T(7)
    if tm: a('s_mov_b32 s62, s7')
    a(f"""v_cvt_pk_bf16_f32 v{D_}, v{D_}, v{D_+1}
    v_cvt_pk_bf16_f32 v{D_+1}, v{D_+2}, v{D_+3}
    v_bfi_b32 v{D_}, 1, s{sTag}, v{D_}
    s_mov_b64 exec, s[{sLo}:{sLo+1}]
    buffer_store_dwordx2 {vr(D_,2)}, v{AD}, {WS}, s{sMst} offen
    s_cmp_lg_u32 s{sStep}, 63
    s_cbranch_scc1 L_rec_nl
    buffer_store_dwordx2 {vr(D_,2)}, v{AD}, {WS}, s{sMst} offen sc1
    L_rec_nl:
    s_mov_b64 exec, -1""")
    ke = cfg.get('kv_early', 1)
    def early(back):
        L = a.lab('ke')
        a(f's_cmp_lg_u64 s[{sBad}:{sBad+1}], 0\ns_cbranch_scc0 {L}\ns_and_b32 s6, s{sStep}, {ring}\ns_lshl_b32 s6, s6, 19\ns_add_u32 s6, s6, s{sKV0}')
        for x in kvld('s6'): a(x)
        a(f'{L}:')
    a('s_barrier')
    if ke: early(0)
    T(8)
    a('s_branch L_rec_loop\nL_rec_nored:')
    if ke == 1: early(1)
    a('s_barrier')
    if ke == 2: early(1)
    T(8)
    a('s_branch L_rec_loop\nL_rec_kvwait:')
    if cfg.get('cnt'): a('s_add_u32 s99, s99, 1')
    kvslow('L_rec_kvok', ke)
    a('L_rec_last:')
    mark(a, cfg, 8, 16)
    if cfg.get('cnt'): mark(a, cfg, 10, 16, 99)
    a('s_waitcnt vmcnt(0)\ns_endpgm')

def time_dump(a):
    a(f'''s_waitcnt lgkmcnt(0)
    s_lshl_b32 s6, s{sX}, 5
    s_add_u32 s6, s6, s{sR}
    s_lshl_b32 s6, s6, 2
    s_add_u32 s6, s6, s{sW}
    s_lshl_b32 s6, s6, 6
    s_add_u32 s6, s6, s{sStep}
    s_lshl_b32 s6, s6, 6
    s_add_u32 s6, s6, {160*MB_}''')
    for k in range(9): a(f'v_mov_b32 v{QK+k}, s{70+2*k}')
    a(f'v_mov_b32 v{QK+9}, s62\nv_mov_b32 v{QK+10}, s63\ns_memtime s[70:71]\ns_waitcnt lgkmcnt(0)\nv_mov_b32 v{QK+11}, s70')
    a(f'''s_mov_b64 exec, 1
    buffer_store_dwordx4 {vr(QK,4)}, v{vPM+1}, {WS}, s6 offen
    buffer_store_dwordx4 {vr(QK+4,4)}, v{vPM+1}, {WS}, s6 offen offset:16
    buffer_store_dwordx4 {vr(QK+8,4)}, v{vPM+1}, {WS}, s6 offen offset:32
    s_mov_b64 exec, -1''')
```

```python
from common import *
L_X, L_PK, PKX, L_T, L_RS, L_SP = 0, 0x8000, 0x18000, 0xE000, 0xF200, 0xF400
GQ = 1088
vL16, vXr, vKx, vQx, vVx, vTw, vTr, vMv, vRs, vRw, vONE, vPM, vCS, vMN, vMK = 0, 1, 2, 3, 4, 5, 6, 7, 8, 9, 10, 12, 16, 20, 24
AQ, AK, AV, XF, ST, RR, vPw, vOs, vL4, vFX = 32, 48, 64, 80, 92, 96, 112, 113, 114, 115
KMD, vSr, vSp = 116, 14, 15
WV = 128
sI, sSeg, sC, sLY, sH, sRep = 32, 33, 34, 35, 36, 37
sXT0, sKV0, sKM0, sOI0, sFKV, sFO, sFX, sXT, sKV, sKM, sOI, sNeed, sTag, sVal, sPre, sM0 = range(38, 54)

def wreg(m, r, n): return ar(128*m + r, n) if m < 2 else vr(WV + r, n)

def coop_weights(a, nch, dst, srdof, goff, done_cb, vG, vR, rowb, hish=3, rowof=lambda j: 16*(j//2) + 4*(j % 2), post=lambda c: None):
    a(f'''v_lshrrev_b32 v{vR}, 4, v{vL16}
    v_lshrrev_b32 v{vG}, 8, v{vL16}
    v_lshlrev_b32 v{vR+1}, 2, v{vG}
    v_and_b32 v{vR}, 15, v{vR}
    v_xor_b32 v{vR}, v{vR}, v{vR+1}
    v_mul_u32_u24 v{vG}, {rowb}, v{vG}
    v_lshl_add_u32 v{vG}, v{vR}, 4, v{vG}''')
    a(f'''v_bfe_u32 v{vR}, v{vL16}, 6, 2
    v_lshlrev_b32 v{vR+1}, 2, v{vR}
    v_bfe_u32 v{vR+2}, v{vL16}, 8, 1
    v_lshlrev_b32 v{vR+2}, 1, v{vR+2}
    v_bfe_u32 v{vR+3}, v{vL16}, 5, 1
    v_or_b32 v{vR+2}, v{vR+2}, v{vR+3}
    s_lshl_b32 s6, s{sW}, 2
    v_or_b32 v{vR+2}, s6, v{vR+2}
    v_xor_b32 v{vR+2}, v{vR+2}, v{vR+1}
    v_lshlrev_b32 v{vR+2}, 4, v{vR+2}
    v_bfe_u32 v{vR+3}, v{vL16}, 4, 1
    v_lshl_or_b32 v{vR+2}, v{vR+3}, 3, v{vR+2}
    v_bfe_u32 v{vR+3}, v{vL16}, 9, 1
    v_lshl_or_b32 v{vR}, v{vR+3}, {hish}, v{vR}
    v_lshl_or_b32 v{vR}, v{vR}, 8, v{vR+2}
    v_add_u32 v{vR+1}, 0x10000, v{vR}
    s_lshl_b32 s60, s{sW}, 13
    s_mul_i32 s63, s{sW}, {32*rowb}''')
    def issue(c):
        goff(c)
        a('s_add_u32 s61, s61, s63')
        for i in range(8):
            a(f'''s_add_u32 m0, s60, {(c % 4)*32768 + i*1024}
            s_add_u32 s62, s61, {i*4*rowb}
            buffer_load_dwordx4 v{vG}, s[{srdof(c)}:{srdof(c)+3}], s62 offen lds''')
    done_cb(0)
    for c in range(3): issue(c)
    for c in range(nch):
        a(f's_waitcnt vmcnt({8*min(2, nch-1-c)})\ns_barrier')
        if c + 3 < nch: issue(c + 3)
        b = c % 4
        for j in range(16):
            a(f'ds_read_b64_tr_b16 {dst(c, j)}, v{vR + b//2} offset:{(b % 2)*32768 + rowof(j)*256}')
        a('s_waitcnt lgkmcnt(0)')
        post(c)
    a('s_barrier')

def p(a, cfg):
    ring = cfg.get('ring', 3); tm = cfg.get('p_time', 0)
    def T(slot):
        if tm: a(f's_mem{"real" if cfg.get("rt") else ""}time s[{70+2*slot}:{71+2*slot}]')
    a('L_p:')
    def sel(dst, pair): a(f's_mul_i32 s{dst}, s{sLY}, {pair[1]-pair[0]:#x}\ns_add_u32 s{dst}, s{dst}, {pair[0]:#x}')
    a(f'''s_sub_u32 s{sLY}, s{sX}, 2
    s_lshr_b32 s{sLY}, s{sLY}, 1
    s_and_b32 s6, s{sX}, 1
    s_lshl_b32 s6, s6, 4
    s_and_b32 s{sH}, s{sR}, 15
    s_add_u32 s{sH}, s{sH}, s6
    s_lshr_b32 s{sRep}, s{sR}, 4''')
    sel(sXT0, XT if not cfg.get('x_xt') else (XT[0], XT[0])); sel(sKV0, KVX); sel(sKM0, KVM); sel(sOI0, OI); sel(sFX, (FX1, FX3))
    a(f'''s_lshl_b32 s6, s{sW}, 13
    s_add_u32 s{sXT0}, s{sXT0}, s6
    s_add_u32 s{sM0}, s6, {L_X}
    s_lshl_b32 s6, s{sH}, 14
    s_lshl_b32 s7, s{sW}, 11
    s_add_u32 s{sKV0}, s{sKV0}, s6
    s_add_u32 s{sKV0}, s{sKV0}, s7
    s_lshl_b32 s6, s{sH}, 12
    s_lshl_b32 s7, s{sW}, 10
    s_add_u32 s{sKM0}, s{sKM0}, s6
    s_add_u32 s{sKM0}, s{sKM0}, s7
    s_lshl_b32 s6, s{sH}, 13
    s_lshr_b32 s7, s{sW}, 1
    s_lshl_b32 s7, s7, 12
    s_add_u32 s{sOI0}, s{sOI0}, s6
    s_add_u32 s{sOI0}, s{sOI0}, s7
    s_lshl_b32 s6, s{sLY}, 13
    s_lshl_b32 s7, s{sRep}, 12
    s_add_u32 s6, s6, s7
    s_lshl_b32 s7, s{sH}, 7
    s_add_u32 s6, s6, s7
    s_lshl_b32 s7, s{sW}, 2
    s_add_u32 s6, s6, s7
    s_add_u32 s{sFO}, s6, {FO:#x}
    s_mov_b32 s{sC}, 0x3e0293ee
    v_mov_b32 v{vPM}, 0
    v_mov_b32 v{vPM+1}, 0
    v_mov_b32 v{vPM+2}, 0
    v_mov_b32 v{vPM+3}, 0
    v_lshlrev_b32 v16, 4, v0
    s_lshl_b32 s6, s{sRep}, 19
    s_add_u32 s6, s6, s{sKV0}
    s_mov_b64 exec, 1
    buffer_store_dword v{vPM}, v{vPM}, {WS}, s{sFO} offen sc1
    s_mov_b64 exec, -1''')
    for k in range(4):
        for h in range(2): a(f'buffer_store_dwordx4 {vr(vPM,4)}, v16, {WS}, s6 offen offset:{h*1024} sc1')
        if k < 3: a(f's_add_u32 s6, s6, {0x2000 if k != 1 else (2 << 19) - 0x2000}')
    if cfg.get('integ'):
        a(f's_cmp_ge_u32 s{sX}, 4\ns_cbranch_scc1 L_pro\nL_p2:\nv_mov_b32 v{vPM}, 0\nv_mov_b32 v{vPM+1}, 0')
    a(f'v_lshlrev_b32 v{vL16}, 4, v0')
    srd(a, 16, P_WQ, 4*MB_); srd(a, 20, P_WK, 4*MB_); srd(a, 24, P_WV, 4*MB_)
    def goff(c): a(f's_lshl_b32 s61, s{sH}, 8\ns_add_u32 s61, s61, {(c % 4) << 20}')
    for r in range(4): a(f'v_mov_b32 v{XF+r}, 0x3f803f80')
    def colsum(c):
        m = c // 4; acc = AQ + 16*m
        for ks in range(8*(c % 4), 8*(c % 4) + 8):
            a(f'v_mfma_f32_32x32x16_bf16 {vr(acc,16)}, {vr(XF,4)}, {wreg(m,4*ks,4)}, {"0" if ks == 0 else vr(acc,16)}')
    coop_weights(a, 12, lambda c, j: wreg(c//4, (c % 4)*32 + 2*j, 2), lambda c: 16 + 4*(c//4), goff,
                 lambda n: role_done(a, cfg, n), 100, 104, 8192, post=colsum)
    mark(a, cfg, 2, 16)
    a(f'''v_bfe_u32 v16, v{vL16}, 4, 4
    v_lshrrev_b32 v17, 8, v{vL16}
    v_lshrrev_b32 v{vL4}, 2, v{vL16}
    v_bfe_u32 v18, v{vL16}, 6, 2
    v_lshrrev_b32 v19, 9, v{vL16}
    v_lshl_or_b32 v18, v19, 3, v18
    v_lshlrev_b32 v18, 6, v18
    v_and_b32 v20, 1, v17
    v_lshl_or_b32 v18, v20, 5, v18
    v_and_b32 v20, 3, v16
    v_lshl_or_b32 v{vXr}, v20, 3, v18
    v_and_b32 v18, 7, v16
    v_lshrrev_b32 v20, 3, v16
    v_lshl_or_b32 v18, v20, 4, v18
    v_lshlrev_b32 v18, 4, v18
    v_lshl_add_u32 v18, v17, 9, v18
    v_add_u32 v{vKx}, {(L_PK ^ PKX) + 8192}, v18
    s_and_b32 s6, s{sW}, 1
    s_lshl_b32 s6, s6, 8
    v_lshlrev_b32 v18, 4, v16
    v_lshl_or_b32 v18, v17, 9, v18
    v_add_u32 v{vOs}, s6, v18
    v_add_u32 v{vQx}, {L_PK ^ PKX}, v{vOs}
    s_lshr_b32 s7, s{sW}, 1
    s_lshl_b32 s6, s7, 12
    s_add_u32 s6, s6, {(L_PK ^ PKX) + 16384}
    v_add_u32 v{vVx}, s6, v18
    s_lshl_b32 s6, s{sW}, 11
    s_add_u32 s6, s6, {L_PK}
    v_add_u32 v{vPw}, s6, v{vL16}
    v_mul_u32_u24 v18, {GQ}, v17
    v_lshl_add_u32 v18, v16, 3, v18
    s_lshl_b32 s6, s{sW}, 8
    s_add_u32 s6, s6, {L_T}
    v_add_u32 v{vTw}, s6, v18
    s_lshl_b32 s6, s7, 9
    s_add_u32 s6, s6, {L_T}
    v_add_u32 v{vMv}, s6, v18
    v_and_b32 v18, 3, v16
    v_mul_u32_u24 v18, {GQ}, v18
    v_bfe_u32 v20, v{vL16}, 6, 3
    v_lshl_add_u32 v18, v20, 3, v18
    v_lshl_add_u32 v18, v19, 7, v18
    v_add_u32 v{vTr}, {L_T}, v18
    s_lshl_b32 s6, s{sW}, 7
    s_add_u32 s6, s6, {L_RS}
    v_lshlrev_b32 v18, 4, v19
    v_add_u32 v{vRs}, s6, v18
    v_and_b32 v18, 0x7c, v{vL4}
    v_add_u32 v{vRw}, s6, v18
    v_lshlrev_b32 v18, 1, v18
    v_add_u32 v{vSp}, {L_SP}, v18
    s_lshl_b32 s6, s{sW}, 13
    v_add_u32 v{vSr}, s6, v{vXr}
    v_mov_b32 v{vONE}, 0x3f803f80
    v_mov_b32 v{vONE+1}, 0x3f803f80''')
    a(f'''s_and_b32 s6, s{sW}, 1
    s_lshl_b32 s6, s6, 4
    v_add_u32 v16, s6, v16
    v_lshlrev_b32 v18, 4, v19
    v_and_b32 v20, 1, v17
    v_lshl_or_b32 v18, v20, 2, v18
    v_sub_u32 v16, v16, v18
    v_mov_b32 v17, 0xf149f2ca''')
    for T_ in range(2):
        for r in range(4): a(f'v_cmp_gt_i32 vcc, {8*T_+r}, v16\nv_cndmask_b32 v{vMK+4*T_+r}, 0, v17, vcc')
    a(f'v_cmp_gt_u32 vcc, 512, v{vL16}')
    for m in range(3):
        acc = AQ + 16*m
        a(f'''v_cvt_pk_bf16_f32 v{acc+1}, v{acc}, v{acc}
        v_and_b32 v{acc+1}, 0xffff0000, v{acc+1}
        v_sub_f32 v{acc}, v{acc}, v{acc+1}
        v_cvt_pk_bf16_f32 v{acc}, v{acc}, v{acc+1}
        v_cndmask_b32 v{vCS+m}, 0, v{acc}, vcc''')
    a(f'v_mov_b32 v{vCS+3}, 0\nv_mov_b32 v{vMN+1}, 0\nv_mov_b32 v{vMN+2}, 0')
    wait_done(a, ST, ST+1, 20)
    mark(a, cfg, 3, ST)
    a(f's_mov_b32 s{sI}, 0\ns_mov_b32 s{sPre}, 0\ns_mov_b32 s{sSeg}, s{sRep}\ns_add_u32 s{sNeed}, s{sSeg}, 1')
    Ls = a.lab('p1')
    a(f's_cmp_lg_u32 s{sLY}, 0\ns_cbranch_scc1 {Ls}')
    poll_ge(a, vL16, sFX, sNeed, AQ, 21, 8)
    a(f'{Ls}:')
    mark(a, cfg, 4, ST)
    def xdma():
        a(f's_sub_u32 s6, s{sNeed}, 1\ns_lshl_b32 s6, s6, 15\ns_add_u32 s{sXT}, s{sXT0}, s6\ns_mov_b32 m0, s{sM0}\ns_add_u32 s6, s{sXT}, 4096')
        for k in range(4): a(f'buffer_load_dwordx4 v{vL16}, {WS}, s{sXT} offen offset:{k*1024} lds')
        a(f's_add_u32 m0, s{sM0}, 4096')
        for k in range(4): a(f'buffer_load_dwordx4 v{vL16}, {WS}, s6 offen offset:{k*1024} lds')
    if cfg.get('warm', 0) & 1: warm(a, cfg, sLY, 120, [(KVX, 15, 0), (KVM, 13, 0)])
    if cfg.get('cnt'): a('s_mov_b32 s99, 0')
    a('L_p_xwait:')
    if cfg.get('cnt'): a('s_add_u32 s99, s99, 1')
    poll_ge(a, vL4, sFX, sNeed, ST, 22, 1)
    xdma()
    a('s_waitcnt vmcnt(0)\nL_p_loop:')
    a(f"""s_barrier
    s_and_b32 s6, s{sSeg}, {ring}
    s_lshl_b32 s6, s6, 19
    s_add_u32 s{sKV}, s{sKV0}, s6
    s_lshr_b32 s6, s{sSeg}, 2
    s_andn2_b32 s{sFKV}, 1, s6
    s_add_u32 s{sNeed}, s{sSeg}, 3
    s_lshl_b32 s7, s{sW}, 8""")
    T(0)
    qd = []
    def ds(x, tag): a(x); qd.append(tag)
    def need(tag):
        last = max([k for k, x in enumerate(qd) if x == tag], default=-1)
        if last >= 0:
            a(f's_waitcnt lgkmcnt({len(qd)-1-last})'); del qd[:last+1]
    def xr(ks):
        for h in range(2): ds(f'ds_read_b64_tr_b16 {vr(XF+4*(ks%3)+2*h,2)}, v{vXr} offset:{L_X + (ks % 32)*1024 + h*256}', f'x{ks}')
    SF, U = RR, RR+8
    def sr_(k):
        for h in range(2): ds(f'ds_read_b64_tr_b16 {vr(SF+4*(k%2)+2*h,2)}, v{vSr} offset:{L_X + k*1024 + h*256}', f's{k}')
    xr(0); xr(1); sr_(0)
    a(f'v_mov_b32 v{ST}, 0\nv_mov_b32 v{ST+1}, 0\nv_add_u32 v{U+4}, s7, v{vSp}')
    fill = {ks: [] for ks in range(32)}
    for k in range(8):
        ops = []
        for r in range(4):
            f = SF + 4*(k % 2) + r; u = U + 2*(r % 2)
            ops += [f'v_lshlrev_b32 v{u}, 16, v{f}', f'v_and_b32 v{u+1}, 0xffff0000, v{f}', f'v_add_f32 v{ST}, v{ST}, v{u}', f'v_fmac_f32 v{ST+1}, v{u}, v{u}',
                    f'v_add_f32 v{ST}, v{ST}, v{u+1}', f'v_fmac_f32 v{ST+1}, v{u+1}, v{u+1}']
        fill[3*k].append(('need', f's{k}'))
        if k < 7: fill[3*k].append(('sr', k+1))
        for j in range(3): fill[3*k+j] += ops[8*j:8*j+8]
    fill[24] = [f'v_mov_b32 v{ST+2}, v{ST}', f'v_mov_b32 v{ST+3}, v{ST+1}', f'v_permlane32_swap_b32 v{ST}, v{ST+2}', f'v_permlane32_swap_b32 v{ST+1}, v{ST+3}',
                f'v_add_f32 v{ST}, v{ST}, v{ST+2}', f'v_add_f32 v{ST+1}, v{ST+1}, v{ST+3}', ('ds', f'ds_write_b64 v{U+4}, {vr(ST,2)}', 'w')]
    fill[25] = [('nop',), ('need', 'w'), 's_barrier'] + [('ds', f'ds_read_b64 {vr(SF+2*k,2)}, v{vSp} offset:{256*k}', 'r') for k in range(4)]
    b = Asm()
    b(f"""v_add_f32 v{ST}, v{SF}, v{SF+2}
    v_add_f32 v{ST+1}, v{SF+1}, v{SF+3}
    v_add_f32 v{ST+2}, v{SF+4}, v{SF+6}
    v_add_f32 v{ST+3}, v{SF+5}, v{SF+7}
    v_add_f32 v{ST}, v{ST}, v{ST+2}
    v_add_f32 v{ST+1}, v{ST+1}, v{ST+3}""")
    ln_final(b, ST, ST+1, ST+2)
    b(f"""v_xor_b32 v{ST}, 0x80000000, v{ST}
    v_lshrrev_b32 v{ST+2}, 16, v{ST}
    v_or_b32 v{vMN}, v{ST}, v{ST+2}
    v_or_b32 v{vMN+3}, v{ST}, v{ST+2}
    v_mov_b32 v{ST}, v{ST+1}""")
    ops = [('need', 'r')] + b.lines + [('ds', f'ds_write_b32 v{vRw}, v{ST+1}', 'w2')]
    for j in range(4): fill[27+j] = ops[8*j:8*j+8]
    assert len(ops) <= 32
    fill[31] = [('ds', f'ds_read_b128 {vr(RR+4*q,4)}, v{vRs} offset:{32*q}', 'rr') for q in range(4)]
    def F(lst):
        for x in lst:
            if isinstance(x, str): a(x)
            elif x[0] == 'need': need(x[1])
            elif x[0] == 'sr': sr_(x[1])
            elif x[0] == 'ds': ds(x[1], x[2])
    TM = 126; kv1 = cfg.get('p_kv1', 4)
    oflag = f's_mov_b64 exec, 1\nbuffer_store_dword v{TM}, v{vPM+1}, {WS}, s{sFO} offen sc1\ns_mov_b64 exec, -1'
    for ks in range(32):
        f = XF + 4*(ks % 3); c = lambda r: '0' if ks == 0 else vr(r, 16)
        d = fill[ks]
        if ks == cfg.get('p_def', 5):
            a(f's_cmp_eq_u32 s{sPre}, 2\ns_cbranch_scc0 L_p_nof\ns_waitcnt vmcnt(0)\n{oflag}\nL_p_nof:')
        need(f'x{ks}')
        a(f'v_mfma_f32_32x32x16_bf16 {vr(AK,16)}, {wreg(1,4*ks,4)}, {vr(f,4)}, {c(AK)}')
        if ks + 2 < 32 or kv1: xr(ks+2)
        n1 = 1 if len(d) < 10 else 3
        if kv1: n1 = (len(d) + 1)//2
        F(d[:n1])
        if ks == 0 or not cfg.get('x_p'): a(f'v_mfma_f32_32x32x16_bf16 {vr(AV,16)}, {vr(f,4)}, {wreg(2,4*ks,4)}, {c(AV)}')
        F(d[n1:n1+4])
        if not kv1: a(f'v_mfma_f32_32x32x16_bf16 {vr(AQ,16)}, {wreg(0,4*ks,4)}, {vr(f,4)}, {c(AQ)}')
        F(d[n1+4:])
    def fin(acc, sc, goff_, loff):
        l = [f'v_pk_mul_f32 {vr(acc+r,2)}, {vr(acc+r,2)}, {sc(r)}' for r in range(0, 16, 2)]
        l += [f'v_cvt_pk_bf16_f32 v{acc+r}, v{acc+2*r}, v{acc+2*r+1}' for r in range(8)]
        if goff_ is not None: l += [f'v_bfi_b32 v{acc+4*h}, 1, s{sFKV}, v{acc+4*h}' for h in range(2)]
        for h in range(2):
            if goff_ is not None: l.append(f'buffer_store_dwordx4 {vr(acc+4*h,4)}, v{vL16}, {WS}, s{goff_} offen offset:{h*1024} sc1')
            l.append(('ds', f'ds_write_b128 v{vPw}, {vr(acc+4*h,4)} offset:{loff + h*1024}', 'pw'))
        return l
    cor = [f'v_mfma_f32_32x32x8_bf16 {vr(AK,16)}, {vr(vCS,2)}, {vr(vMN+2,2)}, {vr(AK,16)}', f'v_mfma_f32_32x32x8_bf16 {vr(AV,16)}, {vr(vMN,2)}, {vr(vCS+2,2)}, {vr(AV,16)}',
           f'v_mfma_f32_32x32x8_bf16 {vr(AQ,16)}, {vr(vCS,2)}, {vr(vMN,2)}, {vr(AQ,16)}']
    finkv = fin(AK, lambda r: vr(ST,2), sKV, 8192) + [('need', 'rr')] + fin(AV, lambda r: vr(RR+r,2), 7, 16384)
    a(f's_add_u32 s7, s{sKV}, 0x2000')
    if kv1:
        a(cor.pop(0)); a(cor.pop(0))
        for ks in range(32, 64):
            need(f'x{ks}')
            a(f'v_mfma_f32_32x32x16_bf16 {vr(AQ,16)}, {wreg(0,4*(ks-32),4)}, {vr(XF+4*(ks%3),4)}, {"0" if ks == 32 else vr(AQ,16)}')
            if ks + 2 < 64: xr(ks+2)
            if ks > 32: F(finkv[:kv1]); del finkv[:kv1]
    T(1)
    kmaddr = f'''s_sub_u32 s{sVal}, s{sSeg}, 2
    s_and_b32 s6, s{sVal}, {ring}
    s_lshl_b32 s6, s6, 17
    s_add_u32 s{sKM}, s{sKM0}, s6
    s_lshr_b32 s6, s{sVal}, 2
    s_andn2_b32 s{sTag}, 1, s6
    s_lshl_b32 s6, s{sVal}, 18
    s_add_u32 s{sOI}, s{sOI0}, s6
    s_add_u32 s{sVal}, s{sVal}, 1
    buffer_load_dwordx4 {vr(KMD,4)}, v{vL16}, {WS}, s{sKM} offen sc1'''
    a(kmaddr)
    a(f'buffer_load_dword v{vFX}, v{vL4}, {WS}, s{sFX} offen sc1')
    F(cor); F(finkv); F(fin(AQ, lambda r: vr(ST,2), None, 0))
    T(2)
    a(f's_cmp_eq_u32 s{sI}, 0\ns_cbranch_scc1 L_p_first')
    a('L_p_att:')
    KF, QF, VF, S_ = 32, 64, 80, 96
    MT, MV, O_, PX, m_, t_, TM = 32, 48, 56, 120, 124, 125, 126
    for ks in range(4):
        a(f'ds_read_b128 {vr(QF+4*ks,4)}, v{vQx} offset:{ks*2048}')
        for T_ in range(2): a(f'ds_read_b128 {vr(KF+16*T_+4*ks,4)}, v{vKx} offset:{ks*2048+T_*128}')
    for ks in range(4):
        a(f's_waitcnt lgkmcnt({9-3*ks})')
        for T_ in range(2):
            a(f'v_mfma_f32_16x16x32_bf16 {vr(S_+4*T_,4)}, {vr(KF+16*T_+4*ks,4)}, {vr(QF+4*ks,4)}, {vr(vMK+4*T_,4) if ks == 0 else vr(S_+4*T_,4)}')
    for u in range(2):
        for t in range(2): a(f'ds_read_b128 {vr(VF+8*u+4*t,4)}, v{vVx} offset:{u*2048+t*256}')
    def tryx(again=0, keep=0):
        L = a.lab('nx'); L2 = a.lab('nx')
        a(f's_cmp_lg_u32 s{sPre}, 0\ns_cbranch_scc1 {L}' if keep else f's_mov_b32 s{sPre}, 0')
        a(f'''s_cmp_ge_u32 s{sI}, 31
        s_cbranch_scc1 {L}
        v_cmp_gt_u32 vcc, s{sNeed}, v{vFX}
        s_cbranch_vccnz {L2 if again else L}
        s_mov_b32 s{sPre}, 1''')
        xdma()
        if again: a(f's_branch {L}\n{L2}:\nbuffer_load_dword v{vFX}, v{vL4}, {WS}, s{sFX} offen sc1')
        a(f'{L}:')
    ex = cfg.get('p_ex', 1)
    if ex: a(f's_mov_b32 s{sPre}, 0\ns_barrier')
    a(f'''s_mov_b32 s7, 0
    s_waitcnt vmcnt({0 if kv1 else 4})
    L_p_km:
    v_bitop3_b32 v{TM}, v{KMD}, s{sTag}, 1 bitop3:0x28
    v_cmp_ne_u32 vcc, 0, v{TM}
    s_cbranch_vccz L_p_kmok
    buffer_load_dwordx4 {vr(KMD,4)}, v{vL16}, {WS}, s{sKM} offen sc1''')
    if ex:
        a(f'''s_cmp_lg_u32 s{sPre}, 0
        s_cbranch_scc1 L_p_k0
        s_cmp_ge_u32 s{sI}, 31
        s_cbranch_scc1 L_p_k0
        v_cmp_gt_u32 vcc, s{sNeed}, v{vFX}
        s_cbranch_vccnz L_p_k1
        s_mov_b32 s{sPre}, 1''')
        xdma()
        a('s_waitcnt vmcnt(8)\ns_branch L_p_k2\nL_p_k1:')
    a(f'buffer_load_dword v{vFX}, v{vL4}, {WS}, s{sFX} offen sc1\nL_p_k0:\ns_waitcnt vmcnt(0)\nL_p_k2:')
    spin_check(a, 7, 23, 'L_p_km')
    a('L_p_kmok:')
    if ex: tryx(1, 1)
    a(f'''    ds_write_b64 v{vTw}, {vr(KMD,2)}
    ds_write_b64 v{vTw}, {vr(KMD+2,2)} offset:128
    v_max3_f32 v{m_}, v{S_}, v{S_+1}, v{S_+2}
    v_max3_f32 v{t_}, v{S_+4}, v{S_+5}, v{S_+6}
    v_max3_f32 v{m_}, v{m_}, v{S_+3}, v{S_+7}
    s_waitcnt lgkmcnt(0)
    s_barrier''')
    T(3)
    for ks in range(4):
        for sub in range(2): a(f'ds_read_b64_tr_b16 {vr(MT+4*ks+2*sub,2)}, v{vTr} offset:{ks*256+sub*64}')
    for k in range(4): a(f'ds_read_b64 {vr(MV+2*k,2)}, v{vMv} offset:{k*128}')
    p2 = 1
    if not ex: tryx(p2)
    for ks in range(4):
        a(f's_waitcnt lgkmcnt({10-2*ks})')
        a(f'v_mfma_f32_16x16x32_bf16 {vr(S_+8,4)}, {vr(MT+4*ks,4)}, {vr(QF+4*ks,4)}, {"0" if ks == 0 else vr(S_+8,4)}')
    sv = [S_+i for i in range(8)] + [S_+10, S_+11]
    a(f'''v_max_f32 v{m_}, v{m_}, v{t_}
    v_max3_f32 v{m_}, v{m_}, v{sv[8]}, v{sv[9]}
    v_mov_b32 v{t_}, v{m_}
    v_permlane32_swap_b32 v{m_}, v{t_}
    v_max_f32 v{m_}, v{m_}, v{t_}
    v_max_f32 v{t_}, v{m_}, v{t_}
    v_permlane16_swap_b32 v{m_}, v{t_}
    v_max_f32 v{m_}, v{m_}, v{t_}
    v_mul_f32 v{m_}, s{sC}, v{m_}''')
    for r in [sv[8], sv[9]] + sv[:8]: a(f'v_fma_f32 v{r}, v{r}, s{sC}, -v{m_}')
    for r in (sv[8], sv[9]): a(f'v_exp_f32 v{r}, v{r}')
    SUM = S_ + 12
    a(f'v_exp_f32 v{sv[0]}, v{sv[0]}\nv_cvt_pk_bf16_f32 v{vPM}, v{sv[8]}, v{sv[9]}\nv_exp_f32 v{sv[1]}, v{sv[1]}\ns_waitcnt lgkmcnt(0)')
    a(f'v_mfma_f32_16x16x16_bf16 {vr(SUM,4)}, {vr(vONE,2)}, {vr(vPM,2)}, 0')
    for k in range(4):
        a(f'v_mfma_f32_16x16x16_bf16 {vr(O_+4*k,4)}, {vr(MV+2*k,2)}, {vr(vPM,2)}, 0')
        if k < 3: a(f'v_exp_f32 v{sv[2+2*k]}, v{sv[2+2*k]}\nv_exp_f32 v{sv[3+2*k]}, v{sv[3+2*k]}')
    for k in range(4): a(f'v_cvt_pk_bf16_f32 v{PX+k}, v{sv[2*k]}, v{sv[2*k+1]}')
    for h in range(2): a(f'v_mfma_f32_16x16x16_bf16 {vr(SUM,4)}, {vr(vONE,2)}, {vr(PX+2*h,2)}, {vr(SUM,4)}')
    for k in range(4): a(f'v_mfma_f32_16x16x32_bf16 {vr(O_+4*k,4)}, {vr(VF+4*k,4)}, {vr(PX,4)}, {vr(O_+4*k,4)}')
    a(f'v_rcp_f32 v{SUM}, v{SUM}\nv_mov_b32 v{TM}, s{sVal}')
    for u in range(2):
        for r in range(0, 8, 2): a(f'v_pk_mul_f32 {vr(O_+8*u+r,2)}, {vr(O_+8*u+r,2)}, {vr(SUM,2)} op_sel_hi:[1,0]')
        for r in range(4): a(f'v_cvt_pk_bf16_f32 v{O_+8*u+r}, v{O_+8*u+2*r}, v{O_+8*u+2*r+1}')
        a(f'buffer_store_dwordx4 {vr(O_+8*u,4)}, v{vOs}, {WS}, s{sOI} offen offset:{u*2048} sc1')
    if p2:
        a(f'''s_cmp_ge_u32 s{sI}, 31
        s_cbranch_scc1 L_p_of
        s_cmp_lg_u32 s{sPre}, 0
        s_cbranch_scc1 {'L_p_of3' if cfg.get('p_def', 1) else 'L_p_of'}
        s_waitcnt vmcnt(2)
        v_cmp_gt_u32 vcc, s{sNeed}, v{vFX}
        s_cbranch_vccnz {'L_p_of4' if cfg.get('p_l3', 0) else 'L_p_of'}
        s_mov_b32 s{sPre}, 1''')
        xdma()
        a(f's_waitcnt vmcnt(8)\n{oflag}\ns_waitcnt vmcnt(1)\ns_branch L_p_of2')
        if cfg.get('p_l3', 0):
            a(f'''L_p_of4:
            buffer_load_dword v{vFX}, v{vL4}, {WS}, s{sFX} offen sc1
            s_waitcnt vmcnt(1)
            {oflag}
            s_waitcnt vmcnt(1)
            v_cmp_gt_u32 vcc, s{sNeed}, v{vFX}
            s_cbranch_vccnz L_p_of2
            s_mov_b32 s{sPre}, 1''')
            xdma()
            a('s_waitcnt vmcnt(0)\ns_branch L_p_of2')
        a(f'L_p_of3:\ns_mov_b32 s{sPre}, 2')
        if tm: a('s_waitcnt vmcnt(10)')
        T(5)
        a('s_waitcnt vmcnt(2)\ns_branch L_p_of2')
    a(f'L_p_of:\ns_waitcnt vmcnt(0)\n{oflag}\nL_p_of2:')
    T(4)
    a('L_p_next:')
    for r in (vKx, vQx, vVx, vPw): a(f'v_xor_b32 v{r}, {PKX:#x}, v{r}')
    if tm:
        a(f'''s_waitcnt lgkmcnt(0)
        s_lshl_b32 s6, s{sX}, 5
        s_add_u32 s6, s6, s{sR}
        s_lshl_b32 s6, s6, 2
        s_add_u32 s6, s6, s{sW}
        s_lshl_b32 s6, s6, 6
        s_add_u32 s6, s6, s{sI}
        s_lshl_b32 s6, s6, 6
        s_add_u32 s6, s6, {160*MB_}''')
        for k in range(8): a(f'v_mov_b32 v{AQ+k}, s{70+2*k}')
        a(f'''s_mov_b64 exec, 1
        buffer_store_dwordx4 {vr(AQ,4)}, v{vPM+1}, {WS}, s6 offen
        buffer_store_dwordx4 {vr(AQ+4,4)}, v{vPM+1}, {WS}, s6 offen offset:16
        s_mov_b64 exec, -1''')
    a(f'''s_add_u32 s{sI}, s{sI}, 1
    s_add_u32 s{sSeg}, s{sSeg}, 2
    s_cmp_gt_u32 s{sI}, 32
    s_cbranch_scc1 L_p_end
    s_cmp_eq_u32 s{sI}, 32
    s_cbranch_scc1 L_p_tail
    s_cmp_eq_u32 s{sPre}, 0
    s_cbranch_scc1 L_p_xwait
    s_branch L_p_loop
    L_p_tail:''')
    a(kmaddr)
    a(f'''s_waitcnt vmcnt(0) lgkmcnt(0)
    s_barrier
    s_branch L_p_att
    L_p_first:''')
    mark(a, cfg, 7, KMD)
    a(f's_waitcnt vmcnt(0) lgkmcnt(0)\ns_barrier')
    tryx()
    a(f's_cmp_lg_u32 s{sLY}, 0\ns_cbranch_scc1 L_p_f2\ns_mov_b32 s{sVal}, 127')
    poll_ge(a, vL16, sFX, sVal, AQ, 24, 8)
    a('''L_p_f2:
    s_waitcnt vmcnt(0)
    s_branch L_p_next
    L_p_end:''')
    if cfg.get('cnt'): mark(a, cfg, 10, 16, 99)
    a('''s_waitcnt vmcnt(0)
    s_endpgm''')
```
